```python
import torch

def _softmax(x, axis=-1):
    return torch.softmax(x, dim=axis)
def _gelu(x):
    return torch.nn.functional.gelu(x, approximate="tanh")
def _silu(x):
    return torch.nn.functional.silu(x)
def _sigmoid(x):
    return torch.sigmoid(x)
def _layernorm(x, axis=-1, eps=1e-5):
    m = x.mean(dim=axis, keepdim=True)
    v = x.var(dim=axis, keepdim=True, unbiased=False)
    return (x - m) / torch.sqrt(v + eps)
def _scatter_add(tgt, idx, src, axis=0):
    return tgt.clone().index_add_(axis, idx, src)
def _segment_sum(src, seg, n):
    out = torch.zeros((n,) + src.shape[1:], dtype=src.dtype)
    return out.index_add_(0, seg, src)
def _pad(x, pw):
    flat = tuple(v for pair in reversed(pw) for v in pair)
    return torch.nn.functional.pad(x, flat)

kernel_name = 'parallel_sum__ssm_conv_s5__glu_gated_glu__prompt'

def setup_inputs():

    _w = (lambda a: (lambda t: t.to(torch.bfloat16) if t.is_floating_point() else t)(torch.as_tensor(a)))
    def _A_setup():
        B, S, D = 1, 2048, 640
        P = D
        Lambda_re = -0.5 * (lambda _x: torch.exp(torch.as_tensor(_x)))((lambda *s: torch.randn(*s, dtype=torch.bfloat16) * 0.8)(P))
        Lambda_im = (lambda *s: torch.randn(*s, dtype=torch.bfloat16) * 0.8)(P) * 1.0
        B_re = (lambda *s: torch.randn(*s, dtype=torch.bfloat16) * 0.8)(P, D) * (D ** -0.5)
        B_im = (lambda *s: torch.randn(*s, dtype=torch.bfloat16) * 0.8)(P, D) * (D ** -0.5)
        C_re = (lambda *s: torch.randn(*s, dtype=torch.bfloat16) * 0.8)(D, P) * (P ** -0.5)
        C_im = (lambda *s: torch.randn(*s, dtype=torch.bfloat16) * 0.8)(D, P) * (P ** -0.5)
        log_dt = (lambda *s: torch.randn(*s, dtype=torch.bfloat16) * 0.8)(P) * 0.3 - 2.0
        Dskip = (lambda *s: torch.randn(*s, dtype=torch.bfloat16) * 0.8)(D)
        return {
            "x": _w((lambda *s: torch.randn(*s, dtype=torch.bfloat16) * 0.05)(B, S, D)),
            "Lambda_re": _w(Lambda_re),
            "Lambda_im": _w(Lambda_im),
            "B_re": _w(B_re),
            "B_im": _w(B_im),
            "C_re": _w(C_re),
            "C_im": _w(C_im),
            "log_dt": _w(log_dt),
            "Dskip": _w(Dskip),
        }
    _A_in = _A_setup()

    def _B_setup():
        B, S, D, F = 1, 2048, 640, 1728
        return {
            "x": _w((lambda *s: torch.randn(*s, dtype=torch.bfloat16) * 0.05)(B, S, D)),
            "w_gate": _w((lambda *s: torch.randn(*s, dtype=torch.bfloat16) * 0.05)(D, F)),
            "w_up": _w((lambda *s: torch.randn(*s, dtype=torch.bfloat16) * 0.05)(D, F)),
            "w_down": _w((lambda *s: torch.randn(*s, dtype=torch.bfloat16) * 0.05)(F, D)),
        }
    _B_in = _B_setup()

    return {
        "A_x": _A_in["x"],
        "A_Lambda_re": _A_in["Lambda_re"],
        "A_Lambda_im": _A_in["Lambda_im"],
        "A_B_re": _A_in["B_re"],
        "A_B_im": _A_in["B_im"],
        "A_C_re": _A_in["C_re"],
        "A_C_im": _A_in["C_im"],
        "A_log_dt": _A_in["log_dt"],
        "A_Dskip": _A_in["Dskip"],
        "B_x": _B_in["x"],
        "B_w_gate": _B_in["w_gate"],
        "B_w_up": _B_in["w_up"],
        "B_w_down": _B_in["w_down"],
    }

def reference(A_x, A_Lambda_re, A_Lambda_im, A_B_re, A_B_im, A_C_re, A_C_im, A_log_dt, A_Dskip, B_x, B_w_gate, B_w_up, B_w_down):
    def _A_ref(x, Lambda_re, Lambda_im, B_re, B_im, C_re, C_im, log_dt, Dskip):
        Bsz, L, H = x.shape
        Lam = Lambda_re + 1j * Lambda_im
        Bmat = B_re + 1j * B_im
        Cmat = C_re + 1j * C_im
        dt = torch.exp(log_dt)
        Lam_bar = torch.exp(dt * Lam)
        B_bar = ((Lam_bar - 1.0) / Lam)[:, None] * Bmat
        Bu = torch.einsum("bld,pd->blp", x + 0j, B_bar)
        h = torch.zeros_like(Bu[:, 0, :])
        hs = []
        for t in range(L):
            h = Lam_bar[None, :] * h + Bu[:, t, :]
            hs.append(h)
        hseq = torch.stack(hs, 1)
        y = 2.0 * torch.einsum("blp,dp->bld", hseq, Cmat).real + x * Dskip[None, None, :]
        return y

    def _B_ref(x, w_gate, w_up, w_down):
        g = torch.einsum("bsd,df->bsf", x, w_gate)
        u = torch.einsum("bsd,df->bsf", x, w_up)
        h = _sigmoid(g) * u
        return torch.einsum("bsf,fd->bsd", h, w_down)

    x = A_x
    xn = _layernorm(x, axis=-1)
    return x + _A_ref(xn, A_Lambda_re, A_Lambda_im, A_B_re, A_B_im, A_C_re, A_C_im, A_log_dt, A_Dskip) + _B_ref(xn, B_w_gate, B_w_up, B_w_down)
```

```python
import re

REG_RE = re.compile(r'^(-)?\|?(?:abs\()?([vas])(?:(\d+)|\[(\d+):(\d+)\])\)?\|?$')

def parse_regs(op):
    op = op.strip()
    if op in ('vcc',):
        return {('s', 'vcc')}
    if op in ('vcc_lo', 'vcc_hi'):
        return {('s', 'vcc')}
    if op in ('exec', 'exec_lo', 'exec_hi'):
        return {('s', 'exec')}
    if op == 'm0':
        return {('s', 'm0')}
    m = REG_RE.match(op)
    if not m:
        return set()
    k = m.group(2)
    if m.group(3) is not None:
        return {(k, int(m.group(3)))}
    return {(k, i) for i in range(int(m.group(4)), int(m.group(5)) + 1)}

TRANS = ('v_exp_f32', 'v_log_f32', 'v_rcp_f32', 'v_rsq_f32', 'v_sqrt_f32', 'v_sin_f32', 'v_cos_f32')

class Ins:
    def __init__(self, text):
        self.text = text
        t = text.split(';')[0].strip()
        self.label = t.endswith(':')
        self.directive = t.startswith('.')
        self.mn = ''
        self.dst = set(); self.src = set()
        self.ops = []
        if self.label or self.directive or not t:
            self.kind = 'none'
            return
        parts = t.split(None, 1)
        mn = parts[0]
        self.mn = mn
        rest = parts[1] if len(parts) > 1 else ''
        ops = []
        cur = ''
        depth = 0
        for ch in rest:
            if ch == '[': depth += 1
            if ch == ']': depth -= 1
            if ch == ',' and depth == 0:
                ops.append(cur.strip()); cur = ''
            else:
                cur += ch
        if cur.strip():
            ops.append(cur.strip())
        mods = ''
        if ops:
            sp = ops[-1].split(None, 1)
            ops[-1] = sp[0]
            mods = sp[1] if len(sp) > 1 else ''
        self.ops = ops; self.mods = mods
        R = [parse_regs(o) for o in ops]
        base = re.sub(r'_(e32|e64|dpp|sdwa)$', '', mn)
        self.base = base
        self.dpp = mn.endswith('_dpp') or 'row_' in mods or 'quad_perm' in mods
        if mn.startswith('v_mfma'):
            self.kind = 'mfma'
            self.dst = R[0]; self.srcA = R[1]; self.srcB = R[2]; self.srcC = R[3]
            self.src = R[1] | R[2] | R[3]
            self.passes = 8 if '32x32x16' in mn else 4
        elif mn.startswith('v_'):
            self.kind = 'valu'
            if base.startswith('v_permlane') and 'swap' in base:
                self.dst = R[0] | R[1]; self.src = R[0] | R[1]
            elif base.startswith('v_cmp'):
                self.dst = R[0]; self.src = set().union(*R[1:])
            elif base in ('v_add_co_u32', 'v_addc_co_u32', 'v_sub_co_u32'):
                self.dst = R[0] | R[1]; self.src = set().union(*R[2:])
            elif base == 'v_nop':
                pass
            else:
                self.dst = R[0]; self.src = set().union(*R[1:]) if len(R) > 1 else set()
                if base in ('v_fmac_f32', 'v_dot2c_f32_bf16', 'v_writelane_b32') or self.dpp:
                    self.src |= R[0]
                if base == 'v_cndmask_b32' and len(ops) == 3:
                    self.src |= {('s', 'vcc')}
            self.trans = base in TRANS
        elif mn.startswith('buffer_') or mn.startswith('global_'):
            self.kind = 'vmem'
            self.lds = ' lds' in (' ' + mods) or 'load_lds' in mn
            if 'store' in mn or ('atomic' in mn):
                self.src = set().union(*R)
                self.store = True
                if mn.startswith('buffer_'):
                    self.data = R[0]
                else:
                    self.data = R[1]
                if 'atomic' in mn and 'sc0' in mods:
                    self.dst = R[0]
            elif self.lds:
                self.src = set().union(*R) | {('s', 'm0')}
                self.store = False
            elif mn in ('buffer_inv', 'buffer_wbl2'):
                self.store = False
            else:
                self.dst = R[0]; self.src = set().union(*R[1:])
                self.store = False
        elif mn.startswith('ds_'):
            self.kind = 'ds'
            if 'write' in mn or mn.startswith('ds_add'):
                self.src = set().union(*R)
            else:
                self.dst = R[0]; self.src = set().union(*R[1:])
        elif mn.startswith('s_'):
            self.kind = 'salu'
            if mn.startswith('s_load') or mn.startswith('s_memtime') or mn.startswith('s_memrealtime') or mn.startswith('s_buffer_load'):
                self.kind = 'smem'
                self.dst = R[0]; self.src = set().union(*R[1:]) if len(R) > 1 else set()
            elif mn.startswith('s_cmp') or mn.startswith('s_cbranch') or mn in ('s_branch', 's_waitcnt', 's_barrier', 's_nop', 's_sleep', 's_endpgm', 's_setprio', 's_bitcmp1_b32', 's_bitcmp0_b32'):
                self.src = set().union(*R) if R else set()
            else:
                self.dst = R[0] if R else set(); self.src = set().union(*R[1:]) if len(R) > 1 else set()
                if 'saveexec' in mn:
                    self.dst |= {('s', 'exec')}
        else:
            raise ValueError("unknown instr: " + text)

    def states(self):
        if self.kind == 'none':
            return 0
        if self.mn == 's_nop':
            return int(self.ops[0]) + 1
        return 1

def vec(regs):
    return {r for r in regs if r[0] in 'va'}
def sca(regs):
    return {r for r in regs if r[0] == 's'}

def need(p, c):
    n = 0
    if p.kind == 'valu':
        pv = vec(p.dst); ps = sca(p.dst)
        if c.kind == 'mfma' and pv & c.src: n = max(n, 2)
        if c.kind == 'valu':
            if pv & c.src:
                if c.dpp: n = max(n, 2)
                if c.base.startswith('v_permlane'): n = max(n, 2)
                if c.base in ('v_readfirstlane_b32', 'v_readlane_b32'): n = max(n, 1)
                if p.trans and not c.trans: n = max(n, 1)
                if p.trans and c.trans: n = max(n, 1)
                if p.base.startswith('v_dot'): n = max(n, 3)
            if pv & c.dst and p.base.startswith('v_dot'): n = max(n, 3)
            if ps & c.src:
                n = max(n, 2)
                if c.base in ('v_readlane_b32', 'v_writelane_b32'): n = max(n, 4)
            if ('s', 'exec') in ps and c.dpp: n = max(n, 5)
        if c.kind == 'vmem' and ps & c.src: n = max(n, 5)
        if c.kind in ('salu', 'smem') and ps & c.src: n = max(n, 1)
        if c.kind in ('vmem', 'ds') and p.trans and pv & c.src: n = max(n, 1)
    if p.kind == 'mfma':
        big = 12 if p.passes == 8 else 8
        if c.kind == 'mfma':
            if p.dst & (c.srcA | c.srcB): n = max(n, big)
            if p.dst & c.srcC and not (p.dst == c.srcC and p.passes == c.passes): n = max(n, big - 2)
        elif c.kind in ('valu', 'vmem', 'ds'):
            if p.dst & (c.src | c.dst): n = max(n, big)
        if c.kind == 'valu' and p.srcC & c.dst: n = max(n, 7 if p.passes == 8 else 3)
    if p.kind == 'vmem' and getattr(p, 'store', False) and ('x4' in p.mn or 'x3' in p.mn):
        if c.kind == 'valu' and p.data & c.dst: n = max(n, 2)
        elif p.data & c.dst: n = max(n, 1)
    if p.kind == 'salu':
        if ('s', 'm0') in p.dst and c.kind == 'vmem' and c.lds: n = max(n, 1)
    return n

class Asm:
    def __init__(self):
        self.ins = []
        self.vm = []
        self.lg = []
        self.smem_out = False
    def __call__(self, text, tag=None):
        for line in text.split('\n'):
            if not line.strip():
                continue
            i = Ins(line.strip())
            self.ins.append(i)
            if i.kind == 'vmem' and i.mn not in ('buffer_inv', 'buffer_wbl2'):
                self.vm.append(tag)
            elif i.kind == 'ds':
                self.lg.append(tag)
            elif i.kind == 'smem':
                self.smem_out = True
            elif i.mn == 's_waitcnt':
                t = i.text
                m = re.search(r'vmcnt\((\d+)\)', t)
                if m:
                    n = int(m.group(1)); self.vm = self.vm[len(self.vm) - n:] if n < len(self.vm) else self.vm
                    if n == 0: self.vm = []
                m = re.search(r'lgkmcnt\((\d+)\)', t)
                if m:
                    n = int(m.group(1)); self.lg = self.lg[len(self.lg) - n:] if n < len(self.lg) else self.lg
                    if n == 0: self.lg = []; self.smem_out = False
    def _cnt(self, lst, tags):
        if isinstance(tags, str): tags = [tags]
        idx = [k for k, t in enumerate(lst) if t in tags]
        if not idx: return None
        return len(lst) - 1 - max(idx)
    def wait(self, vm=None, lg=None):
        parts = []
        if vm is not None:
            n = self._cnt(self.vm, vm)
            if n is not None:
                parts.append(f'vmcnt({min(n,63)})')
        if lg is not None:
            n = self._cnt(self.lg, lg)
            if n is not None:
                assert not self.smem_out, "counted lgkm wait with smem outstanding"
                parts.append(f'lgkmcnt({min(n,15)})')
        if parts:
            self('s_waitcnt ' + ' '.join(parts))
    def state(self):
        return (list(self.vm), list(self.lg), self.smem_out)
    def set_state(self, st):
        self.vm, self.lg, self.smem_out = list(st[0]), list(st[1]), st[2]
    def text(self):
        out = []
        hist = []
        npad = 0
        for i in self.ins:
            if i.kind == 'none':
                out.append(i.text if i.label or i.directive else '    ' + i.text)
                continue
            req = 0
            dist = 0
            for p in reversed(hist):
                if dist >= 20: break
                r = need(p, i) - dist
                req = max(req, r)
                dist += p.states()
            if req > 0:
                nop = Ins(f's_nop {req-1}')
                out.append('    ' + nop.text + ' ; hazard pad'); hist.append(nop); npad += 1
            out.append('    ' + i.text)
            hist.append(i)
            if len(hist) > 40: hist = hist[-30:]
        self.npad = npad
        return '\n'.join(out) + '\n'
```

```python
import sys, math
from emit import Asm

NAME = "parallel_sum__ssm_conv_s5__glu_gated_glu__prompt"
STAMP = '--stamp' in sys.argv
HST = 'sc1'
LOG2E = 1.4426950408889634
def f2u(x):
    import struct
    return "0x%08x" % struct.unpack('<I', struct.pack('<f', x))[0]

H_SIZE = 32*94*4096
MISC = 0x1000000
W2P = 0x0
STATS = 0x400000
SPART = 0x410000
EOFF = 0x460000
STAMPS = 0x480000
MISC_SIZE = 0x500000
OOB = 0x8000000
MAGIC = 0x3f800000

XB = 0
WB = 61440
LDS1 = 163840

sX, sLre, sLim, sBre, sBim, sCre, sCim, sLdt, sD, sWg, sWu, sWd, sOut, sDbg, sWs = 8,10,12,14,16,18,20,22,24,28,30,32,34,36,38
rX, rA, rB, rH, rM, rF = 40, 44, 48, 52, 56, 60
sW, sRB, sG, sCC, sXo, sWo, sWo2, sXm, sWm, sT0, sT1, sT2, sT3, sKind, sPair = range(64, 79)
sSpin = 79
SPINMAX = 100000
sStamp = 80

def srd(a, r, base, size):
    a(f"s_mov_b32 s{r}, s{base}\ns_mov_b32 s{r+1}, s{base+1}\ns_mov_b32 s{r+2}, {size}\ns_mov_b32 s{r+3}, 0x20000")

def S(r, n=4): return f"s[{r}:{r+n-1}]"
def V(r, n=4): return f"v[{r}:{r+n-1}]"
def A(r, n=4): return f"a[{r}:{r+n-1}]"

def stamp(a, idx, vtmp):
    if not STAMP: return
    st = a.state()
    a(f"s_memtime s[80:81]\ns_waitcnt lgkmcnt(0)\nv_mov_b32 v{vtmp}, s80\nv_mov_b32 v{vtmp+1}, s82")
    a(f"buffer_store_dword v{vtmp}, v{vtmp+1}, {S(rM)}, 0 offen offset:{idx*4}", tag='stamp')

def code_prefetch(a, nbytes, v0, vt, endl):
    a(f"s_getpc_b64 s[84:85]\nL_pf_{endl}:\ns_mov_b32 s86, {endl}-L_pf_{endl}\ns_mov_b32 s87, 0x20000")
    a(f"v_lshlrev_b32 v{vt}, 7, v{v0}")
    for j in range((nbytes + 32767)//32768):
        a(f"buffer_load_dword v{vt+1}, v{vt}, s[84:87], 0 offen", tag='pf')
        if (j+1)*32768 < nbytes:
            a(f"v_add_u32 v{vt}, 0x8000, v{vt}")

def bf16_round(a, d, s):
    a(f"v_cvt_pk_bf16_f32 v{d}, v{s}, v{s}\nv_lshlrev_b32 v{d}, 16, v{d}")

def reduce32(a, v, t):
    for sh in (8, 4, 2, 1):
        a(f"v_add_f32_dpp v{v}, v{v}, v{v} row_ror:{sh} row_mask:0xf bank_mask:0xf")
    a(f"v_mov_b32 v{t}, v{v}\nv_permlane16_swap_b32 v{v}, v{t}\nv_add_f32 v{v}, v{v}, v{t}")

ACC = 0
XF = 160
WF = 200
vXR = 216
vWR = 220
vXD = 224
vWD = 229
vL = 233
vS0 = 234
vT = 238
vLAM = 244
def accg(j): return ACC + 32*j
def accu(j): return ACC + 32*j + 16

def dma_chunk(role, slot):
    L = []
    L.append(f"s_add_u32 m0, s{sXm}, {slot*20480}")
    for j in range(4):
        L.append(f"buffer_load_dwordx4 v{vXD+j}, {S(rX)}, s{sXo} offen offset:{j*1024} lds")
    L.append(f"s_add_u32 m0, s{sXm}, {slot*20480+4096}")
    L.append(f"buffer_load_dwordx4 v{vXD+4}, {S(rX)}, s{sXo} offen lds")
    st = 16384 if role == 'glu' else 8192
    L.append(f"s_add_u32 m0, s{sWm}, {slot*st}")
    for j in range(4):
        L.append(f"buffer_load_dwordx4 v{vWD+j}, {S(rA)}, s{sWo} offen offset:{j*1024} lds")
    L.append(f"s_add_u32 m0, s{sWm}, {slot*st+4096}")
    for j in range(4):
        if role == 'glu':
            L.append(f"buffer_load_dwordx4 v{vWD+j}, {S(rA)}, s{sWo2} offen offset:{j*1024} lds")
        else:
            L.append(f"buffer_load_dwordx4 v{vWD+j}, {S(rB)}, s{sWo} offen offset:{j*1024} lds")
    return L

def chunk_offsets(role):
    L = [f"s_lshl_b32 s{sXo}, s{sCC}, 7"]
    if role == 'glu':
        L += [f"s_mul_i32 s{sWo}, s{sCC}, {64*3456}", f"s_add_u32 s{sWo2}, s{sWo}, {32*3456}"]
    else:
        L += [f"s_mov_b32 s{sWo}, s{sXo}"]
    L += [f"s_add_u32 s{sCC}, s{sCC}, 1", f"s_cmp_eq_u32 s{sCC}, 10\ns_cselect_b32 s{sCC}, 0, s{sCC}"]
    return L

def reads(role, ks):
    c, s = ks // 4, ks % 4
    slot = c % 3
    b = ks & 1
    L = []
    for m in range(2):
        d = WF + b*8 + m*4
        if role == 'glu':
            off = slot*16384 + m*8192 + s*2048
            L.append(f"ds_read_b64_tr_b16 v[{d}:{d+1}], v{vWR} offset:{off}")
            L.append(f"ds_read_b64_tr_b16 v[{d+2}:{d+3}], v{vWR} offset:{off+256}")
        else:
            L.append(f"ds_read_b128 {V(d)}, v{vWR+s} offset:{slot*8192 + m*4096}")
    for j in range(5):
        d = XF + b*20 + j*4
        L.append(f"ds_read_b128 {V(d)}, v{vXR+s} offset:{slot*20480 + j*1024}")
    return L

def s_partial(ks):
    b = ks & 1
    L = []
    for m in range(2):
        for i in range(4):
            w = WF + b*8 + m*4 + i
            t = vT + (i & 1)*2
            first = (ks == 0 and i == 0)
            if first:
                L += [f"v_lshlrev_b32 v{vS0+2*m}, 16, v{w}", f"v_and_b32 v{vS0+2*m+1}, 0xffff0000, v{w}"]
            else:
                L += [f"v_lshlrev_b32 v{t}, 16, v{w}", f"v_and_b32 v{t+1}, 0xffff0000, v{w}",
                      f"v_add_f32 v{vS0+2*m}, v{vS0+2*m}, v{t}", f"v_add_f32 v{vS0+2*m+1}, v{vS0+2*m+1}, v{t+1}"]
    return L

def lam_setup():
    lr, li, dt, zr, zi, t = vT, vT+1, vT+2, vT+3, vT+4, vT+5
    u0, u1 = vS0, vS0+1
    L = [f"v_lshlrev_b32 v{lr}, 16, v{vLAM}", f"v_lshlrev_b32 v{li}, 16, v{vLAM+1}", f"v_lshlrev_b32 v{dt}, 16, v{vLAM+2}",
         f"v_mul_f32 v{dt}, {f2u(LOG2E)}, v{dt}", f"v_exp_f32 v{dt}, v{dt}",
         f"v_cvt_pk_bf16_f32 v{dt}, v{dt}, v{dt}", f"v_lshlrev_b32 v{dt}, 16, v{dt}",
         f"v_mul_f32 v{zr}, v{dt}, v{lr}", f"v_mul_f32 v{zi}, v{dt}, v{li}",
         f"v_mul_f32 v{zr}, {f2u(LOG2E)}, v{zr}", f"v_mul_f32 v{zi}, 0.15915494, v{zi}"]
    for idx, n in ((0, 1), (4, 40), (6, 80), (8, 160), (10, 320)):
        d = vLAM + idx
        L += [f"v_mul_f32 v{t}, {f2u(float(n))}, v{zr}", f"v_mul_f32 v{u0}, {f2u(float(n))}, v{zi}",
              f"v_exp_f32 v{t}, v{t}", f"v_fract_f32 v{u0}, v{u0}",
              f"v_cos_f32 v{d}, v{u0}", f"v_sin_f32 v{d+1}, v{u0}",
              f"v_mul_f32 v{d}, v{d}, v{t}", f"v_mul_f32 v{d+1}, v{d+1}, v{t}"]
    c = vLAM + 2
    L += [f"v_mul_f32 v{t}, v{lr}, v{lr}", f"v_fmac_f32 v{t}, v{li}, v{li}", f"v_rcp_f32 v{t}, v{t}",
          f"v_add_f32 v{u0}, -1.0, v{vLAM}",
          f"v_mul_f32 v{c}, v{u0}, v{lr}", f"v_fmac_f32 v{c}, v{vLAM+1}, v{li}",
          f"v_mul_f32 v{c+1}, v{vLAM+1}, v{lr}", f"v_fma_f32 v{c+1}, -v{u0}, v{li}, v{c+1}",
          f"v_add_f32 v{t}, v{t}, v{t}",
          f"v_mul_f32 v{c}, v{c}, v{t}", f"v_mul_f32 v{c+1}, v{c+1}, v{t}"]
    return L

def cmul_add(d, x, l, add):
    return [f"v_pk_fma_f32 v[{d}:{d+1}], v[{x}:{x+1}], v[{l}:{l+1}], v[{add}:{add+1}] op_sel:[0,0,0] op_sel_hi:[1,0,1]",
            f"v_pk_fma_f32 v[{d}:{d+1}], v[{x}:{x+1}], v[{l}:{l+1}], v[{d}:{d+1}] op_sel:[1,1,0] op_sel_hi:[0,1,1] neg_lo:[1,0,0]"]

aST = 0
aSP = 20

def mainloop(a, role):
    slow = []
    a.wait(vm='c0')
    a("s_barrier")
    for r in reads(role, 0): a(r, tag='r0')
    pend_dma = []
    for ks in range(40):
        c, s = ks // 4, ks % 4
        b = ks & 1
        pre = []
        fill = []
        if ks == 0 or s == 3:
            cn = 2 if ks == 0 else c + 3
            if cn <= 9:
                pend_dma = [(x, None) for x in chunk_offsets(role)] + [(x, f'c{cn}') for x in dma_chunk(role, cn % 3)]
                nsl = 3 if ks == 0 else 4
                per = (len(pend_dma) + nsl - 1) // nsl
        extra = []
        if ks < 4: extra += [(x, None) for x in s_partial(ks)]
        if ks == 4:
            extra += [(f"v_add_f32 v{vS0}, v{vS0}, v{vS0+1}", None), (f"v_add_f32 v{vS0+2}, v{vS0+2}, v{vS0+3}", None),
                      (f"v_lshlrev_b32 v{vT}, 2, v{vL}", None), (f"s_mul_i32 s{sT0}, s{sPair}, 13", None), (f"s_add_u32 s{sT0}, s{sT0}, s{sRB}", None),
                      (f"v_permlane32_swap_b32 v{vS0}, v{vS0+2}", None), (f"s_lshl_b32 s{sT0}, s{sT0}, 8", None), (f"s_add_u32 s{sT0}, s{sT0}, {SPART}", None),
                      (f"v_add_f32 v{vS0}, v{vS0}, v{vS0+2}", None),
                      (f"buffer_store_dword v{vS0}, v{vT}, {S(rM)}, s{sT0} offen sc1", 'early')]
        if role == 'ssm' and ks in (8, 9, 10):
            ls = lam_setup(); k = (len(ls) + 2)//3
            if ks == 8: extra += [('WAITVM', 'lam')]
            extra += [(x, None) for x in ls[(ks-8)*k:(ks-7)*k]]
        if ks == 12:
            extra += [(f"v_mov_b32 v{vT}, {OOB}", None), (f"s_lshl_b32 s{sT0}, s{sW}, 6", None), (f"v_or_b32 v{vT+1}, s{sT0}, v{vL}", None),
                      (f"v_cmp_eq_u32 vcc, 0, v{vT+1}", None), (f"v_mov_b32 v{vT+1}, s2", None), (f"v_mov_b32 v{vT+2}, 1", None),
                      (f"v_cndmask_b32 v{vT}, v{vT}, v{vT+1}, vcc", None),
                      (f"buffer_store_byte v{vT+2}, v{vT}, {S(rF)}, 0 offen sc1", 'flag')]
        if ks == 24:
            extra += [(f"v_lshlrev_b32 v{vT}, 2, v{vL}", None), (f"buffer_load_dword v{vT+1}, v{vT}, {S(rF)}, 0 offen sc1", 'poll')]
        if ks == 29:
            extra += [('WAITPOLL', None)]
            extra += [(x, 'epi') for x in epi_loads(role)]
        a.wait(lg=f'r{ks}')
        gaps = [[] for _ in range(10)]
        rd = [(x, f'r{ks+1}') for x in reads(role, ks+1)] if ks < 39 else []
        g0 = 0
        if s == 3 and ks < 39:
            gaps[0].append(('BAR', f'c{c+1}'))
        for i, x in enumerate(rd):
            gaps[(i*6)//len(rd)].append(x)
        dm = pend_dma[:per] if pend_dma else []
        pend_dma = pend_dma[per:] if pend_dma else []
        rest = dm + extra
        for lst in (dm, extra):
            n = len(lst)
            for i, x in enumerate(lst):
                gaps[1 + (i*9)//n].append(x)
        for i in range(10):
            j, m = i // 2, i % 2
            acc = accg(j) + 16*m
            xf = V(XF + b*20 + j*4); wf = V(WF + b*8 + m*4)
            cin = "0" if ks == 0 else V(acc, 16)
            if role == 'glu':
                a(f"v_mfma_f32_32x32x16_bf16 {V(acc,16)}, {wf}, {xf}, {cin}")
            else:
                a(f"v_mfma_f32_32x32x16_bf16 {V(acc,16)}, {xf}, {wf}, {cin}")
            for (x, tag) in gaps[i]:
                if x == 'BAR':
                    a.wait(vm=[tag, 'early'] if c+1 == 3 else tag)
                    a("s_barrier")
                elif x == 'WAITVM':
                    a.wait(vm=tag)
                elif x == 'WAITPOLL':
                    a.wait(vm='poll')
                    a(f"L_chk_{role}:")
                    a(f"v_and_b32 v{vT+1}, 0x01010101, v{vT+1}\nv_cmp_ne_u32 vcc, 0x01010101, v{vT+1}\ns_cbranch_vccnz L_slow_{role}\nL_go_{role}:")
                else:
                    a(x, tag=tag)
    return

def slowpath(a, role):
    st = a.state()
    a(f"L_slow_{role}:\ns_add_u32 s{sSpin}, s{sSpin}, 1\ns_cmp_gt_u32 s{sSpin}, {SPINMAX}\ns_cbranch_scc1 L_go_{role}\ns_sleep 4\nbuffer_load_dword v{vT+1}, v{vT}, {S(rF)}, 0 offen sc1\ns_waitcnt vmcnt(0)\ns_branch L_chk_{role}")
    a.set_state(st)

def epi_loads(role):
    L = []
    L += [f"s_mul_i32 s{sT0}, s{sPair}, {13*256}", f"s_add_u32 s{sT0}, s{sT0}, {SPART}"]
    for i in range(10):
        L.append(f"buffer_load_dword a{aSP+i}, v{vT}, {S(rM)}, s{sT0} offen offset:{i*256} sc1")
    L += [f"s_mul_i32 s{sT1}, s{sRB}, {160*16}", f"s_add_u32 s{sT1}, s{sT1}, {STATS}"]
    if role == 'glu':
        L += [f"v_and_b32 v{vT+2}, 31, v{vL}", f"v_lshlrev_b32 v{vT+2}, 4, v{vT+2}"]
        for j in range(5):
            L.append(f"buffer_load_dwordx4 {A(aST+4*j)}, v{vT+2}, {S(rM)}, s{sT1} offen offset:{j*512} sc1")
    else:
        L += [f"v_lshlrev_b32 v{vT+2}, 4, v{vL}"]
        for j in range(3):
            L.append(f"buffer_load_dwordx4 {A(aST+4*j)}, v{vT+2}, {S(rM)}, s{sT1} offen offset:{j*1024} sc1")
    return L

def sum_spart(a, d, t):
    a(f"v_accvgpr_read_b32 v{d}, a{aSP}")
    for i in range(1, 10):
        a(f"v_accvgpr_read_b32 v{t+(i&1)}, a{aSP+i}\nv_add_f32 v{d}, v{d}, v{t+(i&1)}")

def epilogue_glu(a):
    a.wait(vm='epi')
    vSG = XF
    vRC = XF + 32
    vO = 212
    vAd = 228
    sum_spart(a, vS0, vS0+2)
    a(f"s_lshl_b32 s{sT0}, s{sW}, 8\ns_add_u32 s{sT0}, s{sT0}, {XB+20480}")
    a(f"v_add_u32 v{vT}, s{sT0}, v{vT}")
    a(f"ds_write_b32 v{vT}, v{vS0}", tag='sw')
    a(f"v_lshrrev_b32 v{vT+1}, 5, v{vL}\nv_lshlrev_b32 v{vT+2}, 4, v{vT+1}\nv_add_u32 v{vT+2}, s{sT0}, v{vT+2}")
    for i in range(20):
        a(f"v_accvgpr_read_b32 v{vRC+i}, a{aST+i}")
    a.wait(lg='sw')
    for m in range(2):
        for q in range(4):
            a(f"ds_read_b128 {V(vSG+16*m+4*q)}, v{vT+2} offset:{m*128+q*32}", tag='sr')
    a(f"v_and_b32 v{vT+3}, 15, v{vL}\nv_lshlrev_b32 v{vT+3}, 4, v{vT+3}\nv_lshl_add_u32 v{vT+3}, v{vT+1}, 9, v{vT+3}")
    a(f"v_bfe_u32 v{vT+4}, v{vL}, 4, 1\nv_lshl_add_u32 v{vAd}, v{vT+4}, 10, v{vT+3}")
    a(f"s_lshl_b32 s{sT2}, s{sPair}, 12\ns_cmp_ge_u32 s{sPair}, 54\ns_cselect_b32 s{sT2}, {OOB}, s{sT2}")
    a.wait(lg='sr')
    for j in range(5):
        rc = vRC + 4*j
        o = vO + (j & 1)*8
        a(f"s_mul_i32 s{sT0}, s{sRB}, 5\ns_add_u32 s{sT0}, s{sT0}, {j}\ns_lshr_b32 s{sT1}, s{sT0}, 1\ns_mul_i32 s{sT1}, s{sT1}, {94*4096}")
        a(f"s_and_b32 s{sT0}, s{sT0}, 1\ns_lshl_b32 s{sT0}, s{sT0}, 11\ns_add_u32 s{sT1}, s{sT1}, s{sT0}\ns_add_u32 s{sT1}, s{sT1}, s{sT2}")
        for half in range(2):
            ps = range(half*4, half*4+4)
            g = lambda p: f"v[{accg(j)+2*p}:{accg(j)+2*p+1}]"
            u = lambda p: f"v[{accu(j)+2*p}:{accu(j)+2*p+1}]"
            rc01 = f"v[{rc}:{rc+1}]"; rc23 = f"v[{rc+2}:{rc+3}]"
            for p in ps: a(f"v_pk_fma_f32 {g(p)}, v[{vSG+2*p}:{vSG+2*p+1}], {rc01}, {g(p)} op_sel_hi:[1,0,1]")
            for p in ps: a(f"v_pk_mul_f32 {g(p)}, {g(p)}, {rc01} op_sel:[0,1] op_sel_hi:[1,1]")
            for p in ps:
                a(f"v_exp_f32 v{accg(j)+2*p}, v{accg(j)+2*p}\nv_exp_f32 v{accg(j)+2*p+1}, v{accg(j)+2*p+1}")
            for p in ps: a(f"v_pk_fma_f32 {u(p)}, v[{vSG+16+2*p}:{vSG+16+2*p+1}], {rc01}, {u(p)} op_sel_hi:[1,0,1]")
            for p in ps: a(f"v_pk_fma_f32 {g(p)}, {g(p)}, {rc23}, {rc23} op_sel_hi:[1,0,0]")
            for p in ps:
                a(f"v_rcp_f32 v{accg(j)+2*p}, v{accg(j)+2*p}\nv_rcp_f32 v{accg(j)+2*p+1}, v{accg(j)+2*p+1}")
            for p in ps: a(f"v_pk_mul_f32 {u(p)}, {u(p)}, {g(p)}")
            for p in ps: a(f"v_cvt_pk_bf16_f32 v{o+p}, v{accu(j)+2*p}, v{accu(j)+2*p+1}")
            a(f"buffer_store_dwordx4 {V(o+half*4)}, v{vAd}, {S(rH)}, s{sT1} offen offset:{half*256} {HST}", tag='hst')

def epilogue_ssm(a):
    a.wait(vm='epi')
    lam, cc, l40, l80, l160, l320 = [vLAM + 2*i for i in range(6)]
    vSre = XF; vSim = XF + 1
    vG = XF + 2
    vRT = XF + 12
    vE = XF + 28
    vX = 212
    P = lambda r: f"v[{r}:{r+1}]"
    sum_spart(a, vSre, vS0)
    a(f"v_mov_b32 v{vSim}, v{vSre}\nv_permlane32_swap_b32 v{vSre}, v{vSim}")
    a(f"s_lshl_b32 s{sT0}, s{sW}, 11\ns_add_u32 s{sT0}, s{sT0}, {XB+20480}")
    for j in range(3):
        t, sg, ad, r, nm = vX, vX+1, vX+2, vX+3, vX+4
        a(f"v_add_u32 v{t}, {64*j}, v{vL}\nv_mul_u32_u24 v{sg}, 1639, v{t}\nv_lshrrev_b32 v{sg}, 16, v{sg}")
        a(f"v_add_u32 v{ad}, 1, v{sg}\nv_lshrrev_b32 v{ad}, 1, v{ad}\nv_mul_u32_u24 v{ad}, 40, v{ad}\nv_sub_u32 v{ad}, v{t}, v{ad}")
        a(f"v_lshlrev_b32 v{ad}, 4, v{ad}\nv_and_b32 v{sg}, 1, v{sg}\nv_lshl_add_u32 v{ad}, v{sg}, 2, v{ad}\nv_add_u32 v{ad}, s{sT0}, v{ad}")
        a(f"v_accvgpr_read_b32 v{r}, a{aST+4*j+3}\nv_accvgpr_read_b32 v{nm}, a{aST+4*j}\nv_mul_f32 v{nm}, v{nm}, v{r}")
        a(f"ds_write2_b32 v{ad}, v{r}, v{nm} offset0:0 offset1:2", tag='sw')
    vRA = vX + 5
    a(f"v_lshrrev_b32 v{vRA}, 5, v{vL}\nv_mul_u32_u24 v{vRA}, 640, v{vRA}\nv_add_u32 v{vRA}, s{sT0}, v{vRA}")
    a.wait(lg='sw')
    re = lambda i: accg(i // 8) + 2*(i % 8)
    im = lambda i: accu(i // 8) + 2*(i % 8)
    for i in range(3):
        a(f"ds_read_b128 {V(vRT+4*i)}, v{vRA} offset:{16*i}", tag=f't{i}')
    gr, gi, ar, ai = vG, vG+2, vG+4, vG+6
    def ufix(i):
        rt = vRT + 4*(i % 4)
        a.wait(lg=f't{i}')
        a(f"v_pk_mul_f32 {P(re(i))}, {P(re(i))}, {P(rt)}\nv_pk_mul_f32 {P(im(i))}, {P(im(i))}, {P(rt)}")
        a(f"v_pk_fma_f32 {P(re(i))}, {P(rt+2)}, {P(vSre)}, {P(re(i))} op_sel_hi:[1,0,1]")
        a(f"v_pk_fma_f32 {P(im(i))}, {P(rt+2)}, {P(vSre)}, {P(im(i))} op_sel:[0,1,0] op_sel_hi:[1,1,1]")
        if i + 3 < 40:
            a(f"ds_read_b128 {V(vRT+4*((i+3)%4))}, v{vRA} offset:{16*(i+3)}", tag=f't{i+3}')
    def step(pr, pi, ur, ui, dr, di):
        a(f"v_pk_fma_f32 {P(dr)}, {P(pr)}, {P(lam)}, {P(ur)} op_sel_hi:[1,0,1]")
        a(f"v_pk_fma_f32 {P(di)}, {P(pi)}, {P(lam)}, {P(ui)} op_sel_hi:[1,0,1]")
        a(f"v_pk_fma_f32 {P(dr)}, {P(pi)}, {P(lam)}, {P(dr)} op_sel:[0,1,0] op_sel_hi:[1,1,1] neg_lo:[0,1,0] neg_hi:[0,1,0]")
        a(f"v_pk_fma_f32 {P(di)}, {P(pr)}, {P(lam)}, {P(di)} op_sel:[0,1,0] op_sel_hi:[1,1,1]")
    ufix(0)
    cur = (re(0), im(0))
    for i in range(1, 40):
        ufix(i)
        nxt = (gr, gi) if cur != (gr, gi) else (ar, ai)
        step(cur[0], cur[1], re(i), im(i), nxt[0], nxt[1])
        cur = nxt
    e0, e1, eh, eo, ef = vX, vX+2, vX+6, vX+8, vX+12
    a(f"v_mov_b32 v{e0}, v{cur[0]}\nv_mov_b32 v{e0+1}, v{cur[1]}\nv_mov_b32 v{e1}, v{cur[0]+1}\nv_mov_b32 v{e1+1}, v{cur[1]+1}")
    for x in cmul_add(eh, e0, l40, e1): a(x)
    a(f"v_mov_b32 v{eo}, v{eh}\nv_mov_b32 v{eo+1}, v{eh+1}")
    a(f"v_permlane32_swap_b32 v{eh}, v{eo}\nv_permlane32_swap_b32 v{eh+1}, v{eo+1}")
    for x in cmul_add(ef, eh, l80, eo): a(x)
    a(f"v_mov_b32 v{ef+2}, {MAGIC}\nv_mov_b32 v{ef+3}, 0")
    vPA = vX + 10
    a(f"v_lshlrev_b32 v{vPA}, 4, v{vL}\nv_mov_b32 v{vPA+1}, {OOB}\nv_cmp_gt_u32 vcc, 32, v{vL}\nv_cndmask_b32 v{vPA}, v{vPA+1}, v{vPA}, vcc")
    a(f"s_sub_u32 s{sT0}, s{sPair}, 56\ns_mul_i32 s{sT0}, s{sT0}, 13\ns_add_u32 s{sT1}, s{sT0}, s{sRB}\ns_lshl_b32 s{sT1}, s{sT1}, 9\ns_add_u32 s{sT1}, s{sT1}, {EOFF}")
    a(f"buffer_store_dwordx4 {V(ef)}, v{vPA}, {S(rM)}, s{sT1} offen sc1", tag='epub')
    stamp(a, 3, vS0)
    vA6 = vRT; vK6 = vRT + 6
    a(f"s_lshl_b32 s{sT0}, s{sT0}, 9\ns_add_u32 s{sT0}, s{sT0}, {EOFF}")
    a(f"v_lshrrev_b32 v{vPA}, 5, v{vL}\nv_sub_u32 v{vPA}, s{sRB}, v{vPA}\nv_and_b32 v{vS0}, 31, v{vL}\nv_lshlrev_b32 v{vS0}, 4, v{vS0}\nv_mov_b32 v{vS0+2}, {MAGIC}")
    for m in range(6):
        a(f"v_add_u32 v{vS0+1}, {-(1+2*m)}, v{vPA}\nv_cmp_le_i32 vcc, 0, v{vS0+1}\nv_lshl_add_u32 v{vS0+1}, v{vS0+1}, 9, v{vS0}")
        a(f"v_cndmask_b32 v{vA6+m}, v{vPA+1}, v{vS0+1}, vcc\nv_cndmask_b32 v{vK6+m}, 0, v{vS0+2}, vcc")
    def polls():
        for m in range(6):
            a(f"buffer_load_dwordx4 {V(vE+4*m)}, v{vA6+m}, {S(rM)}, s{sT0} offen sc1", tag='ep')
    for i in range(40):
        t = gr if i & 1 else gi
        a(f"v_pk_mul_f32 {P(t)}, {P(im(i))}, {P(cc)} op_sel:[0,1] op_sel_hi:[1,1]")
        a(f"v_pk_mul_f32 {P(im(i))}, {P(im(i))}, {P(cc)} op_sel_hi:[1,0]")
        a(f"v_pk_fma_f32 {P(im(i))}, {P(re(i))}, {P(cc)}, {P(im(i))} op_sel:[0,1,0] op_sel_hi:[1,1,1]")
        a(f"v_pk_fma_f32 {P(re(i))}, {P(re(i))}, {P(cc)}, {P(t)} op_sel_hi:[1,0,1] neg_lo:[0,0,1] neg_hi:[0,0,1]")
    a("L_epoll:")
    polls()
    a("s_waitcnt vmcnt(0)")
    a(f"v_xor_b32 v{vS0}, v{vE+2}, v{vK6}")
    for m in range(1, 6):
        a(f"v_xor_b32 v{vS0+1}, v{vE+4*m+2}, v{vK6+m}\nv_or_b32 v{vS0}, v{vS0}, v{vS0+1}")
    a(f"s_add_u32 s{sSpin}, s{sSpin}, 1\ns_cmp_gt_u32 s{sSpin}, {SPINMAX}\ns_cbranch_scc1 L_ego")
    a(f"v_cmp_ne_u32 vcc, 0, v{vS0}\ns_cbranch_vccnz L_epoll\nL_ego:")
    stamp(a, 4, vS0)
    cur = vE + 20
    for m in range(4, -1, -1):
        for x in cmul_add(vE+4*m, cur, l320, vE+4*m): a(x)
        cur = vE + 4*m
    g0, g1 = ar, ai
    a(f"v_mov_b32 v{g1}, v{cur}\nv_mov_b32 v{g1+1}, v{cur+1}")
    a(f"v_permlane32_swap_b32 v{cur}, v{g1}\nv_permlane32_swap_b32 v{cur+1}, v{g1+1}")
    for x in cmul_add(g0, g1, l160, cur): a(x)
    for x in cmul_add(eh, g0, l80, eh): a(x)
    a(f"v_cmp_gt_u32 vcc, 32, v{vL}\nv_cndmask_b32 v{g0}, v{eh}, v{g0}, vcc\nv_cndmask_b32 v{g0+1}, v{eh+1}, v{g0+1}, vcc")
    for x in cmul_add(e0, g0, l40, e0): a(x)
    a(f"v_mov_b32 v{eo}, 0\nv_mov_b32 v{eo+1}, 0")
    for x in cmul_add(e1, g0, cc, eo): a(x)
    for x in cmul_add(eh, e0, cc, eo): a(x)
    a(f"v_mov_b32 v{gr}, v{e1}\nv_mov_b32 v{gr+1}, v{eh}\nv_mov_b32 v{gi}, v{e1+1}\nv_mov_b32 v{gi+1}, v{eh+1}")
    vTW, vTR, vHA = vX, vX+1, vX+2
    a(f"s_mul_i32 s{sT0}, s{sW}, 24576\ns_add_u32 s{sT0}, s{sT0}, {WB}")
    a(f"v_and_b32 v{vTW}, 31, v{vL}\nv_mul_u32_u24 v{vTW}, 336, v{vTW}\nv_lshrrev_b32 v{vTR}, 5, v{vL}\nv_mul_u32_u24 v{vTR}, 160, v{vTR}\nv_add3_u32 v{vTW}, v{vTW}, v{vTR}, s{sT0}")
    a(f"v_lshrrev_b32 v{vTR}, 4, v{vL}\nv_lshlrev_b32 v{vTR}, 3, v{vTR}\nv_bfe_u32 v{vHA}, v{vL}, 2, 2\nv_add_u32 v{vTR}, v{vTR}, v{vHA}\nv_mul_u32_u24 v{vTR}, 336, v{vTR}")
    a(f"v_and_b32 v{vHA}, 3, v{vL}\nv_lshlrev_b32 v{vHA}, 3, v{vHA}\nv_add3_u32 v{vTR}, v{vTR}, v{vHA}, s{sT0}\nv_lshlrev_b32 v{vHA}, 4, v{vL}")
    vPK = vRT
    cur = (gr, gi)
    for i in range(40):
        step(cur[0], cur[1], re(i), im(i), re(i), im(i))
        cur = (re(i), im(i))
        if i & 1:
            blk = i // 8
            pk = vPK + (blk & 1)*16 + (i % 8)//2
            for e in range(2):
                a(f"v_cvt_pk_bf16_f32 v{pk+4*e}, v{re(i-1)+e}, v{re(i)+e}")
                a(f"v_cvt_pk_bf16_f32 v{pk+8+4*e}, -v{im(i-1)+e}, -v{im(i)+e}")
            if i % 8 == 7:
                for comp in range(2):
                    for e in range(2):
                        a(f"ds_write_b128 v{vTW}, {V(vPK+(blk&1)*16+comp*8+e*4)} offset:{comp*32*336 + e*80 + blk*16}", tag='tw')
    a.wait(lg='tw')
    a(f"s_sub_u32 s{sT2}, s{sPair}, 56\ns_lshl_b32 s{sT2}, s{sT2}, 1\ns_add_u32 s{sT2}, s{sT2}, 54\ns_lshl_b32 s{sT2}, s{sT2}, 12")
    for q in range(10):
        for comp in range(2):
            d = 8*q + 4*comp
            off = comp*32*336 + q*32
            a(f"ds_read_b64_tr_b16 v[{d}:{d+1}], v{vTR} offset:{off}\nds_read_b64_tr_b16 v[{d+2}:{d+3}], v{vTR} offset:{off+4*336}", tag=f'f{q}')
        if q >= 2: hstore(a, q-2, vHA)
    hstore(a, 8, vHA); hstore(a, 9, vHA)

def hstore(a, q, vHA):
    a(f"s_mul_i32 s{sT0}, s{sRB}, 10\ns_add_u32 s{sT0}, s{sT0}, {q}\ns_lshr_b32 s{sT1}, s{sT0}, 2\ns_mul_i32 s{sT1}, s{sT1}, {94*4096}")
    a(f"s_and_b32 s{sT0}, s{sT0}, 3\ns_lshl_b32 s{sT0}, s{sT0}, 10\ns_add_u32 s{sT1}, s{sT1}, s{sT0}\ns_add_u32 s{sT1}, s{sT1}, s{sT2}\ns_add_u32 s{sT3}, s{sT1}, 4096")
    a.wait(lg=f'f{q}')
    a(f"buffer_store_dwordx4 {V(8*q)}, v{vHA}, {S(rH)}, s{sT1} offen {HST}", tag='hst')
    a(f"buffer_store_dwordx4 {V(8*q+4)}, v{vHA}, {S(rH)}, s{sT3} offen {HST}", tag='hst')

def stats_compute(a, vin, vt):
    a.wait(vm='st')
    x = vt
    for i in range(10):
        a(f"v_lshlrev_b32 v{x+2*i}, 16, v{vin+i}\nv_and_b32 v{x+2*i+1}, 0xffff0000, v{vin+i}")
    s = vt + 20
    P = lambda r: f"v[{r}:{r+1}]"
    a(f"v_pk_add_f32 {P(s)}, {P(x)}, {P(x+2)}")
    for i in range(2, 10): a(f"v_pk_add_f32 {P(s)}, {P(s)}, {P(x+2*i)}")
    a(f"v_add_f32 v{s}, v{s}, v{s+1}")
    reduce32(a, s, s+1)
    a(f"v_mul_f32 v{s}, {f2u(-1.0/640)}, v{s}")
    for i in range(10): a(f"v_pk_add_f32 {P(x+2*i)}, {P(x+2*i)}, {P(s)} op_sel_hi:[1,0]")
    q = vt + 22
    a(f"v_pk_mul_f32 {P(q)}, {P(x)}, {P(x)}")
    for i in range(1, 10): a(f"v_pk_fma_f32 {P(q)}, {P(x+2*i)}, {P(x+2*i)}, {P(q)}")
    a(f"v_add_f32 v{q}, v{q}, v{q+1}")
    reduce32(a, q, q+1)
    o = vt
    bf16_round(a, o, s)
    a(f"v_mul_f32 v{q}, {f2u(1.0/640)}, v{q}")
    bf16_round(a, q, q)
    a(f"v_add_f32 v{q}, {f2u(1e-5)}, v{q}")
    bf16_round(a, q, q)
    a(f"v_sqrt_f32 v{q}, v{q}")
    bf16_round(a, o+2, q)
    a(f"v_rcp_f32 v{o+3}, v{o+2}\nv_mul_f32 v{o+1}, {f2u(-LOG2E)}, v{o+3}")
    a(f"v_lshrrev_b32 v{o+4}, 1, v{vL}\nv_and_b32 v{o+5}, 31, v{vL}\nv_cmp_eq_u32 vcc, 0, v{o+5}\nv_mov_b32 v{o+5}, {OOB}\nv_cndmask_b32 v{o+4}, v{o+5}, v{o+4}, vcc")
    a(f"s_lshl_b32 s{sT0}, s2, 7\ns_lshl_b32 s{sT1}, s{sW}, 5\ns_add_u32 s{sT0}, s{sT0}, s{sT1}\ns_add_u32 s{sT0}, s{sT0}, {STATS}")
    a(f"buffer_store_dwordx4 {V(o)}, v{o+4}, {S(rM)}, s{sT0} offen sc1", tag='early')

def repack(a):
    DEPTH = 6
    sRW, sM = sPair, sXm
    a(f"s_lshl_b32 s{sRW}, s{sG}, 2\ns_add_u32 s{sRW}, s{sRW}, s{sW}\ns_lshl_b32 s{sM}, s{sW}, 15")
    stats_compute(a, 100, 120)
    a("s_waitcnt vmcnt(0)\ns_barrier")
    a(f"v_mov_b32 v{vT}, {OOB}\ns_lshl_b32 s{sT0}, s{sW}, 6\nv_or_b32 v{vT+1}, s{sT0}, v{vL}\nv_cmp_eq_u32 vcc, 0, v{vT+1}\nv_mov_b32 v{vT+1}, s2\nv_mov_b32 v{vT+2}, 1")
    a(f"v_cndmask_b32 v{vT}, v{vT}, v{vT+1}, vcc\nbuffer_store_byte v{vT+2}, v{vT}, {S(rF)}, 0 offen sc1")
    srd(a, rA, sWd, 1728*1280)
    srd(a, rB, sCre, 640*1280)
    srd(a, rX, sCim, 640*1280)
    vP, vZ, vRt, vRb, vSt = 0, 4, 8, 9, 11
    a(f"v_lshrrev_b32 v20, 3, v{vL}\nv_and_b32 v21, 7, v{vL}")
    for rg in range(4):
        a(f"v_add_u32 v22, {8*rg}, v20\nv_mul_u32_u24 v23, 1280, v22\nv_add_u32 v23, {-1024*rg}, v23\nv_lshl_add_u32 v{vP+rg}, v21, 4, v23")
        a(f"v_bfe_u32 v22, v22, 1, 3\nv_xor_b32 v22, v22, v21\nv_lshl_add_u32 v{vZ+rg}, v22, 4, v23")
    a(f"v_lshrrev_b32 v20, 4, v{vL}\nv_lshlrev_b32 v20, 3, v20\nv_bfe_u32 v21, v{vL}, 2, 2\nv_add_u32 v20, v20, v21\nv_lshlrev_b32 v20, 7, v20")
    a(f"v_and_b32 v21, 3, v{vL}\nv_lshlrev_b32 v21, 3, v21\nv_add3_u32 v{vRt}, v20, v21, s{sM}")
    a(f"v_and_b32 v20, 15, v{vL}\nv_lshrrev_b32 v21, 1, v20\nv_lshrrev_b32 v22, 4, v{vL}\nv_xor_b32 v21, v21, v22\nv_lshlrev_b32 v20, 7, v20\nv_add_u32 v20, s{sM}, v20")
    a(f"v_lshl_add_u32 v{vRb}, v21, 4, v20\nv_xor_b32 v21, 4, v21\nv_lshl_add_u32 v{vRb+1}, v21, 4, v20\nv_lshlrev_b32 v{vSt}, 4, v{vL}")
    pieces = [('w', i) for i in range(15)] + [('c', 0, i) for i in range(6)] + [('c', 1, i) for i in range(6)]
    def decode(p):
        a(f"s_add_u32 s{sT1}, s{sRW}, {36*p[-1]}\ns_mul_i32 s{sT0}, s{sT1}, 6554\ns_lshr_b32 s{sT0}, s{sT0}, 16\ns_mul_i32 s{sT2}, s{sT0}, 10\ns_sub_u32 s{sT1}, s{sT1}, s{sT2}")
    def issue(n):
        p = pieces[n]
        decode(p)
        a(f"s_mul_i32 s{sT2}, s{sT0}, {32*1280}\ns_lshl_b32 s{sT3}, s{sT1}, 7\ns_add_u32 s{sT2}, s{sT2}, s{sT3}\ns_add_u32 m0, s{sM}, {(n % 8)*4096}")
        r = rA if p[0] == 'w' else (rB if p[1] == 0 else rX)
        vv = vP if p[0] == 'w' else vZ
        for rg in range(4):
            a(f"buffer_load_dwordx4 v{vv+rg}, {S(r)}, s{sT2} offen offset:{rg*1024} lds", tag=f'p{n}')
    def finish(n):
        p = pieces[n]
        d = 32 + (n % 2)*16
        a.wait(vm=f'p{n}')
        for u in range(4):
            if p[0] == 'w':
                off = (n % 8)*4096 + u*32
                a(f"ds_read_b64_tr_b16 v[{d+4*u}:{d+4*u+1}], v{vRt} offset:{off}\nds_read_b64_tr_b16 v[{d+4*u+2}:{d+4*u+3}], v{vRt} offset:{off+512}", tag='rr')
            else:
                a(f"ds_read_b128 {V(d+4*u)}, v{vRb+(u&1)} offset:{(n % 8)*4096 + (u>>1)*2048}", tag='rr')
        decode(p)
        a.wait(lg='rr')
        for u in range(4):
            if p[0] == 'w':
                a(f"s_lshl_b32 s{sT2}, s{sT1}, 2\ns_add_u32 s{sT2}, s{sT2}, {u}\ns_mul_i32 s{sXo}, s{sT0}, 5120")
            else:
                a(f"s_lshl_b32 s{sT2}, s{sT0}, 1\ns_add_u32 s{sT2}, s{sT2}, {u>>1}\ns_mul_i32 s{sXo}, s{sT1}, {4*5120}\ns_add_u32 s{sXo}, s{sXo}, {(54+2*(u&1)+p[1])*5120}")
                a(f"s_cmp_ge_u32 s{sT0}, 20\ns_cselect_b32 s{sXo}, {OOB}, s{sXo}")
            a(f"s_mul_i32 s{sT3}, s{sT2}, 13\ns_lshr_b32 s{sT3}, s{sT3}, 6\ns_mul_i32 s{sT3}, s{sT3}, {94*5120-5120}\ns_lshl_b32 s{sT2}, s{sT2}, 10")
            a(f"s_add_u32 s{sT3}, s{sT3}, s{sT2}\ns_add_u32 s{sT3}, s{sT3}, s{sXo}")
            a(f"buffer_store_dwordx4 {V(d+4*u)}, v{vSt}, {S(rM)}, s{sT3} offen {HST}", tag='ws')
    for n in range(DEPTH): issue(n)
    for n in range(len(pieces)):
        if n + DEPTH < len(pieces): issue(n + DEPTH)
        finish(n)

def kernel1():
    a = Asm()
    a(f"s_cmp_ge_u32 s2, 256\ns_cbranch_scc1 L_end1")
    a(f"s_load_dwordx16 s[8:23], s[0:1], 0\ns_load_dwordx16 s[24:39], s[0:1], 64")
    code_prefetch(a, CODE1, 0, vT, 'L_end1')
    a(f"v_and_b32 v{vL}, 63, v0\nv_lshrrev_b32 v1, 6, v0\nv_readfirstlane_b32 s{sW}, v1")
    a(f"""s_mov_b32 s{sSpin}, 0
s_and_b32 s{sT0}, s2, 7
s_lshr_b32 s{sT1}, s2, 3
s_mul_i32 s{sT2}, s{sT0}, 31
s_add_u32 s{sT2}, s{sT2}, s{sT1}
s_mul_i32 s{sG}, s{sT2}, 9363
s_lshr_b32 s{sG}, s{sG}, 16
s_mul_i32 s{sRB}, s{sG}, 7
s_sub_u32 s{sRB}, s{sT2}, s{sRB}
s_sub_u32 s{sT3}, s{sT2}, 133
s_mul_i32 s{sCC}, s{sT3}, 10923
s_lshr_b32 s{sCC}, s{sCC}, 16
s_mul_i32 s{sXo}, s{sCC}, 6
s_sub_u32 s{sXo}, s{sT3}, s{sXo}
s_add_u32 s{sXo}, s{sXo}, 7
s_sub_u32 s{sCC}, 18, s{sCC}
s_cmp_ge_u32 s{sT2}, 133
s_cselect_b32 s{sG}, s{sCC}, s{sG}
s_cselect_b32 s{sRB}, s{sXo}, s{sRB}
s_and_b32 s{sKind}, s{sG}, 3
s_cmp_eq_u32 s{sKind}, 2
s_cselect_b32 s{sKind}, 1, 0
s_cmp_eq_u32 s{sT2}, 247
s_cselect_b32 s{sKind}, 2, s{sKind}
s_cselect_b32 s{sG}, 8, s{sG}
s_cmp_eq_u32 s{sT1}, 31
s_cselect_b32 s{sKind}, 2, s{sKind}
s_cselect_b32 s{sG}, s{sT0}, s{sG}
s_sub_u32 s{sCC}, s{sRB}, 10
s_cmp_ge_u32 s{sRB}, 10
s_cselect_b32 s{sCC}, s{sCC}, s{sRB}""")
    a("s_waitcnt lgkmcnt(0)")
    srd(a, rX, sX, 2048*1280)
    a(f"s_lshl_b32 s{sT0}, s2, 2\ns_add_u32 s{sT0}, s{sT0}, s{sW}\ns_mul_i32 s{sT0}, s{sT0}, 2560")
    a(f"v_lshrrev_b32 v2, 5, v{vL}\nv_mul_u32_u24 v2, 1280, v2\nv_and_b32 v3, 31, v{vL}\nv_lshl_add_u32 v2, v3, 3, v2")
    for i in range(5):
        a(f"buffer_load_dwordx2 v[{100+2*i}:{101+2*i}], v2, {S(rX)}, s{sT0} offen offset:{i*256}", tag='st')
    srd(a, rH, sWs, H_SIZE)
    a(f"s_add_u32 s{rM}, s{sWs}, {MISC}\ns_addc_u32 s{rM+1}, s{sWs+1}, 0\ns_mov_b32 s{rM+2}, {MISC_SIZE}\ns_mov_b32 s{rM+3}, 0x20000")
    srd(a, rF, sDbg, 256)
    if STAMP:
        a(f"s_lshl_b32 s82, s2, 2\ns_add_u32 s82, s82, s{sW}\ns_lshl_b32 s82, s82, 6\ns_add_u32 s82, s82, {STAMPS}")
        stamp(a, 0, vT+2)
    a(f"s_cmp_eq_u32 s{sKind}, 2\ns_cbranch_scc1 L_repack")
    a(f"s_mul_i32 s{sXm}, s{sW}, 5120")
    a(f"v_lshrrev_b32 v2, 3, v{vL}\nv_and_b32 v3, 7, v{vL}")
    a(f"s_lshl_b32 s{sT0}, s{sW}, 2\nv_lshrrev_b32 v4, 1, v2\nv_add_u32 v4, s{sT0}, v4\nv_and_b32 v4, 7, v4\nv_xor_b32 v4, v4, v3\nv_lshlrev_b32 v4, 4, v4")
    a(f"s_mul_i32 s{sT1}, s{sRB}, 160")
    a(f"v_bfe_u32 v5, v{vL}, 3, 2\nv_mul_u32_u24 v5, 5120, v5\nv_and_b32 v6, 7, v{vL}\nv_lshl_add_u32 v5, v6, 7, v5")
    a(f"v_bfe_u32 v6, v{vL}, 1, 3\nv_lshrrev_b32 v7, 5, v{vL}\nv_xor_b32 v6, v6, v7")
    for s in range(4):
        a(f"v_xor_b32 v8, {2*s}, v6\nv_lshl_add_u32 v{vXR+s}, v8, 4, v5")
    st0 = a.state()
    a(f"s_cmp_eq_u32 s{sKind}, 1\ns_cbranch_scc1 L_ssm")
    a(f"s_add_u32 s{sT0}, s{sG}, 2\ns_lshr_b32 s{sT0}, s{sT0}, 2\ns_sub_u32 s{sG}, s{sG}, s{sT0}\ns_lshl_b32 s{sPair}, s{sG}, 2\ns_add_u32 s{sPair}, s{sPair}, s{sW}")
    a(f"s_lshl_b32 s{sT0}, s{sW}, 3\ns_add_u32 s{sT1}, s{sT1}, s{sT0}\nv_add_u32 v8, s{sT1}, v2\nv_mul_u32_u24 v8, 1280, v8\nv_add_u32 v{vXD}, v8, v4")
    for j in range(1, 5):
        a(f"v_add_u32 v{vXD+j}, {j*32*1280 - (j*1024 if j < 4 else 0)}, v{vXD}")
    a(f"s_bitcmp1_b32 s{sW}, 0\ns_cselect_b32 s{rA}, s{sWu}, s{sWg}\ns_cselect_b32 s{rA+1}, s{sWu+1}, s{sWg+1}\ns_mov_b32 s{rA+2}, {640*3456}\ns_mov_b32 s{rA+3}, 0x20000")
    a(f"s_lshr_b32 s{sT0}, s{sW}, 1\ns_lshl_b32 s{sT2}, s{sG}, 1\ns_add_u32 s{sT2}, s{sT2}, s{sT0}\ns_lshl_b32 s{sT3}, s{sT2}, 7\ns_cmp_ge_u32 s{sT2}, 27\ns_cselect_b32 s{sT3}, {OOB}, s{sT3}")
    a(f"v_bfe_u32 v8, v{vL}, 2, 3\nv_mul_u32_u24 v8, 3456, v8\nv_lshl_add_u32 v8, v7, 6, v8\nv_and_b32 v9, 3, v{vL}\nv_lshlrev_b32 v10, 4, v9\nv_add3_u32 v{vWD}, v8, v10, s{sT3}")
    for j in range(1, 4):
        a(f"v_add_u32 v{vWD+j}, {j*(8*3456-1024)}, v{vWD}")
    a(f"s_mul_i32 s{sWm}, s{sT0}, 49152\ns_and_b32 s{sT2}, s{sW}, 1\ns_lshl_b32 s{sT3}, s{sT2}, 13\ns_add_u32 s{sT3}, s{sT3}, s{sWm}\ns_lshl_b32 s{sT2}, s{sT2}, 9\ns_add_u32 s{sT2}, s{sT2}, s{sWm}\ns_add_u32 s{sT2}, s{sT2}, {WB}\ns_add_u32 s{sWm}, s{sT3}, {WB}")
    for c in range(2):
        for x in chunk_offsets('glu'): a(x)
        for x in dma_chunk('glu', c): a(x, tag=f'c{c}')
    a(f"v_bfe_u32 v8, v{vL}, 2, 2\nv_lshlrev_b32 v8, 6, v8\nv_lshl_add_u32 v8, v7, 10, v8\nv_and_b32 v10, 1, v{vL}\nv_lshl_add_u32 v8, v10, 5, v8")
    a(f"v_bfe_u32 v10, v{vL}, 4, 1\nv_lshl_add_u32 v8, v10, 4, v8\nv_bfe_u32 v10, v{vL}, 1, 1\nv_lshl_add_u32 v8, v10, 3, v8\nv_add_u32 v{vWR}, s{sT2}, v8")
    stats_compute(a, 100, 120)
    stamp(a, 1, vT+2)
    mainloop(a, 'glu')
    stamp(a, 2, vS0)
    epilogue_glu(a)
    stamp(a, 5, vS0)
    if STAMP:
        a("s_waitcnt vmcnt(0)"); stamp(a, 6, vS0)
    a("s_endpgm")
    slowpath(a, 'glu')
    a.set_state(st0)
    a("L_ssm:")
    a(f"s_lshr_b32 s{sG}, s{sG}, 2\ns_lshl_b32 s{sPair}, s{sG}, 2\ns_add_u32 s{sPair}, s{sPair}, s{sW}")
    a(f"s_lshl_b32 s{sT0}, s{sW}, 1\ns_add_u32 s{sT1}, s{sT1}, s{sT0}\nv_mul_u32_u24 v8, 80, v7\nv_and_b32 v9, 1, v2\nv_mul_u32_u24 v9, 40, v9\nv_bfe_u32 v10, v2, 1, 1")
    a(f"v_add3_u32 v8, v8, v9, v10\nv_add_u32 v8, s{sT1}, v8\nv_mul_u32_u24 v8, 1280, v8\nv_add_u32 v{vXD}, v8, v4")
    for j in range(1, 5):
        a(f"v_add_u32 v{vXD+j}, {j*8*1280 - (j*1024 if j < 4 else 0)}, v{vXD}")
    srd(a, rA, sBre, 640*1280)
    srd(a, rB, sBim, 640*1280)
    a(f"s_lshl_b32 s{sT0}, s{sPair}, 5")
    for rg in range(4):
        a(f"v_add_u32 v8, {8*rg}, v2\nv_bfe_u32 v9, v8, 1, 3\nv_xor_b32 v9, v9, v3\nv_add_u32 v8, s{sT0}, v8\nv_mul_u32_u24 v8, 1280, v8\nv_add_u32 v8, {-1024*rg}, v8\nv_lshl_add_u32 v{vWD+rg}, v9, 4, v8")
    a(f"s_mul_i32 s{sWm}, s{sW}, 24576\ns_add_u32 s{sWm}, s{sWm}, {WB}")
    for c in range(2):
        for x in chunk_offsets('ssm'): a(x)
        for x in dma_chunk('ssm', c): a(x, tag=f'c{c}')
    a(f"v_and_b32 v8, 31, v{vL}\nv_lshlrev_b32 v9, 7, v8\nv_add_u32 v9, s{sWm}, v9")
    for s in range(4):
        a(f"v_xor_b32 v10, {2*s}, v6\nv_lshl_add_u32 v{vWR+s}, v10, 4, v9")
    a(f"v_add_u32 v8, s{sT0}, v8\nv_lshlrev_b32 v8, 1, v8")
    for i, p in enumerate((sLre, sLim, sLdt)):
        a(f"global_load_ushort v{vLAM+i}, v8, s[{p}:{p+1}]", tag='lam')
    a(f"v_mov_b32 v12, 0\nv_mov_b32 v13, 0\nv_lshlrev_b32 v9, 3, v{vL}")
    a(f"s_mul_i32 s{sT0}, s{sPair}, 13\ns_add_u32 s{sT0}, s{sT0}, s{sRB}\ns_lshl_b32 s{sT0}, s{sT0}, 9\ns_add_u32 s{sT0}, s{sT0}, {EOFF}")
    a(f"buffer_store_dwordx2 v[12:13], v9, {S(rM)}, s{sT0} offen sc1", tag='early')
    a(f"s_add_u32 s{sPair}, s{sPair}, 56")
    stats_compute(a, 100, 120)
    stamp(a, 1, vT+2)
    mainloop(a, 'ssm')
    stamp(a, 2, vS0)
    epilogue_ssm(a)
    stamp(a, 5, vS0)
    if STAMP:
        a("s_waitcnt vmcnt(0)"); stamp(a, 6, vS0)
    a("s_endpgm")
    slowpath(a, 'ssm')
    a.set_state(st0)
    a("L_repack:")
    repack(a)
    stamp(a, 5, vS0)
    if STAMP:
        a("s_waitcnt vmcnt(0)"); stamp(a, 6, vS0)
    a("L_end1:")
    return a

def kernel2():
    a = Asm()
    DEPTH = 6
    sRT, sN8, sAo, sBo = sRB, sG, sXo, sWo
    rO = rA; rD = rB
    ACC2 = 0
    RING = 80
    def ring(st, i):
        return V(80 + st*36 + 4*i) if st < 4 else A((st-4)*36 + 4*i)
    vL2, vA, vB2 = 224, 225, 226
    vEA = 227
    vTt = 232
    aX, aD, aS = 80, 90, 100
    a(f"s_cmp_ge_u32 s2, 256\ns_cbranch_scc1 L_end2")
    a(f"s_load_dwordx16 s[8:23], s[0:1], 0\ns_load_dwordx16 s[24:39], s[0:1], 64")
    code_prefetch(a, CODE2, 0, vTt, 'L_end2')
    a(f"v_and_b32 v{vL2}, 63, v0\nv_lshrrev_b32 v1, 6, v0\nv_readfirstlane_b32 s{sW}, v1")
    a(f"s_and_b32 s{sT0}, s2, 7\ns_lshl_b32 s{sT0}, s{sT0}, 2\ns_bfe_u32 s{sT1}, s2, 0x20003\ns_add_u32 s{sRT}, s{sT0}, s{sT1}\ns_lshr_b32 s{sN8}, s2, 5")
    a(f"s_mul_i32 s{sAo}, s{sRT}, 94\ns_add_u32 s{sAo}, s{sAo}, s{sW}\ns_lshl_b32 s{sAo}, s{sAo}, 12")
    a(f"s_mul_i32 s{sBo}, s{sN8}, 94\ns_add_u32 s{sBo}, s{sBo}, s{sW}\ns_mul_i32 s{sBo}, s{sBo}, 5120")
    a(f"v_lshlrev_b32 v{vA}, 4, v{vL2}\nv_add_u32 v{vB2}, 4096, v{vA}")
    a("s_waitcnt lgkmcnt(0)")
    srd(a, rH, sWs, H_SIZE)
    a(f"s_add_u32 s{rM}, s{sWs}, {MISC}\ns_addc_u32 s{rM+1}, s{sWs+1}, 0\ns_mov_b32 s{rM+2}, {MISC_SIZE}\ns_mov_b32 s{rM+3}, 0x20000")
    if STAMP:
        a(f"s_lshl_b32 s82, s2, 2\ns_add_u32 s82, s82, s{sW}\ns_lshl_b32 s82, s82, 6\ns_add_u32 s82, s82, {STAMPS}")
        stamp(a, 8, vTt+2)
    def loads(i):
        st = i % DEPTH
        L = []
        if i == 23:
            L += [f"s_cmp_ge_u32 s{sW}, 2", f"s_cselect_b32 s{sAo}, {OOB}, s{sAo}", f"s_cselect_b32 s{sBo}, {OOB}, s{sBo}"]
        for q in range(4):
            L.append(f"buffer_load_dwordx4 {ring(st, q)}, v{vA}, {S(rH)}, s{sAo} offen offset:{q*1024}")
        for q in range(4):
            L.append(f"buffer_load_dwordx4 {ring(st, 4+q)}, v{vA}, {S(rM)}, s{sBo} offen offset:{q*1024}")
        L.append(f"buffer_load_dwordx4 {ring(st, 8)}, v{vB2}, {S(rM)}, s{sBo} offen")
        L += [f"s_add_u32 s{sAo}, s{sAo}, {4*4096}", f"s_add_u32 s{sBo}, s{sBo}, {4*5120}"]
        return L
    for i in range(DEPTH-1):
        for x in loads(i): a(x, tag=f'k{i}')
    srd(a, rX, sX, 2048*1280)
    srd(a, rD, sD, 1280)
    srd(a, rO, sOut, 2048*2560)
    a(f"s_lshl_b32 s{sT0}, s{sRT}, 6\ns_mul_i32 s{sT1}, s{sN8}, 20\ns_mov_b32 s{sT2}, {STATS}")
    vLA = vTt + 10
    for i in range(5):
        f, r, c = vTt+2, vTt+3, vTt+4
        a(f"v_add_u32 v{f}, {256*i}, v0\nv_mul_u32_u24 v{r}, 3277, v{f}\nv_lshrrev_b32 v{r}, 16, v{r}\nv_mul_u32_u24 v{c}, 20, v{r}\nv_sub_u32 v{c}, v{f}, v{c}")
        a(f"v_mul_u32_u24 v{f}, 336, v{r}\nv_lshl_add_u32 v{vLA+i}, v{c}, 4, v{f}")
        a(f"v_add_u32 v{r}, s{sT0}, v{r}\nv_add_u32 v{c}, s{sT1}, v{c}\nv_mul_u32_u24 v{f}, 160, v{r}\nv_add_u32 v{f}, v{f}, v{c}\nv_lshlrev_b32 v{vEA+i}, 4, v{f}")
        a(f"v_lshlrev_b32 v{f}, 3, v{f}\nv_lshlrev_b32 v{c}, 3, v{c}\nv_lshlrev_b32 v{r}, 4, v{r}")
        a(f"buffer_load_dwordx2 {A(aX+2*i,2)}, v{f}, {S(rX)}, 0 offen", tag='ep')
        a(f"buffer_load_dwordx2 {A(aD+2*i,2)}, v{c}, {S(rD)}, 0 offen", tag='ep')
        a(f"buffer_load_dwordx4 {A(aS+4*i)}, v{r}, {S(rM)}, s{sT2} offen", tag='ep')
    vLW = vTt + 15
    a(f"s_mul_i32 s{sT0}, s{sW}, 21504\nv_and_b32 v{vLW}, 15, v{vL2}\nv_mul_u32_u24 v{vLW}, 336, v{vLW}\nv_and_b32 v{vTt+2}, 48, v{vL2}\nv_add3_u32 v{vLW}, v{vLW}, v{vTt+2}, s{sT0}")
    for i in range(24):
        st = i % DEPTH
        nx = i + DEPTH - 1
        ld = [(x, f'k{nx}') for x in loads(nx)] if nx < 24 else []
        a.wait(vm=f'k{i}')
        k = 0
        for mt in range(4):
            for nt in range(5):
                acc = V(ACC2 + (mt*5+nt)*4)
                a(f"v_mfma_f32_16x16x32_bf16 {acc}, {ring(st, 4+nt)}, {ring(st, mt)}, {'0' if i == 0 else acc}")
                if k < len(ld):
                    a(ld[k][0], tag=ld[k][1])
                k += 1
    stamp(a, 9, vTt+2)
    for mt in range(4):
        for nt in range(5):
            a(f"ds_write_b128 v{vLW}, {V(ACC2+(mt*5+nt)*4)} offset:{mt*16*336 + nt*64}", tag='w')
    a.wait(vm='ep')
    for i in range(5):
        x, d, s = 100, 104, 108
        a(f"v_accvgpr_read_b32 v{x+1}, a{aX+2*i}\nv_accvgpr_read_b32 v{x+3}, a{aX+2*i+1}\nv_accvgpr_read_b32 v{d+1}, a{aD+2*i}\nv_accvgpr_read_b32 v{d+3}, a{aD+2*i+1}")
        a(f"v_accvgpr_read_b32 v{s}, a{aS+4*i}\nv_accvgpr_read_b32 v{s+1}, a{aS+4*i+3}")
        for r in (x, x+2, d, d+2):
            a(f"v_lshlrev_b32 v{r}, 16, v{r+1}\nv_and_b32 v{r+1}, 0xffff0000, v{r+1}")
        for h in range(2):
            o = 80 + 4*i + 2*h
            a(f"v_pk_add_f32 v[{o}:{o+1}], v[{x+2*h}:{x+2*h+1}], v[{s}:{s+1}] op_sel_hi:[1,0]")
            a(f"v_pk_mul_f32 v[{d+2*h}:{d+2*h+1}], v[{d+2*h}:{d+2*h+1}], v[{s}:{s+1}] op_sel:[0,1] op_sel_hi:[1,1]")
            a(f"v_pk_fma_f32 v[{o}:{o+1}], v[{o}:{o+1}], v[{d+2*h}:{d+2*h+1}], v[{x+2*h}:{x+2*h+1}]")
    a("s_waitcnt lgkmcnt(0)\ns_barrier")
    for i in range(5):
        for w in range(4):
            a(f"ds_read_b128 {V(112+16*i+4*w)}, v{vLA+i} offset:{w*21504}", tag=f'q{i}')
    for i in range(5):
        a.wait(lg=f'q{i}')
        for w in range(4):
            for h in range(2):
                o = 80 + 4*i + 2*h; p = 112+16*i+4*w+2*h
                a(f"v_pk_add_f32 v[{o}:{o+1}], v[{o}:{o+1}], v[{p}:{p+1}]")
        a(f"buffer_store_dwordx4 {V(80+4*i)}, v{vEA+i}, {S(rO)}, 0 offen")
    stamp(a, 10, vTt+2)
    if STAMP:
        a("s_waitcnt vmcnt(0)"); stamp(a, 11, vTt+2)
    a("L_end2:")
    return a

def wrap(name, a, vgpr, accum):
    return f"""
.text
.globl {name}
.p2align 8
.type {name},@function
{name}:
{a.text()}    s_endpgm
.section .rodata,"a"
.p2align 6
.amdhsa_kernel {name}
  .amdhsa_next_free_vgpr {vgpr}
  .amdhsa_next_free_sgpr 96
  .amdhsa_accum_offset {accum}
  .amdhsa_group_segment_fixed_size 0
  .amdhsa_kernarg_size 128
  .amdhsa_user_sgpr_count 2
  .amdhsa_user_sgpr_kernarg_segment_ptr 1
  .amdhsa_system_sgpr_workgroup_id_x 1
.end_amdhsa_kernel
"""

CODE1 = 49152
CODE2 = 8192
if __name__ == "__main__":
    out = [x for x in sys.argv[1:] if not x.startswith('--')][0]
    hdr = open('cdna_kernels/' + NAME + '.s.ref').read().split('; Override launch')[0]
    s = hdr
    s += f"; @launch kernel=p1_kernel grid=(256,1,1) block=(256,1,1) lds={LDS1}\n"
    s += f"; @launch kernel=p2_kernel grid=(256,1,1) block=(256,1,1) lds=86016\n"
    s += '.amdgcn_target "amdgcn-amd-amdhsa--gfx950"\n'
    k1 = kernel1(); k2 = kernel2()
    s += wrap("p1_kernel", k1, 512, 256) + wrap("p2_kernel", k2, 512, 256)
    open(out, 'w').write(s)
    print("pads", k1.npad, k2.npad, "instrs", len(k1.ins), len(k2.ins))
```

```python
import sys, math, struct
from emit import Asm

NAME = "parallel_sum__ssm_conv_s5__glu_gated_glu__prompt"
def opt(name, default):
    for x in sys.argv:
        if x.startswith(f'--{name}='):
            return type(default)(x.split('=', 1)[1])
    return default
STAMP = '--stamp' in sys.argv
Q1 = opt('q1', 2)
Q2 = opt('q2', 4)
N1 = opt('n1', 8)
DQ = opt('dq', 4)
TOUCH = opt('touch', 1)
B2A = opt('b2a', 1)
B2B = opt('b2b', 4)
B2E = opt('b2e', 3)
B2W = opt('b2w', 10)
B2S = opt('b2s', 20)
LOG2E = 1.4426950408889634
def f2u(x): return "0x%08x" % struct.unpack('<I', struct.pack('<f', x))[0]

H_SIZE = 32*94*4096
MISC = 0x1000000
STATS = 0x400000
FLAG1 = 0x410000
FLAG2 = 0x420000
EOFF = 0x460000
STAMPS = 0x490000
MISC_SIZE = 0x500000
OOB = 0x8000000
SPINMAX = 100000
XB, WB, SPARE, LDS = 0, 61440, 159744, 163840
N8S = 94*5120

sX, sLre, sLim, sBre, sBim, sCre, sCim, sLdt, sD, sWg, sWu, sWd, sOut, sDbg, sWs = 8,10,12,14,16,18,20,22,24,28,30,32,34,36,38
rX, rA, rB, rH, rM, rF, rP, rWd, rC = 40, 44, 48, 52, 56, 60, 84, 88, 92
(sW, sRB, sG, sCls, sXo, sWo, sWo2, sXm, sWm, sT0, sT1, sT2, sT3, sKind, sPair, sSpin) = range(64, 80)
sNon = 83
sTile, sRT, sN8, sReg, sAlim, sBlim = 3, 4, 5, 6, 7, 26
sU = 27
sAo = 96
sBo = 12
sJ0, sJ1 = 100, 101

def srd(a, r, base, size):
    a(f"s_mov_b32 s{r}, s{base}\ns_mov_b32 s{r+1}, s{base+1}\ns_mov_b32 s{r+2}, {size}\ns_mov_b32 s{r+3}, 0x20000")
def S(r, n=4): return f"s[{r}:{r+n-1}]"
def V(r, n=4): return f"v[{r}:{r+n-1}]"
def A(r, n=4): return f"a[{r}:{r+n-1}]"
def P(r): return f"v[{r}:{r+1}]"

def stamp(a, idx):
    if not STAMP: return
    a(f"s_memtime s[80:81]\ns_waitcnt lgkmcnt(0)\nv_accvgpr_write_b32 a254, s80\ns_add_u32 s81, s82, {idx*4}")
    a(f"buffer_store_dword a254, off, {S(rM)}, s81", tag='stamp')

def bf16_round(a, d, s):
    a(f"v_cvt_pk_bf16_f32 v{d}, v{s}, v{s}\nv_lshlrev_b32 v{d}, 16, v{d}")
def reduce32(a, v, t):
    for sh in (8, 4, 2, 1):
        a(f"v_add_f32_dpp v{v}, v{v}, v{v} row_ror:{sh} row_mask:0xf bank_mask:0xf")
    a(f"v_mov_b32 v{t}, v{v}\nv_permlane16_swap_b32 v{v}, v{t}\nv_add_f32 v{v}, v{v}, v{t}")

XF, WF, vXR, vWR, vXD, vWD, vL, vS, vSt, vA, vT, vLAM = 160, 200, 216, 220, 224, 229, 233, 234, 236, 238, 239, 244
def accg(j): return 32*j
def accu(j): return 32*j + 16
aST = 240
aDUM = 255

def dma_chunk(role, c):
    slot = c % 3
    L = []
    if Q1 == 1: L.append(f"s_mov_b32 s{sT3}, {c}")
    elif Q1 == 2: L.append(f"s_xor_b32 s{sT3}, s{sCls}, {c}")
    else:
        L.append(f"s_add_u32 s{sT3}, s{sCls}, {c}\ns_sub_u32 s{sXo}, s{sT3}, {Q1}\ns_cmp_ge_u32 s{sT3}, {Q1*(c//Q1+1)}\ns_cselect_b32 s{sT3}, s{sXo}, s{sT3}")
    L[-1] += f"\ns_lshl_b32 s{sXo}, s{sT3}, 7"
    if role == 'glu':
        L[-1] += f"\ns_mul_i32 s{sWo}, s{sT3}, {64*3456}\ns_add_u32 s{sWo2}, s{sWo}, {32*3456}"
    def grp(m0, loads):
        loads[0] = m0 + "\n" + loads[0]
        return loads
    x = grp(f"s_add_u32 m0, s{sXm}, {slot*20480}", [f"buffer_load_dwordx4 v{vXD+j}, {S(rX)}, s{sXo} offen offset:{j*1024} lds" for j in range(4)])
    x[0] = L[0] + "\n" + x[0]
    x += grp(f"s_add_u32 m0, s{sXm}, {slot*20480+4096}", [f"buffer_load_dwordx4 v{vXD+4}, {S(rX)}, s{sXo} offen lds"])
    st = 16384 if role == 'glu' else 8192
    o1, o2, r2 = (sWo, sWo2, rA) if role == 'glu' else (sXo, sXo, rB)
    x += grp(f"s_add_u32 m0, s{sWm}, {slot*st}", [f"buffer_load_dwordx4 v{vWD+j}, {S(rA)}, s{o1} offen offset:{j*1024} lds" for j in range(4)])
    x += grp(f"s_add_u32 m0, s{sWm}, {slot*st+4096}", [f"buffer_load_dwordx4 v{vWD+j}, {S(r2)}, s{o2} offen offset:{j*1024} lds" for j in range(4)])
    return x

def reads(role, ks):
    c, s = ks // 4, ks % 4
    slot, b = c % 3, ks & 1
    L = []
    for m in range(2):
        d = WF + b*8 + m*4
        if role == 'glu':
            off = slot*16384 + m*8192 + s*2048
            L.append(f"ds_read_b64_tr_b16 v[{d}:{d+1}], v{vWR} offset:{off}")
            L.append(f"ds_read_b64_tr_b16 v[{d+2}:{d+3}], v{vWR} offset:{off+256}")
        else:
            L.append(f"ds_read_b128 {V(d)}, v{vWR+s} offset:{slot*8192 + m*4096}")
    for j in range(5):
        L.append(f"ds_read_b128 {V(XF + b*20 + j*4)}, v{vXR+s} offset:{slot*20480 + j*1024}")
    return L

def s_ops(ks):
    b = ks & 1
    L = []
    for i in range(4):
        for m in range(2):
            w = WF + b*8 + m*4 + i
            if ks == 0 and i == 0:
                L += [f"v_lshlrev_b32 v{vS+m}, 16, v{w}", f"v_and_b32 v{vSt+1}, 0xffff0000, v{w}", f"v_add_f32 v{vS+m}, v{vS+m}, v{vSt+1}"]
            else:
                L += [f"v_lshlrev_b32 v{vSt}, 16, v{w}", f"v_and_b32 v{vSt+1}, 0xffff0000, v{w}",
                      f"v_add_f32 v{vS+m}, v{vS+m}, v{vSt}", f"v_add_f32 v{vS+m}, v{vS+m}, v{vSt+1}"]
    return L

def lam_setup(a, t0):
    lr, li, dt, zr, zi, t, u0 = range(t0, t0+7)
    a.wait(vm='lam')
    a(f"v_lshlrev_b32 v{lr}, 16, v{vLAM}\nv_lshlrev_b32 v{li}, 16, v{vLAM+1}\nv_lshlrev_b32 v{dt}, 16, v{vLAM+2}")
    a(f"v_mul_f32 v{dt}, {f2u(LOG2E)}, v{dt}\nv_exp_f32 v{dt}, v{dt}")
    bf16_round(a, dt, dt)
    a(f"v_mul_f32 v{zr}, v{dt}, v{lr}\nv_mul_f32 v{zi}, v{dt}, v{li}\nv_mul_f32 v{zr}, {f2u(LOG2E)}, v{zr}\nv_mul_f32 v{zi}, 0.15915494, v{zi}")
    for idx, n in ((0, 1), (4, 40), (6, 80), (8, 160), (10, 320)):
        d = vLAM + idx
        a(f"v_mul_f32 v{t}, {f2u(float(n))}, v{zr}\nv_mul_f32 v{u0}, {f2u(float(n))}, v{zi}\nv_exp_f32 v{t}, v{t}\nv_fract_f32 v{u0}, v{u0}")
        a(f"v_cos_f32 v{d}, v{u0}\nv_sin_f32 v{d+1}, v{u0}\nv_mul_f32 v{d}, v{d}, v{t}\nv_mul_f32 v{d+1}, v{d+1}, v{t}")
    c = vLAM + 2
    a(f"v_mul_f32 v{t}, v{lr}, v{lr}\nv_fmac_f32 v{t}, v{li}, v{li}\nv_rcp_f32 v{t}, v{t}\nv_add_f32 v{u0}, -1.0, v{vLAM}")
    a(f"v_mul_f32 v{c}, v{u0}, v{lr}\nv_fmac_f32 v{c}, v{vLAM+1}, v{li}\nv_mul_f32 v{c+1}, v{vLAM+1}, v{lr}\nv_fma_f32 v{c+1}, -v{u0}, v{li}, v{c+1}")
    a(f"v_add_f32 v{t}, v{t}, v{t}\nv_mul_f32 v{c}, v{c}, v{t}\nv_mul_f32 v{c+1}, v{c+1}, v{t}")

def cmul_add(a, d, x, l, add):
    a(f"v_pk_fma_f32 {P(d)}, {P(x)}, {P(l)}, {P(add)} op_sel:[0,0,0] op_sel_hi:[1,0,1]")
    a(f"v_pk_fma_f32 {P(d)}, {P(x)}, {P(l)}, {P(d)} op_sel:[1,1,0] op_sel_hi:[0,1,1] neg_lo:[1,0,0]")

def div10(d, r, src):
    return f"s_mul_i32 s{d}, s{src}, 6554\ns_lshr_b32 s{d}, s{d}, 16\ns_mul_i32 s{r}, s{d}, 10\ns_sub_u32 s{r}, s{src}, s{r}"

def wd_issue(ldsoff_expr, tag):
    return [(div10(sJ0, sJ1, sU), None),
            (f"v_lshrrev_b32 v{vT}, 3, v{vL}", None), (f"v_mul_u32_u24 v{vT}, 1280, v{vT}", None), (f"v_and_b32 v{vT+1}, 0x70, v{vA}", None), (f"v_add_u32 v{vT}, v{vT}, v{vT+1}", None),
            ('M0FREE', None),
            (f"s_mul_i32 s{sT0}, s{sJ0}, {8*1280}\ns_lshl_b32 s{sT1}, s{sJ1}, 7\ns_add_u32 s{sT0}, s{sT0}, s{sT1}\n{ldsoff_expr}\ns_nop 0\nbuffer_load_dwordx4 v{vT}, {S(rWd)}, s{sT0} offen lds", tag)]
def wd_finish(ldsbase_s, ldsoff, tag, adst):
    return [(f"v_bfe_u32 v{vT}, v{vL}, 2, 2", None), (f"v_lshlrev_b32 v{vT}, 7, v{vT}", None), (f"v_lshrrev_b32 v{vT+1}, 4, v{vL}", None), (f"v_lshl_add_u32 v{vT}, v{vT+1}, 5, v{vT}", None),
            (f"v_and_b32 v{vT+2}, 3, v{vL}", None), (f"v_lshlrev_b32 v{vT+2}, 3, v{vT+2}", None), (f"v_add3_u32 v{vT}, v{vT}, v{vT+2}, s{ldsbase_s}", None),
            ('WAITVM', tag),
            (f"ds_read_b64_tr_b16 {A(adst,2)}, v{vT} offset:{ldsoff}", 'rp'), (f"ds_read_b64_tr_b16 {A(adst+2,2)}, v{vT} offset:{ldsoff+512}", 'rp'),
            (f"s_lshl_b32 s{sT0}, s{sJ1}, 2\nv_add_u32 v{vT+1}, s{sT0}, v{vT+1}", None),
            (f"v_mul_u32_u24 v{vT+2}, 13, v{vT+1}", None), (f"v_lshrrev_b32 v{vT+2}, 6, v{vT+2}", None), (f"v_mul_u32_u24 v{vT+2}, {N8S-5120}, v{vT+2}", None),
            (f"v_lshl_add_u32 v{vT+2}, v{vT+1}, 10, v{vT+2}", None), (f"v_and_b32 v{vT+1}, 0xf0, v{vA}", None), (f"v_add_u32 v{vT+2}, v{vT+2}, v{vT+1}", None),
            ('WAITLG', 'rp'),
            (f"s_lshr_b32 s{sT0}, s{sJ0}, 2\ns_mul_i32 s{sT0}, s{sT0}, 5120\ns_and_b32 s{sT1}, s{sJ0}, 3\ns_lshl_b32 s{sT1}, s{sT1}, 8\ns_add_u32 s{sT0}, s{sT0}, s{sT1}\n"
             f"s_cmp_ge_u32 s{sJ0}, 216\ns_cselect_b32 s{sT0}, {OOB}, s{sT0}\nbuffer_store_dwordx4 {A(adst)}, v{vT+2}, {S(rM)}, s{sT0} offen sc1", 'early')]
def c_decode():
    return f"s_lshl_b32 s{sT2}, s{sTile}, 2\ns_add_u32 s{sT2}, s{sT2}, s{sW}\n" + div10(sT0, sT1, sT2)
def c_issue(adst):
    return [(f"v_and_b32 v{vT+3}, 15, v{vL}", None), (f"v_mul_u32_u24 v{vT+3}, 1280, v{vT+3}", None), (f"v_and_b32 v{vT+4}, 48, v{vL}", None), (f"v_add_u32 v{vT+3}, v{vT+3}, v{vT+4}", None),
            (c_decode() + f"\ns_cmp_ge_u32 s{sT0}, 40\ns_cselect_b32 s{rC}, s{sCim}, s{sCre}\ns_cselect_b32 s{rC+1}, s{sCim+1}, s{sCre+1}\ns_cselect_b32 s{sT2}, 40, 0\n"
             f"s_sub_u32 s{sT0}, s{sT0}, s{sT2}\ns_mul_i32 s{sT0}, s{sT0}, {16*1280}\ns_lshl_b32 s{sT1}, s{sT1}, 7\ns_add_u32 s{sT0}, s{sT0}, s{sT1}\n"
             f"buffer_load_dwordx4 {A(adst)}, v{vT+3}, {S(rC)}, s{sT0} offen\nbuffer_load_dwordx4 {A(adst+4)}, v{vT+3}, {S(rC)}, s{sT0} offen offset:64", 'cj')]
def c_finish(adst):
    return [('WAITVM', 'cj'),
            (c_decode() + f"\ns_mul_i32 s{sT1}, s{sT1}, {4*5120}\ns_add_u32 s{sT1}, s{sT1}, {54*5120}\ns_cmp_ge_u32 s{sT0}, 80\ns_cselect_b32 s{sT1}, {OOB}, s{sT1}\n"
             f"s_cmp_ge_u32 s{sT0}, 40\ns_cselect_b32 s{sT2}, {5120 - 40*1024 - 8*(N8S-5120)}, 0\ns_add_u32 s{sT1}, s{sT1}, s{sT2}\n"
             f"s_mul_i32 s{sT2}, s{sT0}, 205\ns_lshr_b32 s{sT2}, s{sT2}, 10\ns_mul_i32 s{sT2}, s{sT2}, {N8S-5120}\ns_lshl_b32 s{sT0}, s{sT0}, 10\ns_add_u32 s{sT1}, s{sT1}, s{sT2}\ns_add_u32 s{sT1}, s{sT1}, s{sT0}\n"
             f"s_add_u32 s{sT0}, s{sT1}, 10240\n"
             f"buffer_store_dwordx4 {A(adst)}, v{vA}, {S(rM)}, s{sT1} offen sc1\nbuffer_store_dwordx4 {A(adst+4)}, v{vA}, {S(rM)}, s{sT0} offen sc1", 'early')]

def touch(role, p):
    if not TOUCH: return []
    if role == 'glu':
        return [(f"s_mul_i32 s{sT0}, s{sRB}, 15\ns_add_u32 s{sT0}, s{sT0}, {192*p}\nv_add_u32 v{vT+3}, s{sT0}, v{vL}", None), (f"v_mul_u32_u24 v{vT+3}, 3456, v{vT+3}", None),
                (f"v_mov_b32 v{vT+4}, {OOB}", None), (f"v_cmp_gt_u32 vcc, 15, v{vL}\nv_add_u32 v{vT+3}, s{sKind}, v{vT+3}\ns_nop 0\nv_cndmask_b32 v{vT+3}, v{vT+4}, v{vT+3}, vcc", None),
                (f"buffer_load_dword a{aDUM}, v{vT+3}, {S(rA)}, 0 offen", 'touch')]
    else:
        return [(f"s_lshl_b32 s{sT0}, s{sRB}, 3\ns_add_u32 s{sT0}, s{sT0}, {96*p}\nv_add_u32 v{vT+3}, s{sT0}, v{vL}", None),
                (f"v_and_b32 v{vT+4}, 31, v{vT+3}", None), (f"v_mul_u32_u24 v{vT+4}, 1280, v{vT+4}", None), (f"v_lshrrev_b32 v{vT+3}, 5, v{vT+3}", None), (f"v_min_u32 v{vT+3}, 9, v{vT+3}", None),
                (f"v_lshl_add_u32 v{vT+3}, v{vT+3}, 7, v{vT+4}", None), (f"v_mov_b32 v{vT+4}, {OOB}", None),
                (f"v_cmp_gt_u32 vcc, 8, v{vL}\nv_add_u32 v{vT+3}, s{sKind}, v{vT+3}\ns_nop 0\nv_cndmask_b32 v{vT+3}, v{vT+4}, v{vT+3}, vcc", None),
                (f"buffer_load_dword a{aDUM}, v{vT+3}, {S(rA)}, 0 offen\nbuffer_load_dword a{aDUM}, v{vT+3}, {S(rB)}, 0 offen", 'touch')]

VB2 = 160
def b2_dest(p):
    if p < 12: return ('a', 20*p)
    if p < 20: return ('l', p-12)
    if p < 22: return ('v', VB2 + 20*(p-20))
    return ('a', 20*(p-22+8))
def b2_items(p):
    k, d = b2_dest(p)
    pre = f"s_add_u32 s{sJ0}, s{sBo+(p&3)}, {(p&~3)*4*5120}"
    if p >= 20: pre += f"\ns_cmp_ge_u32 s{sJ0}, s{sBlim}\ns_cselect_b32 s{sJ0}, {OOB}, s{sJ0}"
    L = []
    for q in range(5):
        so = sJ0
        t = ""
        if q == 0: t = pre + "\n"
        if q == 4: t = f"s_add_u32 s{sJ0}, s{sJ0}, 4096\n"
        off = f" offset:{q*1024}" if 0 < q < 4 else ""
        if k == 'l':
            if q in (0, 4): t += f"s_add_u32 m0, s{sReg}, {d*5120 + q*1024}\n"
            t += f"buffer_load_dwordx4 v{vA}, {S(rM)}, s{so} offen{off} sc1 lds"
        else:
            r = A(d+4*q) if k == 'a' else V(d+4*q)
            t += f"buffer_load_dwordx4 {r}, v{vA}, {S(rM)}, s{so} offen{off} sc1"
        L.append((t, f'b{p}'))
    return L
class B2Q:
    def __init__(self): self.q = [x for p in range(22) for x in b2_items(p)]; self.i = 0
    def take(self, n, maxpos):
        out = []
        while n > 0 and self.i < min(len(self.q), 5*maxpos):
            out.append(self.q[self.i]); self.i += 1; n -= 1
        return out
    def emit(self, a, n, maxpos):
        for t, tag in self.take(n, maxpos): a(t, tag=tag)

def p2_scalars():
    t = f"""s_and_b32 s{sT0}, s2, 7
s_lshl_b32 s{sT0}, s{sT0}, 2
s_bfe_u32 s{sT1}, s2, 0x20003
s_add_u32 s{sRT}, s{sT0}, s{sT1}
s_lshr_b32 s{sN8}, s2, 5
s_mul_i32 s{sReg}, s{sW}, 40960
s_add_u32 s{sT0}, s{sRT}, 1
s_mul_i32 s{sAlim}, s{sT0}, {94*4096}
s_add_u32 s{sT0}, s{sN8}, 1
s_mul_i32 s{sBlim}, s{sT0}, {N8S}"""
    L = [(t, None)]
    for j in range(4):
        L.append((f"""s_add_u32 s{sT0}, s{sRT}, s{sN8}
s_and_b32 s{sT0}, s{sT0}, {Q2-1}
s_xor_b32 s{sT0}, s{sT0}, {j}
s_lshl_b32 s{sT0}, s{sT0}, 2
s_add_u32 s{sT0}, s{sT0}, s{sW}
s_sub_u32 s{sT0}, s{sT0}, 94
s_lshl_b32 s{sT1}, s{sT0}, 12
s_add_u32 s{sAo+j}, s{sAlim}, s{sT1}
s_mul_i32 s{sT1}, s{sT0}, 5120
s_add_u32 s{sBo+j}, s{sBlim}, s{sT1}""", None))
    return L

SLOW = []
def spin(a, name, load, check):
    a(f"L_chk_{name}:\n{check}\ns_cbranch_vccnz L_slow_{name}\nL_go_{name}:")
    SLOW.append(f"L_slow_{name}:\ns_add_u32 s{sSpin}, s{sSpin}, 1\ns_cmp_gt_u32 s{sSpin}, {SPINMAX}\ns_cbranch_scc1 L_go_{name}\ns_sleep 2\n{load}\ns_waitcnt vmcnt(0)\ns_branch L_chk_{name}")

NONCE_LOAD = f"buffer_load_dword v{vT+4}, off, {S(rF)}, 0 sc1"
def nonce_check(a, role):
    a.wait(vm='non')
    spin(a, 'non_' + role, NONCE_LOAD, f"v_cmp_eq_u32 vcc, 0, v{vT+4}")
    a(f"v_readfirstlane_b32 s{sNon}, v{vT+4}")
def flag1_store():
    return [(f"v_mov_b32 v{vT}, {OOB}", None), (f"s_lshl_b32 s{sT0}, s{sW}, 6\nv_or_b32 v{vT+1}, s{sT0}, v{vL}", None),
            (f"v_cmp_eq_u32 vcc, 0, v{vT+1}\nv_mov_b32 v{vT+2}, s{sNon}\ns_nop 0\nv_cndmask_b32 v{vT}, v{vT}, v{vT+1}, vcc", None),
            (f"s_lshl_b32 s{sT0}, s2, 4\ns_add_u32 s{sT0}, s{sT0}, {FLAG1}\nbuffer_store_dword v{vT+2}, v{vT}, {S(rM)}, s{sT0} offen sc1", 'flag')]
F1_LOAD = f"s_lshl_b32 s{sT0}, s{sW}, 10\ns_add_u32 s{sT0}, s{sT0}, {FLAG1}\nbuffer_load_dword v{vT+4}, v{vA}, {S(rM)}, s{sT0} offen sc1"
def flag1_check(a, role):
    a.wait(vm='f1')
    spin(a, 'f1_' + role, F1_LOAD, f"v_cmp_ne_u32 vcc, s{sNon}, v{vT+4}")

def stat_loads(role):
    L = [(f"s_mul_i32 s{sU}, s{sRB}, {160*8}\ns_add_u32 s{sU}, s{sU}, {STATS}", None)]
    if role == 'glu':
        L += [(f"v_and_b32 v{vT}, 31, v{vL}", None), (f"v_lshlrev_b32 v{vT}, 3, v{vT}", None)]
        L += [(f"buffer_load_dwordx2 {A(aST+2*j,2)}, v{vT}, {S(rM)}, s{sU} offen offset:{j*256} sc1", 'epi') for j in range(5)]
    else:
        L += [(f"v_lshlrev_b32 v{vT}, 3, v{vL}", None)]
        L += [(f"buffer_load_dwordx2 {A(aST+2*j,2)}, v{vT}, {S(rM)}, s{sU} offen offset:{j*512} sc1", 'epi') for j in range(3)]
    return L

def emit_item(a, x, tag, role):
    if x == 'WAITVM': a.wait(vm=tag)
    elif x == 'WAITLG': a.wait(lg=tag)
    elif x == 'NONCE': nonce_check(a, role)
    elif x == 'F1': flag1_check(a, role)
    elif x == 'M0FREE': pass
    else: a(x, tag=tag)

def mainloop(a, role, dq, b2):
    a.wait(vm='c0')
    a("s_barrier")
    stamp(a, 7)
    for r in reads(role, 0): a(r, tag='r0')
    spare_m0 = f"s_lshl_b32 s{sT1}, s{sW}, 10\ns_add_u32 m0, s{sT1}, {SPARE}"
    side = {k: [] for k in range(40)}
    side[0] += [(f"s_lshl_b32 s{sU}, s{sTile}, 2\ns_add_u32 s{sU}, s{sU}, s{sW}\ns_lshl_b32 s{sReg}, s{sW}, 10\ns_add_u32 s{sReg}, s{sReg}, {SPARE}", None)] + wd_issue(spare_m0, 'w1')
    side[1] += touch(role, 1)
    side[2] += c_issue(8)
    f = wd_finish(sReg, 0, 'w1', 0)
    side[4] += f[:10]; side[5] += f[10:]
    side[6] += [(f"s_add_u32 s{sU}, s{sU}, 988", None)] + wd_issue(spare_m0, 'w2')
    side[7] += c_finish(8)
    side[8] += touch(role, 2)
    side[9] += [(NONCE_LOAD, 'non')]
    f = wd_finish(sReg, 0, 'w2', 4)
    side[10] += f[:10]; side[11] += f[10:]
    side[13] += [('NONCE', None)]
    side[14] += touch(role, 3)
    side[16] += flag1_store()
    ps = p2_scalars()
    side[17] += ps[:1]; side[18] += ps[1:2]; side[19] += ps[2:3] + [(F1_LOAD, 'f1')]; side[20] += ps[3:4]; side[21] += ps[4:]
    side[22] += [('F1', None)]
    side[30] += stat_loads(role)
    for ks in range(40):
        c, s = ks // 4, ks % 4
        b = ks & 1
        maxc = (ks + 1)//4 + 2
        dm = []
        while dq and len(dm) < DQ and dq[0][2] <= maxc:
            dm.append(dq.pop(0))
        if any(x == 'M0FREE' for x, _ in side[ks]):
            while dq and dq[0][3] not in (0, 4, 5, 9): dm.append(dq.pop(0))
        extra = list(side[ks])
        if ks >= 24: extra += b2.take(B2A if ks < 33 else B2B, 12)
        so = [(x, None) for x in s_ops(ks)]
        a.wait(lg=f'r{ks}')
        if ks == 13: stamp(a, 14)
        if ks == 26: stamp(a, 15)
        gaps = [[] for _ in range(10)]
        rd = [(x, f'r{ks+1}') for x in reads(role, ks+1)] if ks < 39 else []
        if s == 3: gaps[0].append(('BAR', f'c{c+1}'))
        for i, x in enumerate(rd): gaps[(i*6)//len(rd)].append(x)
        m0side = any(x == 'M0FREE' for x, _ in extra)
        if m0side:
            seq = [(x[0], x[1]) for x in dm] + extra
            for i, x in enumerate(seq): gaps[1 + (i*9)//len(seq)].append(x)
        else:
            for lst in ([(x[0], x[1]) for x in dm], extra):
                for i, x in enumerate(lst): gaps[1 + (i*9)//len(lst)].append(x)
        load = [sum(x.count('\n') + 1 for x, _ in g) for g in gaps]
        tot = sum(load) + len(so)
        k = 0
        for i in range(10):
            want = max(0, round(tot*(i+1)/10) - sum(load[:i+1]) - k) if i < 9 else len(so) - k
            gaps[i] += so[k:k+want]; k += min(want, len(so) - k)
        for i in range(10):
            j, m = i // 2, i % 2
            acc = V(accg(j) + 16*m, 16)
            xf = V(XF + b*20 + j*4); wf = V(WF + b*8 + m*4)
            o = f"{wf}, {xf}" if role == 'glu' else f"{xf}, {wf}"
            a(f"v_mfma_f32_32x32x16_bf16 {acc}, {o}, {'0' if ks == 0 else acc}")
            for (x, tag) in gaps[i]:
                if x == 'BAR':
                    a.wait(vm=[tag, 'early'] if c+1 == 4 else tag)
                    a("s_barrier")
                else:
                    emit_item(a, x, tag, role)
    assert not dq

def flag2_store(a, slot_expr):
    a(slot_expr)
    a(f"s_lshl_b32 s{sT1}, s{sRB}, 2\ns_add_u32 s{sT1}, s{sT1}, s{sW}\ns_lshl_b32 s{sT1}, s{sT1}, 5\ns_add_u32 s{sT0}, s{sT0}, s{sT1}\ns_lshl_b32 s{sT0}, s{sT0}, 5\ns_add_u32 s{sT0}, s{sT0}, {FLAG2}")
    a(f"v_mov_b32 v{vT}, s{sNon}\ns_mov_b64 exec, 1")
    a.wait(vm='hst')
    a(f"buffer_store_dword v{vT}, off, {S(rM)}, s{sT0} sc1\ns_mov_b64 exec, -1", tag='flag')

def epilogue_glu(a, b2):
    vSG, vRC, vO, vAd = XF, XF+32, 212, 228
    a(f"v_permlane32_swap_b32 v{vS}, v{vS+1}\nv_lshrrev_b32 v{vT}, 2, v{vA}\ns_add_u32 s{sT0}, s{sReg}, 36864\nv_add_u32 v{vT}, s{sT0}, v{vT}\nv_add_f32 v{vS}, v{vS}, v{vS+1}")
    a(f"ds_write_b32 v{vT}, v{vS}", tag='sw')
    a(f"v_lshrrev_b32 v{vT+1}, 5, v{vL}\nv_lshlrev_b32 v{vT+2}, 4, v{vT+1}\nv_add_u32 v{vT+2}, s{sT0}, v{vT+2}")
    a.wait(vm='epi')
    for j in range(5):
        a(f"v_accvgpr_read_b32 v{vRC+4*j+2}, a{aST+2*j+1}\nv_accvgpr_read_b32 v{vRC+4*j}, a{aST+2*j}\nv_rcp_f32 v{vRC+4*j+1}, v{vRC+4*j+2}")
    a.wait(lg='sw')
    for m in range(2):
        for q in range(4):
            a(f"ds_read_b128 {V(vSG+16*m+4*q)}, v{vT+2} offset:{m*128+q*32}", tag='sr')
    for j in range(5): a(f"v_mul_f32 v{vRC+4*j+1}, {f2u(-LOG2E)}, v{vRC+4*j+1}")
    a(f"v_and_b32 v{vT+3}, 0xf0, v{vA}\nv_lshl_add_u32 v{vT+3}, v{vT+1}, 9, v{vT+3}\nv_bfe_u32 v{vT+4}, v{vL}, 4, 1\nv_lshl_add_u32 v{vAd}, v{vT+4}, 10, v{vT+3}")
    a(f"s_lshl_b32 s{sT2}, s{sPair}, 12\ns_cmp_ge_u32 s{sPair}, 54\ns_cselect_b32 s{sT2}, {OOB}, s{sT2}")
    a.wait(lg='sr')
    for j in range(5):
        rc = vRC + 4*j
        o = vO + (j & 1)*8
        a(f"s_mul_i32 s{sT0}, s{sRB}, 5\ns_add_u32 s{sT0}, s{sT0}, {j}\ns_lshr_b32 s{sT1}, s{sT0}, 1\ns_mul_i32 s{sT1}, s{sT1}, {94*4096}")
        a(f"s_and_b32 s{sT0}, s{sT0}, 1\ns_lshl_b32 s{sT0}, s{sT0}, 11\ns_add_u32 s{sT1}, s{sT1}, s{sT0}\ns_add_u32 s{sT1}, s{sT1}, s{sT2}")
        for half in range(2):
            ps = range(half*4, half*4+4)
            g = lambda p: P(accg(j)+2*p)
            u = lambda p: P(accu(j)+2*p)
            ex = b2.take(B2E, 20)
            def slip(k):
                for t, tag in ex[k::3]: pass
            for p in ps: a(f"v_pk_fma_f32 {g(p)}, {P(vSG+2*p)}, {P(rc)}, {g(p)} op_sel_hi:[1,0,1]")
            for p in ps: a(f"v_pk_mul_f32 {g(p)}, {g(p)}, {P(rc)} op_sel:[0,1] op_sel_hi:[1,1]")
            n3 = (len(ex) + 2)//3
            for t, tag in ex[:n3]: a(t, tag=tag)
            for p in ps: a(f"v_exp_f32 v{accg(j)+2*p}, v{accg(j)+2*p}\nv_exp_f32 v{accg(j)+2*p+1}, v{accg(j)+2*p+1}")
            for p in ps: a(f"v_pk_fma_f32 {u(p)}, {P(vSG+16+2*p)}, {P(rc)}, {u(p)} op_sel_hi:[1,0,1]")
            for t, tag in ex[n3:2*n3]: a(t, tag=tag)
            for p in ps: a(f"v_pk_fma_f32 {g(p)}, {g(p)}, {P(rc+2)}, {P(rc+2)} op_sel_hi:[1,0,0]")
            for p in ps: a(f"v_rcp_f32 v{accg(j)+2*p}, v{accg(j)+2*p}\nv_rcp_f32 v{accg(j)+2*p+1}, v{accg(j)+2*p+1}")
            for t, tag in ex[2*n3:]: a(t, tag=tag)
            for p in ps: a(f"v_pk_mul_f32 {u(p)}, {u(p)}, {g(p)}")
            for p in ps: a(f"v_cvt_pk_bf16_f32 v{o+p}, v{accu(j)+2*p}, v{accu(j)+2*p+1}")
            a(f"buffer_store_dwordx4 {V(o+half*4)}, v{vAd}, {S(rH)}, s{sT1} offen offset:{half*256} sc1", tag='hst')
    stamp(a, 5)
    b2.emit(a, B2W, 22)
    flag2_store(a, f"s_mov_b32 s{sT0}, s{sG}")
    stamp(a, 6)

def epilogue_ssm(a, b2):
    lam, cc, l40, l80, l160, l320 = [vLAM + 2*i for i in range(6)]
    vG, vRT, vE, vX = XF+2, XF+12, XF+28, 212
    TB, TAB = 15360, 36864
    a(f"v_permlane32_swap_b32 v{vS}, v{vS+1}\nv_add_f32 v{vS}, v{vS}, v{vS+1}\nv_mov_b32 v{vS+1}, v{vS}\nv_permlane32_swap_b32 v{vS}, v{vS+1}")
    a(f"s_add_u32 s{sT0}, s{sReg}, {TAB}")
    a.wait(vm='epi')
    for j in range(3):
        t, sg, ad, r, nm = vX, vX+1, vX+2, vX+3, vX+4
        a(f"v_accvgpr_read_b32 v{r}, a{aST+2*j+1}\nv_accvgpr_read_b32 v{nm}, a{aST+2*j}\nv_rcp_f32 v{r}, v{r}")
        a(f"v_add_u32 v{t}, {64*j}, v{vL}\nv_mul_u32_u24 v{sg}, 1639, v{t}\nv_lshrrev_b32 v{sg}, 16, v{sg}")
        a(f"v_add_u32 v{ad}, 1, v{sg}\nv_lshrrev_b32 v{ad}, 1, v{ad}\nv_mul_u32_u24 v{ad}, 40, v{ad}\nv_sub_u32 v{ad}, v{t}, v{ad}")
        a(f"v_lshlrev_b32 v{ad}, 4, v{ad}\nv_and_b32 v{sg}, 1, v{sg}\nv_lshl_add_u32 v{ad}, v{sg}, 2, v{ad}\nv_add_u32 v{ad}, s{sT0}, v{ad}\nv_mul_f32 v{nm}, v{nm}, v{r}")
        a(f"ds_write2_b32 v{ad}, v{r}, v{nm} offset0:0 offset1:2", tag='sw')
    vRA = vX + 5
    a(f"v_lshrrev_b32 v{vRA}, 5, v{vL}\nv_mul_u32_u24 v{vRA}, 640, v{vRA}\nv_add_u32 v{vRA}, s{sT0}, v{vRA}")
    a.wait(lg='sw')
    re = lambda i: accg(i // 8) + 2*(i % 8)
    im = lambda i: accu(i // 8) + 2*(i % 8)
    for i in range(3): a(f"ds_read_b128 {V(vRT+4*i)}, v{vRA} offset:{16*i}", tag=f't{i}')
    gr, gi, ar, ai = vG, vG+2, vG+4, vG+6
    def ufix(i):
        rt = vRT + 4*(i % 4)
        a.wait(lg=f't{i}')
        a(f"v_pk_mul_f32 {P(re(i))}, {P(re(i))}, {P(rt)}\nv_pk_mul_f32 {P(im(i))}, {P(im(i))}, {P(rt)}")
        a(f"v_pk_fma_f32 {P(re(i))}, {P(rt+2)}, {P(vS)}, {P(re(i))} op_sel_hi:[1,0,1]")
        a(f"v_pk_fma_f32 {P(im(i))}, {P(rt+2)}, {P(vS)}, {P(im(i))} op_sel:[0,1,0] op_sel_hi:[1,1,1]")
        if i + 3 < 40: a(f"ds_read_b128 {V(vRT+4*((i+3)%4))}, v{vRA} offset:{16*(i+3)}", tag=f't{i+3}')
    def step(pr, pi, ur, ui, dr, di):
        a(f"v_pk_fma_f32 {P(dr)}, {P(pr)}, {P(lam)}, {P(ur)} op_sel_hi:[1,0,1]")
        a(f"v_pk_fma_f32 {P(di)}, {P(pi)}, {P(lam)}, {P(ui)} op_sel_hi:[1,0,1]")
        a(f"v_pk_fma_f32 {P(dr)}, {P(pi)}, {P(lam)}, {P(dr)} op_sel:[0,1,0] op_sel_hi:[1,1,1] neg_lo:[0,1,0] neg_hi:[0,1,0]")
        a(f"v_pk_fma_f32 {P(di)}, {P(pr)}, {P(lam)}, {P(di)} op_sel:[0,1,0] op_sel_hi:[1,1,1]")
    ufix(0)
    cur = (re(0), im(0))
    done = 0
    for i in range(1, 40):
        ufix(i)
        nxt = (gr, gi) if cur != (gr, gi) else (ar, ai)
        step(cur[0], cur[1], re(i), im(i), nxt[0], nxt[1])
        cur = nxt
        want = min(B2S, (B2S*i)//30)
        b2.emit(a, want - done, 15); done = want
    e0, e1, eh, eo, ef = vX, vX+2, vX+6, vX+8, vX+12
    a(f"v_mov_b32 v{e0}, v{cur[0]}\nv_mov_b32 v{e0+1}, v{cur[1]}\nv_mov_b32 v{e1}, v{cur[0]+1}\nv_mov_b32 v{e1+1}, v{cur[1]+1}")
    cmul_add(a, eh, e0, l40, e1)
    a(f"v_mov_b32 v{eo}, v{eh}\nv_mov_b32 v{eo+1}, v{eh+1}\nv_mov_b32 v{ef+2}, s{sNon}\nv_mov_b32 v{ef+3}, 0")
    a(f"v_permlane32_swap_b32 v{eh}, v{eo}\nv_permlane32_swap_b32 v{eh+1}, v{eo+1}")
    a(f"s_mul_i32 s{sT0}, s{sPair}, 13\ns_add_u32 s{sT1}, s{sT0}, s{sRB}\ns_lshl_b32 s{sT1}, s{sT1}, 9\ns_add_u32 s{sT1}, s{sT1}, {EOFF}")
    cmul_add(a, ef, eh, l80, eo)
    a(f"s_mov_b32 exec_hi, 0\nbuffer_store_dwordx4 {V(ef)}, v{vA}, {S(rM)}, s{sT1} offen sc1\ns_mov_b64 exec, -1", tag='epub')
    stamp(a, 3)
    vA6, vK6, vPA = vRT, vRT+6, vX+10
    a(f"s_lshl_b32 s{sU}, s{sT0}, 9\ns_add_u32 s{sU}, s{sU}, {EOFF}")
    a(f"v_lshrrev_b32 v{vPA}, 5, v{vL}\nv_sub_u32 v{vPA}, s{sRB}, v{vPA}\nv_mov_b32 v{vPA+1}, {OOB}\nv_and_b32 v{vT}, 0x1f0, v{vA}\nv_mov_b32 v{vT+2}, s{sNon}")
    for m in range(6):
        a(f"v_add_u32 v{vT+1}, {-(1+2*m)}, v{vPA}\nv_cmp_le_i32 vcc, 0, v{vT+1}\nv_lshl_add_u32 v{vT+1}, v{vT+1}, 9, v{vT}")
        a(f"v_cndmask_b32 v{vA6+m}, v{vPA+1}, v{vT+1}, vcc\nv_cndmask_b32 v{vK6+m}, 0, v{vT+2}, vcc")
    polls = "\n".join(f"buffer_load_dwordx4 {V(vE+4*m)}, v{vA6+m}, {S(rM)}, s{sU} offen sc1" for m in range(6))
    for i in range(40):
        t = gr if i & 1 else gi
        if i == 20: a(polls, tag='ep')
        a(f"v_pk_mul_f32 {P(t)}, {P(im(i))}, {P(cc)} op_sel:[0,1] op_sel_hi:[1,1]")
        a(f"v_pk_mul_f32 {P(im(i))}, {P(im(i))}, {P(cc)} op_sel_hi:[1,0]")
        a(f"v_pk_fma_f32 {P(im(i))}, {P(re(i))}, {P(cc)}, {P(im(i))} op_sel:[0,1,0] op_sel_hi:[1,1,1]")
        a(f"v_pk_fma_f32 {P(re(i))}, {P(re(i))}, {P(cc)}, {P(t)} op_sel_hi:[1,0,1] neg_lo:[0,0,1] neg_hi:[0,0,1]")
    vTW, vTR = vX+16, vX+17
    a(f"s_add_u32 s{sT0}, s{sReg}, {TB}")
    a(f"v_and_b32 v{vTW}, 31, v{vL}\nv_mul_u32_u24 v{vTW}, 336, v{vTW}\nv_lshrrev_b32 v{vTR}, 5, v{vL}\nv_mul_u32_u24 v{vTR}, 160, v{vTR}\nv_add3_u32 v{vTW}, v{vTW}, v{vTR}, s{sT0}")
    a(f"v_lshrrev_b32 v{vTR}, 4, v{vL}\nv_lshlrev_b32 v{vTR}, 3, v{vTR}\nv_bfe_u32 v{vT}, v{vL}, 2, 2\nv_add_u32 v{vTR}, v{vTR}, v{vT}\nv_mul_u32_u24 v{vTR}, 336, v{vTR}")
    a(f"v_and_b32 v{vT}, 3, v{vL}\nv_lshlrev_b32 v{vT}, 3, v{vT}\nv_add3_u32 v{vTR}, v{vTR}, v{vT}, s{sT0}")
    a.wait(vm='ep')
    chk = f"v_xor_b32 v{vT}, v{vE+2}, v{vK6}\n" + "".join(f"v_xor_b32 v{vT+1}, v{vE+4*m+2}, v{vK6+m}\nv_or_b32 v{vT}, v{vT}, v{vT+1}\n" for m in range(1, 6)) + f"v_cmp_ne_u32 vcc, 0, v{vT}"
    spin(a, 'e', polls, chk)
    stamp(a, 4)
    cur = vE + 20
    for m in range(4, -1, -1):
        cmul_add(a, vE+4*m, cur, l320, vE+4*m); cur = vE + 4*m
    g0, g1 = ar, ai
    a(f"v_mov_b32 v{g1}, v{cur}\nv_mov_b32 v{g1+1}, v{cur+1}\nv_mov_b32 v{eo}, 0\nv_mov_b32 v{eo+1}, 0\nv_cmp_gt_u32 vcc, 32, v{vL}")
    a(f"v_permlane32_swap_b32 v{cur}, v{g1}\nv_permlane32_swap_b32 v{cur+1}, v{g1+1}")
    cmul_add(a, g0, g1, l160, cur)
    cmul_add(a, eh, g0, l80, eh)
    a(f"v_cndmask_b32 v{g0}, v{eh}, v{g0}, vcc\nv_cndmask_b32 v{g0+1}, v{eh+1}, v{g0+1}, vcc")
    cmul_add(a, e0, g0, l40, e0)
    cmul_add(a, e1, g0, cc, eo)
    cmul_add(a, eh, e0, cc, eo)
    a(f"v_mov_b32 v{gr}, v{e1}\nv_mov_b32 v{gr+1}, v{eh}\nv_mov_b32 v{gi}, v{e1+1}\nv_mov_b32 v{gi+1}, v{eh+1}")
    vPK = vRT
    cur = (gr, gi)
    for i in range(40):
        step(cur[0], cur[1], re(i), im(i), re(i), im(i))
        cur = (re(i), im(i))
        if i % 3 == 0: b2.emit(a, 1, 15)
        if i & 1:
            blk = i // 8
            pk = vPK + (blk & 1)*16 + (i % 8)//2
            for e in range(2):
                a(f"v_cvt_pk_bf16_f32 v{pk+4*e}, v{re(i-1)+e}, v{re(i)+e}")
                a(f"v_cvt_pk_bf16_f32 v{pk+8+4*e}, -v{im(i-1)+e}, -v{im(i)+e}")
            if i % 8 == 7:
                for comp in range(2):
                    for e in range(2):
                        a(f"ds_write_b128 v{vTW}, {V(vPK+(blk&1)*16+comp*8+e*4)} offset:{comp*32*336 + e*80 + blk*16}", tag='tw')
    a(f"s_lshl_b32 s{sT2}, s{sPair}, 1\ns_add_u32 s{sT2}, s{sT2}, 54\ns_lshl_b32 s{sT2}, s{sT2}, 12")
    a.wait(lg='tw')
    def hstore(q):
        a(f"s_mul_i32 s{sT0}, s{sRB}, 10\ns_add_u32 s{sT0}, s{sT0}, {q}\ns_lshr_b32 s{sT1}, s{sT0}, 2\ns_mul_i32 s{sT1}, s{sT1}, {94*4096}")
        a(f"s_and_b32 s{sT0}, s{sT0}, 3\ns_lshl_b32 s{sT0}, s{sT0}, 10\ns_add_u32 s{sT1}, s{sT1}, s{sT0}\ns_add_u32 s{sT1}, s{sT1}, s{sT2}\ns_add_u32 s{sT3}, s{sT1}, 4096")
        a.wait(lg=f'f{q}')
        a(f"buffer_store_dwordx4 {V(8*q)}, v{vA}, {S(rH)}, s{sT1} offen sc1", tag='hst')
        a(f"buffer_store_dwordx4 {V(8*q+4)}, v{vA}, {S(rH)}, s{sT3} offen sc1", tag='hst')
    for q in range(10):
        for comp in range(2):
            d = 8*q + 4*comp
            off = comp*32*336 + q*32
            a(f"ds_read_b64_tr_b16 v[{d}:{d+1}], v{vTR} offset:{off}\nds_read_b64_tr_b16 v[{d+2}:{d+3}], v{vTR} offset:{off+4*336}", tag=f'f{q}')
        if q >= 2: hstore(q-2)
    hstore(8); hstore(9)
    stamp(a, 5)
    b2.emit(a, B2W, 22)
    flag2_store(a, f"s_add_u32 s{sT0}, s{sG}, 16")
    stamp(a, 6)

def stats_compute(a, vin, vt):
    stamp(a, 12)
    a.wait(vm='st')
    stamp(a, 13)
    x = vt
    for i in range(10):
        a(f"v_lshlrev_b32 v{x+2*i}, 16, v{vin+i}\nv_and_b32 v{x+2*i+1}, 0xffff0000, v{vin+i}")
    s = vt + 20
    a(f"v_pk_add_f32 {P(s)}, {P(x)}, {P(x+2)}")
    for i in range(2, 10): a(f"v_pk_add_f32 {P(s)}, {P(s)}, {P(x+2*i)}")
    a(f"v_add_f32 v{s}, v{s}, v{s+1}")
    reduce32(a, s, s+1)
    a(f"v_mul_f32 v{s}, {f2u(-1.0/640)}, v{s}")
    for i in range(10): a(f"v_pk_add_f32 {P(x+2*i)}, {P(x+2*i)}, {P(s)} op_sel_hi:[1,0]")
    q = vt + 22
    a(f"v_pk_mul_f32 {P(q)}, {P(x)}, {P(x)}")
    for i in range(1, 10): a(f"v_pk_fma_f32 {P(q)}, {P(x+2*i)}, {P(x+2*i)}, {P(q)}")
    a(f"v_add_f32 v{q}, v{q}, v{q+1}")
    reduce32(a, q, q+1)
    o = vt
    bf16_round(a, o, s)
    a(f"v_mul_f32 v{q}, {f2u(1.0/640)}, v{q}")
    bf16_round(a, q, q)
    a(f"v_add_f32 v{q}, {f2u(1e-5)}, v{q}")
    bf16_round(a, q, q)
    a(f"v_sqrt_f32 v{q}, v{q}")
    bf16_round(a, o+1, q)
    a(f"v_lshrrev_b32 v{o+4}, 2, v{vL}")
    a(f"s_lshl_b32 s{sT0}, s2, 6\ns_lshl_b32 s{sT1}, s{sW}, 4\ns_add_u32 s{sT0}, s{sT0}, s{sT1}\ns_add_u32 s{sT0}, s{sT0}, {STATS}\ns_mov_b32 exec_lo, 1\ns_mov_b32 exec_hi, 1")
    a(f"buffer_store_dwordx2 {P(o)}, v{o+4}, {S(rM)}, s{sT0} offen sc1\ns_mov_b64 exec, -1", tag='early')

def stats_issue(a):
    a(f"s_lshl_b32 s{sT0}, s2, 2\ns_add_u32 s{sT0}, s{sT0}, s{sW}\ns_mul_i32 s{sT0}, s{sT0}, 2560")
    for i in range(5):
        a(f"buffer_load_dwordx2 v[{100+2*i}:{101+2*i}], v11, {S(rX)}, s{sT0} offen offset:{i*256}", tag='st')

def after_kernarg(a, role):
    a("s_waitcnt lgkmcnt(0)")
    srd(a, rF, sDbg, 256)
    if role == 'glu':
        a(f"s_or_b32 s{sT0}, s2, s{sW}\ns_cbranch_scc1 L_nonon\ns_or_b32 s{sT2}, s{sT2}, 1\nv_mov_b32 v12, s{sT2}\ns_mov_b64 exec, 1")
        st = a.state()
        a(f"buffer_store_dword v12, off, {S(rF)}, 0 sc1\ns_mov_b64 exec, -1\nL_nonon:")
        a.set_state(st)
    srd(a, rX, sX, 2048*1280)

def common_srds(a):
    srd(a, rH, sWs, H_SIZE)
    a(f"s_add_u32 s{rM}, s{sWs}, {MISC}\ns_addc_u32 s{rM+1}, s{sWs+1}, 0\ns_mov_b32 s{rM+2}, {MISC_SIZE}\ns_mov_b32 s{rM+3}, 0x20000")
    srd(a, rWd, sWd, 1728*1280)
    srd(a, rC, sCre, 640*1280)
    if STAMP:
        a(f"s_lshl_b32 s82, s2, 2\ns_add_u32 s82, s82, s{sW}\ns_lshl_b32 s82, s82, 7\ns_add_u32 s82, s82, {STAMPS}")
        a(f"v_accvgpr_write_b32 a253, s98\nv_accvgpr_write_b32 a252, s96")
        a(f"buffer_store_dword a253, off, {S(rM)}, s82 offset:{18*4}\nbuffer_store_dword a252, off, {S(rM)}, s82 offset:{19*4}", tag='stamp')

def start_loads(a, role):
    q = [(t, f'c{c}', c, i) for c in range(10) for i, t in enumerate(dma_chunk(role, c))]
    for _ in range(9):
        t = q.pop(0); a(t[0], tag=t[1])
    common_srds(a)
    stamp(a, 0)
    for x, tag in touch(role, 0): a(x, tag=tag)
    if role == 'ssm':
        for i, p in enumerate((sLre, sLim, sLdt)):
            a(f"global_load_ushort v{vLAM+i}, v13, s[{p}:{p+1}]", tag='lam')
    stats_issue(a)
    for _ in range(4):
        t = q.pop(0); a(t[0], tag=t[1])
    if role == 'ssm': lam_setup(a, 20)
    for _ in range(N1):
        t = q.pop(0); a(t[0], tag=t[1])
    stats_compute(a, 100, 120)
    stamp(a, 1)
    return q

def phase2(a):
    NR = 5
    RING = 80
    vBase, vEA, vLA, vLW, vFl, vPo, vBR = 200, 220, 225, 230, 231, 232, 234
    rO, rD = rA, rB
    a("L_p2:")
    srd(a, rD, sD, 1280)
    srd(a, rO, sOut, 2048*2560)
    tid = vT+4
    a(f"s_lshl_b32 s{sT0}, s{sW}, 6\nv_add_u32 v{tid}, s{sT0}, v{vL}")
    a(f"s_lshl_b32 s{sT0}, s{sRT}, 6\ns_mul_i32 s{sT1}, s{sN8}, 20\ns_mov_b32 s{sT2}, {STATS}")
    for i in range(5):
        f, r, c = vT, vT+1, vT+2
        a(f"v_add_u32 v{f}, {256*i}, v{tid}\nv_mul_u32_u24 v{r}, 3277, v{f}\nv_lshrrev_b32 v{r}, 16, v{r}\nv_mul_u32_u24 v{c}, 20, v{r}\nv_sub_u32 v{c}, v{f}, v{c}")
        a(f"v_mul_u32_u24 v{f}, 336, v{r}\nv_lshl_add_u32 v{vLA+i}, v{c}, 4, v{f}")
        a(f"v_add_u32 v{r}, s{sT0}, v{r}\nv_add_u32 v{c}, s{sT1}, v{c}\nv_mul_u32_u24 v{f}, 160, v{r}\nv_add_u32 v{f}, v{f}, v{c}\nv_lshlrev_b32 v{vEA+i}, 4, v{f}")
        a(f"v_lshlrev_b32 v{f}, 3, v{f}\nv_lshlrev_b32 v{c}, 3, v{c}\nv_lshlrev_b32 v{r}, 3, v{r}")
        a(f"buffer_load_dwordx2 {P(8*i)}, v{f}, {S(rX)}, 0 offen", tag='ep')
        a(f"buffer_load_dwordx2 {P(8*i+2)}, v{c}, {S(rD)}, 0 offen", tag='ep')
        a(f"buffer_load_dwordx2 {P(8*i+4)}, v{r}, {S(rM)}, s{sT2} offen sc1", tag='ep')
    j, rb, t = vT, vT+1, vT+2
    a(f"v_lshrrev_b32 v{rb}, 5, v{vL}\nv_mul_u32_u24 v{rb}, 63, v{rb}\nv_add_u32 v{rb}, s{sT0}, v{rb}\nv_lshrrev_b32 v{rb}, 5, v{rb}\nv_mul_u32_u24 v{rb}, 205, v{rb}\nv_lshrrev_b32 v{rb}, 10, v{rb}")
    a(f"v_and_b32 v{j}, 31, v{vL}\ns_lshr_b32 s{sT1}, s{sW}, 1\ns_xor_b32 s{sT1}, s{sT1}, 1\ns_lshl_b32 s{sT2}, s{sW}, 5")
    a(f"v_and_b32 v{t}, 15, v{j}\nv_lshlrev_b32 v{t}, 1, v{t}\nv_add_u32 v{t}, s{sT1}, v{t}")
    a(f"v_and_b32 v{vFl}, 3, v{t}\nv_lshlrev_b32 v{vFl}, 5, v{vFl}\nv_lshrrev_b32 v{t}, 2, v{t}\nv_add3_u32 v{vFl}, v{vFl}, v{t}, 16")
    a(f"v_cmp_gt_u32 vcc, 16, v{j}\nv_add_u32 v{j}, s{sT2}, v{j}\ns_mov_b32 s{sU}, {FLAG2}\nv_cndmask_b32 v{vFl}, v{vFl}, v{j}, vcc\nv_lshl_add_u32 v{vFl}, v{rb}, 7, v{vFl}\nv_lshlrev_b32 v{vFl}, 5, v{vFl}")
    poll = f"buffer_load_dword v{vPo}, v{vFl}, {S(rM)}, s{sU} offen sc1"
    a(poll, tag='po')
    a(f"s_mul_i32 s{sT0}, s{sW}, 21504\nv_and_b32 v{vLW}, 15, v{vL}\nv_mul_u32_u24 v{vLW}, 336, v{vLW}\nv_and_b32 v{vT}, 48, v{vL}\nv_add3_u32 v{vLW}, v{vLW}, v{vT}, s{sT0}")
    a(f"v_add_u32 v{vBR}, s{sReg}, v{vA}\ns_mov_b32 s16, 0x3fff\ns_mov_b32 s17, 0x3fff\ns_mov_b32 s22, 0x3ff0000\ns_mov_b32 s23, 0x3ff0000")
    a.wait(vm='ep')
    for i in range(5):
        x, d, s = 48, 52, 8*i+4
        a(f"v_rcp_f32 v{s+1}, v{s+1}")
        for r, src in ((x, 8*i), (x+2, 8*i+1), (d, 8*i+2), (d+2, 8*i+3)):
            a(f"v_lshlrev_b32 v{r}, 16, v{src}\nv_and_b32 v{r+1}, 0xffff0000, v{src}")
        for h in range(2):
            o = vBase + 4*i + 2*h
            a(f"v_pk_add_f32 {P(o)}, {P(x+2*h)}, {P(s)} op_sel_hi:[1,0]")
            a(f"v_pk_mul_f32 {P(d+2*h)}, {P(d+2*h)}, {P(s)} op_sel:[0,1] op_sel_hi:[1,1]")
            a(f"v_pk_fma_f32 {P(o)}, {P(o)}, {P(d+2*h)}, {P(x+2*h)}")
    a.wait(vm='po')
    stamp(a, 16)
    def chk(m): return f"v_cmp_ne_u32 vcc, s{sNon}, v{vPo}\ns_and_b64 vcc, vcc, s[{m}:{m+1}]"
    spin(a, 'g', poll, chk(16))
    stamp(a, 8)
    def aloads(p):
        st = p % NR
        t = f"s_add_u32 s{sJ1}, s{sAo+(p&3)}, {(p&~3)*4*4096}\n"
        if p >= 20: t += f"s_cmp_ge_u32 s{sJ1}, s{sAlim}\ns_cselect_b32 s{sJ1}, {OOB}, s{sJ1}\n"
        L = [f"buffer_load_dwordx4 {V(RING+16*st+4*q)}, v{vA}, {S(rH)}, s{sJ1} offen offset:{q*1024} sc1" for q in range(4)]
        L[0] = t + L[0]
        return [(x, f'a{p}') for x in L]
    for p in range(NR-1):
        for x, tag in aloads(p): a(x, tag=tag)
    for p in range(24):
        st = p % NR
        nx = p + NR - 1
        fill = []
        if nx == 9: fill += [(poll, 'po')]
        if nx == 12: fill += [('SSMCHK', None)]
        if nx < 24: fill += aloads(nx)
        if p in (10, 11): fill += b2_items(p + 12)
        if 10 <= p < 18:
            fill += [(f"ds_read_b128 {A(20*(p-10)+4*q)}, v{vBR} offset:{(p-10)*5120+q*1024}", f'l{p+2}') for q in range(5)]
        if p == 21: fill += [('s_barrier', None)]
        a.wait(vm=[f'a{p}', f'b{p}'], lg=f'l{p}')
        k, d = b2_dest(p)
        if k == 'l': k, d = 'a', 20*d
        n = 0
        for mt in range(4):
            for nt in range(5):
                acc = V((mt*5+nt)*4)
                bf = A(d+4*nt) if k == 'a' else V(d+4*nt)
                a(f"v_mfma_f32_16x16x32_bf16 {acc}, {bf}, {V(RING+16*st+4*mt)}, {'0' if p == 0 else acc}")
                if n < len(fill):
                    x, tag = fill[n]
                    if x == 'SSMCHK':
                        a.wait(vm='po'); spin(a, 's', poll, chk(22))
                        stamp(a, 17)
                    else: a(x, tag=tag)
                n += 1
        assert len(fill) <= 20
    stamp(a, 9)
    for mt in range(4):
        for nt in range(5):
            a(f"ds_write_b128 v{vLW}, {V((mt*5+nt)*4)} offset:{mt*16*336 + nt*64}", tag='w')
    a("s_waitcnt lgkmcnt(0)\ns_barrier")
    for i in range(5):
        for w in range(4):
            a(f"ds_read_b128 {V(RING+16*i+4*w)}, v{vLA+i} offset:{w*21504}", tag=f'q{i}')
    for i in range(5):
        a.wait(lg=f'q{i}')
        for w in range(4):
            for h in range(2):
                o = vBase + 4*i + 2*h
                a(f"v_pk_add_f32 {P(o)}, {P(o)}, {P(RING+16*i+4*w+2*h)}")
        a(f"buffer_store_dwordx4 {V(vBase+4*i)}, v{vEA+i}, {S(rO)}, 0 offen")
    stamp(a, 10)
    if STAMP:
        a("s_waitcnt vmcnt(0)"); stamp(a, 11)
        a(f"s_memrealtime s[80:81]\ns_waitcnt lgkmcnt(0)\nv_accvgpr_write_b32 a254, s80\nbuffer_store_dword a254, off, {S(rM)}, s82 offset:{20*4}")
    a("s_endpgm")

def kernel():
    a = Asm()
    a(f"s_cmp_ge_u32 s2, 256\ns_cbranch_scc1 L_end")
    if STAMP: a("s_memtime s[98:99]\ns_memrealtime s[96:97]")
    a(f"s_load_dwordx16 s[8:23], s[0:1], 0\ns_load_dwordx16 s[24:39], s[0:1], 64")
    a(f"s_getpc_b64 s[{rP}:{rP+1}]\nL_pf:\ns_mov_b32 s{rP+2}, L_end-L_pf\ns_mov_b32 s{rP+3}, 0x20000")
    a(f"s_lshr_b32 s{sT1}, s2, 3\ns_lshl_b32 s{sT0}, s{sT1}, 11\nv_lshlrev_b32 v1, 7, v0\nv_cmp_gt_u32 vcc, 16, v0\nv_mov_b32 v2, {OOB}\nv_add_u32 v1, s{sT0}, v1\nv_cndmask_b32 v1, v2, v1, vcc")
    a(f"buffer_load_dword a{aDUM}, v1, {S(rP)}, 0 offen", tag='pf')
    a(f"v_and_b32 v{vL}, 63, v0\nv_lshrrev_b32 v1, 6, v0\nv_lshlrev_b32 v{vA}, 4, v{vL}\nv_readfirstlane_b32 s{sW}, v1")
    a(f"""s_mov_b32 s{sSpin}, 0
s_and_b32 s{sT0}, s2, 7
s_mul_i32 s{sTile}, s{sT0}, 31
s_add_u32 s{sTile}, s{sTile}, s{sT1}
s_mul_i32 s{sG}, s{sTile}, 9363
s_lshr_b32 s{sG}, s{sG}, 16
s_mul_i32 s{sRB}, s{sG}, 7
s_sub_u32 s{sRB}, s{sTile}, s{sRB}
s_sub_u32 s{sT3}, s{sTile}, 133
s_mul_i32 s{sCls}, s{sT3}, 10923
s_lshr_b32 s{sCls}, s{sCls}, 16
s_mul_i32 s{sXo}, s{sCls}, 6
s_sub_u32 s{sXo}, s{sT3}, s{sXo}
s_add_u32 s{sXo}, s{sXo}, 7
s_sub_u32 s{sCls}, 18, s{sCls}
s_cmp_ge_u32 s{sTile}, 133
s_cselect_b32 s{sG}, s{sCls}, s{sG}
s_cselect_b32 s{sRB}, s{sXo}, s{sRB}
s_add_u32 s{sCls}, s{sRB}, s{sG}""")
    if Q1 <= 2: a(f"s_and_b32 s{sCls}, s{sCls}, {Q1-1}")
    else: a(f"s_mul_i32 s{sXo}, s{sCls}, {65536//Q1+1}\ns_lshr_b32 s{sXo}, s{sXo}, 16\ns_mul_i32 s{sXo}, s{sXo}, {Q1}\ns_sub_u32 s{sCls}, s{sCls}, s{sXo}")
    a(f"""s_and_b32 s{sKind}, s{sG}, 3
s_cmp_eq_u32 s{sKind}, 2
s_cselect_b32 s{sKind}, 1, 0
s_cmp_eq_u32 s{sTile}, 247
s_cselect_b32 s{sKind}, 2, s{sKind}
s_cselect_b32 s{sG}, 8, s{sG}
s_cmp_eq_u32 s{sT1}, 31
s_cselect_b32 s{sKind}, 2, s{sKind}
s_cselect_b32 s{sG}, s{sT0}, s{sG}""")
    a(f"v_lshrrev_b32 v7, 5, v{vL}\nv_mul_u32_u24 v11, 1280, v7\nv_and_b32 v12, 31, v{vL}\nv_lshl_add_u32 v11, v12, 3, v11")
    st0 = a.state()
    a(f"s_cmp_eq_u32 s{sKind}, 2\ns_cbranch_scc1 L_spare")
    a(f"s_mul_i32 s{sXm}, s{sW}, 5120")
    a(f"v_lshrrev_b32 v2, 3, v{vL}\nv_and_b32 v3, 7, v{vL}")
    a(f"s_lshl_b32 s{sT0}, s{sW}, 2\nv_lshrrev_b32 v4, 1, v2\nv_add_u32 v4, s{sT0}, v4\nv_and_b32 v4, 7, v4\nv_xor_b32 v4, v4, v3\nv_lshlrev_b32 v4, 4, v4")
    a(f"s_mul_i32 s{sT1}, s{sRB}, 160")
    a(f"v_bfe_u32 v5, v{vL}, 3, 2\nv_mul_u32_u24 v5, 5120, v5\nv_lshl_add_u32 v5, v3, 7, v5")
    a(f"v_bfe_u32 v6, v{vL}, 1, 3\nv_xor_b32 v6, v6, v7")
    for s in range(4):
        a(f"v_xor_b32 v8, {2*s}, v6\nv_lshl_add_u32 v{vXR+s}, v8, 4, v5")
    a(f"s_cmp_eq_u32 s{sKind}, 1\ns_cbranch_scc1 L_ssm")
    a(f"s_add_u32 s{sT0}, s{sG}, 2\ns_lshr_b32 s{sT0}, s{sT0}, 2\ns_sub_u32 s{sG}, s{sG}, s{sT0}\ns_lshl_b32 s{sPair}, s{sG}, 2\ns_add_u32 s{sPair}, s{sPair}, s{sW}")
    a(f"s_lshl_b32 s{sT0}, s{sW}, 3\ns_add_u32 s{sT1}, s{sT1}, s{sT0}\nv_add_u32 v8, s{sT1}, v2\nv_mul_u32_u24 v8, 1280, v8\nv_add_u32 v{vXD}, v8, v4")
    for j in range(1, 5):
        a(f"v_add_u32 v{vXD+j}, {j*32*1280 - (j*1024 if j < 4 else 0)}, v{vXD}")
    a(f"s_lshr_b32 s{sT0}, s{sW}, 1\ns_lshl_b32 s{sT2}, s{sG}, 1\ns_add_u32 s{sT2}, s{sT2}, s{sT0}\ns_lshl_b32 s{sKind}, s{sT2}, 7\ns_cmp_ge_u32 s{sT2}, 27\ns_cselect_b32 s{sKind}, {OOB}, s{sKind}")
    a(f"v_bfe_u32 v8, v{vL}, 2, 3\nv_mul_u32_u24 v8, 3456, v8\nv_lshl_add_u32 v8, v7, 6, v8\nv_and_b32 v10, 0x30, v{vA}\nv_add3_u32 v{vWD}, v8, v10, s{sKind}")
    for j in range(1, 4):
        a(f"v_add_u32 v{vWD+j}, {j*(8*3456-1024)}, v{vWD}")
    a(f"s_mul_i32 s{sWm}, s{sT0}, 49152\ns_and_b32 s{sT2}, s{sW}, 1\ns_lshl_b32 s{sT3}, s{sT2}, 13\ns_add_u32 s{sT3}, s{sT3}, s{sWm}\ns_lshl_b32 s{sT2}, s{sT2}, 9\ns_add_u32 s{sT2}, s{sT2}, s{sWm}\ns_add_u32 s{sT2}, s{sT2}, {WB}\ns_add_u32 s{sWm}, s{sT3}, {WB}")
    a(f"v_bfe_u32 v8, v{vL}, 2, 2\nv_lshlrev_b32 v8, 6, v8\nv_lshl_add_u32 v8, v7, 10, v8\nv_and_b32 v10, 1, v{vL}\nv_lshl_add_u32 v8, v10, 5, v8")
    a(f"v_bfe_u32 v10, v{vL}, 4, 1\nv_lshl_add_u32 v8, v10, 4, v8\nv_bfe_u32 v10, v{vL}, 1, 1\nv_lshl_add_u32 v8, v10, 3, v8\nv_add_u32 v{vWR}, s{sT2}, v8")
    a(f"s_memrealtime s[74:75]")
    a("s_waitcnt lgkmcnt(0)")
    a(f"s_mov_b32 s{sT2}, s74")
    after_kernarg(a, 'glu')
    a(f"s_bitcmp1_b32 s{sW}, 0\ns_cselect_b32 s{rA}, s{sWu}, s{sWg}\ns_cselect_b32 s{rA+1}, s{sWu+1}, s{sWg+1}\ns_mov_b32 s{rA+2}, {640*3456}\ns_mov_b32 s{rA+3}, 0x20000")
    q = start_loads(a, 'glu')
    b2 = B2Q()
    mainloop(a, 'glu', q, b2)
    stamp(a, 2)
    epilogue_glu(a, b2)
    b2.emit(a, 999, 22)
    a("s_branch L_p2")
    a.set_state(st0)
    a("L_ssm:")
    a(f"s_lshr_b32 s{sG}, s{sG}, 2\ns_lshl_b32 s{sPair}, s{sG}, 2\ns_add_u32 s{sPair}, s{sPair}, s{sW}")
    a(f"s_lshl_b32 s{sT0}, s{sW}, 1\ns_add_u32 s{sT1}, s{sT1}, s{sT0}\nv_mul_u32_u24 v8, 80, v7\nv_and_b32 v9, 1, v2\nv_mul_u32_u24 v9, 40, v9\nv_bfe_u32 v10, v2, 1, 1")
    a(f"v_add3_u32 v8, v8, v9, v10\nv_add_u32 v8, s{sT1}, v8\nv_mul_u32_u24 v8, 1280, v8\nv_add_u32 v{vXD}, v8, v4")
    for j in range(1, 5):
        a(f"v_add_u32 v{vXD+j}, {j*8*1280 - (j*1024 if j < 4 else 0)}, v{vXD}")
    a(f"s_lshl_b32 s{sT0}, s{sPair}, 5\ns_mul_i32 s{sKind}, s{sT0}, 1280")
    for rg in range(4):
        a(f"v_add_u32 v8, {8*rg}, v2\nv_bfe_u32 v9, v8, 1, 3\nv_xor_b32 v9, v9, v3\nv_add_u32 v8, s{sT0}, v8\nv_mul_u32_u24 v8, 1280, v8\nv_add_u32 v8, {-1024*rg}, v8\nv_lshl_add_u32 v{vWD+rg}, v9, 4, v8")
    a(f"s_mul_i32 s{sWm}, s{sW}, 24576\ns_add_u32 s{sWm}, s{sWm}, {WB}")
    a(f"v_lshlrev_b32 v9, 7, v12\nv_add_u32 v9, s{sWm}, v9")
    for s in range(4):
        a(f"v_xor_b32 v10, {2*s}, v6\nv_lshl_add_u32 v{vWR+s}, v10, 4, v9")
    a(f"v_add_u32 v13, s{sT0}, v12\nv_lshlrev_b32 v13, 1, v13")
    after_kernarg(a, 'ssm')
    srd(a, rA, sBre, 640*1280)
    srd(a, rB, sBim, 640*1280)
    q = start_loads(a, 'ssm')
    b2 = B2Q()
    mainloop(a, 'ssm', q, b2)
    stamp(a, 2)
    epilogue_ssm(a, b2)
    b2.emit(a, 999, 22)
    a("s_branch L_p2")
    a.set_state(st0)
    a("L_spare:")
    after_kernarg(a, 'spare')
    common_srds(a)
    stamp(a, 0)
    stats_issue(a)
    a(f"s_lshl_b32 s{sPair}, s{sG}, 2\ns_add_u32 s{sPair}, s{sPair}, s{sW}\ns_lshl_b32 s{sReg}, s{sW}, 13")
    for i in range(6):
        a(f"s_add_u32 s{sU}, s{sPair}, {1976+36*i}")
        for x, tag in wd_issue(f"s_add_u32 m0, s{sReg}, {i*1024}", f'w{i}'): emit_item(a, x, tag, 'spare')
    stats_compute(a, 100, 120)
    for i in range(6):
        a(f"s_add_u32 s{sU}, s{sPair}, {1976+36*i}\n" + div10(sJ0, sJ1, sU))
        for x, tag in wd_finish(sReg, i*1024, f'w{i}', 4*i): emit_item(a, x, tag, 'spare')
    a(NONCE_LOAD, tag='non')
    nonce_check(a, 'spare')
    a("s_waitcnt vmcnt(0)\ns_barrier")
    for x, tag in flag1_store(): a(x, tag=tag)
    for x, tag in p2_scalars(): a(x)
    a(F1_LOAD, tag='f1')
    flag1_check(a, 'spare')
    a("s_barrier")
    B2Q().emit(a, 999, 22)
    a.set_state(([], [], False))
    phase2(a)
    for t in SLOW: a(t)
    a("L_end:")
    return a

def wrap(name, a):
    return f"""
.text
.globl {name}
.p2align 8
.type {name},@function
{name}:
{a.text()}    s_endpgm
.section .rodata,"a"
.p2align 6
.amdhsa_kernel {name}
  .amdhsa_next_free_vgpr 512
  .amdhsa_next_free_sgpr 102
  .amdhsa_accum_offset 256
  .amdhsa_group_segment_fixed_size 0
  .amdhsa_kernarg_size 128
  .amdhsa_user_sgpr_count 2
  .amdhsa_user_sgpr_kernarg_segment_ptr 1
  .amdhsa_system_sgpr_workgroup_id_x 1
.end_amdhsa_kernel
"""

if __name__ == "__main__":
    out = [x for x in sys.argv[1:] if not x.startswith('--')][0]
    hdr = open('cdna_kernels/' + NAME + '.s.ref').read().split('; Override launch')[0]
    s = hdr
    if '--list' in sys.argv:
        s += f"; @launch kernel={NAME}_kernel grid=(256,1,1) block=(256,1,1) lds={LDS}\n"
    else:
        s += f"; @launch grid=(256,1,1) block=(256,1,1) lds={LDS}\n"
    s += '.amdgcn_target "amdgcn-amd-amdhsa--gfx950"\n'
    k = kernel()
    s += wrap(NAME + "_kernel", k)
    open(out, 'w').write(s)
    print("pads", k.npad, "instrs", len(k.ins))
```

```python
import sys, math, struct
from emit import Asm

NAME = "parallel_sum__ssm_conv_s5__glu_gated_glu__prompt"
def opt(name, default):
    for x in sys.argv:
        if x.startswith(f'--{name}='):
            return type(default)(x.split('=', 1)[1])
    return default
STAMP = '--stamp' in sys.argv
Q1 = opt('q1', 2)
Q2 = opt('q2', 4)
N1 = opt('n1', 8)
DQ = opt('dq', 4)
TOUCH = opt('touch', 1)
B2A = opt('b2a', 1)
B2B = opt('b2b', 4)
B2E = opt('b2e', 3)
B2W = opt('b2w', 10)
B2S = opt('b2s', 20)
PROBE = opt('probe', -2)
PWG = opt('pwg', -1)
LOG2E = 1.4426950408889634
def f2u(x): return "0x%08x" % struct.unpack('<I', struct.pack('<f', x))[0]

H_SIZE = 32*94*4096
MISC = 0x1000000
STATS = 0x400000
FLAG1 = 0x410000
FLAG2 = 0x420000
EOFF = 0x460000
STAMPS = 0x490000
MISC_SIZE = 0x500000
OOB = 0x8000000
SPINMAX = 100000
XB, WB, SPARE, LDS = 0, 61440, 159744, 163840
N8S = 94*5120

sX, sLre, sLim, sBre, sBim, sCre, sCim, sLdt, sD, sWg, sWu, sWd, sOut, sDbg, sWs = 8,10,12,14,16,18,20,22,24,28,30,32,34,36,38
rX, rA, rB, rH, rM, rF, rP, rWd, rC = 40, 44, 48, 52, 56, 60, 84, 88, 92
(sW, sRB, sG, sCls, sXo, sWo, sWo2, sXm, sWm, sT0, sT1, sT2, sT3, sKind, sPair, sSpin) = range(64, 80)
sNon = 83
sTile, sRT, sN8, sReg, sAlim, sBlim = 3, 4, 5, 6, 7, 26
sU = 27
sAo = 96
sBo = 12
sJ0, sJ1 = 100, 101

def srd(a, r, base, size):
    a(f"s_mov_b32 s{r}, s{base}\ns_mov_b32 s{r+1}, s{base+1}\ns_mov_b32 s{r+2}, {size}\ns_mov_b32 s{r+3}, 0x20000")
def S(r, n=4): return f"s[{r}:{r+n-1}]"
def V(r, n=4): return f"v[{r}:{r+n-1}]"
def A(r, n=4): return f"a[{r}:{r+n-1}]"
def P(r): return f"v[{r}:{r+1}]"

def stamp(a, idx):
    if PROBE == idx: a("s_memrealtime s[80:81]\ns_waitcnt lgkmcnt(0)\ns_mov_b32 s1, s80")
    if not STAMP: return
    a(f"s_memtime s[80:81]\ns_waitcnt lgkmcnt(0)\nv_accvgpr_write_b32 a254, s80\ns_add_u32 s81, s82, {idx*4}")
    a(f"buffer_store_dword a254, off, {S(rM)}, s81", tag='stamp')

def bf16_round(a, d, s):
    a(f"v_cvt_pk_bf16_f32 v{d}, v{s}, v{s}\nv_lshlrev_b32 v{d}, 16, v{d}")
def reduce32(a, v, t):
    for sh in (8, 4, 2, 1):
        a(f"v_add_f32_dpp v{v}, v{v}, v{v} row_ror:{sh} row_mask:0xf bank_mask:0xf")
    a(f"v_mov_b32 v{t}, v{v}\nv_permlane16_swap_b32 v{v}, v{t}\nv_add_f32 v{v}, v{v}, v{t}")

XF, WF, vXR, vWR, vXD, vWD, vL, vS, vSt, vA, vT, vLAM = 160, 200, 216, 220, 224, 229, 233, 234, 236, 238, 239, 244
def accg(j): return 32*j
def accu(j): return 32*j + 16
aST = 240
aDUM = 255

def dma_chunk(role, c):
    slot = c % 3
    L = []
    if Q1 == 1: L.append(f"s_mov_b32 s{sT3}, {c}")
    elif Q1 == 2: L.append(f"s_xor_b32 s{sT3}, s{sCls}, {c}")
    else:
        L.append(f"s_add_u32 s{sT3}, s{sCls}, {c}\ns_sub_u32 s{sXo}, s{sT3}, {Q1}\ns_cmp_ge_u32 s{sT3}, {Q1*(c//Q1+1)}\ns_cselect_b32 s{sT3}, s{sXo}, s{sT3}")
    L[-1] += f"\ns_lshl_b32 s{sXo}, s{sT3}, 7"
    if role == 'glu':
        L[-1] += f"\ns_mul_i32 s{sWo}, s{sT3}, {64*3456}\ns_add_u32 s{sWo2}, s{sWo}, {32*3456}"
    def grp(m0, loads):
        loads[0] = m0 + "\n" + loads[0]
        return loads
    x = grp(f"s_add_u32 m0, s{sXm}, {slot*20480}", [f"buffer_load_dwordx4 v{vXD+j}, {S(rX)}, s{sXo} offen offset:{j*1024} lds" for j in range(4)])
    x[0] = L[0] + "\n" + x[0]
    x += grp(f"s_add_u32 m0, s{sXm}, {slot*20480+4096}", [f"buffer_load_dwordx4 v{vXD+4}, {S(rX)}, s{sXo} offen lds"])
    st = 16384 if role == 'glu' else 8192
    o1, o2, r2 = (sWo, sWo2, rA) if role == 'glu' else (sXo, sXo, rB)
    x += grp(f"s_add_u32 m0, s{sWm}, {slot*st}", [f"buffer_load_dwordx4 v{vWD+j}, {S(rA)}, s{o1} offen offset:{j*1024} lds" for j in range(4)])
    x += grp(f"s_add_u32 m0, s{sWm}, {slot*st+4096}", [f"buffer_load_dwordx4 v{vWD+j}, {S(r2)}, s{o2} offen offset:{j*1024} lds" for j in range(4)])
    return x

def reads(role, ks):
    c, s = ks // 4, ks % 4
    slot, b = c % 3, ks & 1
    L = []
    for m in range(2):
        d = WF + b*8 + m*4
        if role == 'glu':
            off = slot*16384 + m*8192 + s*2048
            L.append(f"ds_read_b64_tr_b16 v[{d}:{d+1}], v{vWR} offset:{off}")
            L.append(f"ds_read_b64_tr_b16 v[{d+2}:{d+3}], v{vWR} offset:{off+256}")
        else:
            L.append(f"ds_read_b128 {V(d)}, v{vWR+s} offset:{slot*8192 + m*4096}")
    for j in range(5):
        L.append(f"ds_read_b128 {V(XF + b*20 + j*4)}, v{vXR+s} offset:{slot*20480 + j*1024}")
    return L

def s_ops(ks):
    b = ks & 1
    L = []
    for i in range(4):
        for m in range(2):
            w = WF + b*8 + m*4 + i
            if ks == 0 and i == 0:
                L += [f"v_lshlrev_b32 v{vS+m}, 16, v{w}", f"v_and_b32 v{vSt+1}, 0xffff0000, v{w}", f"v_add_f32 v{vS+m}, v{vS+m}, v{vSt+1}"]
            else:
                L += [f"v_lshlrev_b32 v{vSt}, 16, v{w}", f"v_and_b32 v{vSt+1}, 0xffff0000, v{w}",
                      f"v_add_f32 v{vS+m}, v{vS+m}, v{vSt}", f"v_add_f32 v{vS+m}, v{vS+m}, v{vSt+1}"]
    return L

def lam_setup(a, t0):
    lr, li, dt, zr, zi, t, u0 = range(t0, t0+7)
    a.wait(vm='lam')
    a(f"v_lshlrev_b32 v{lr}, 16, v{vLAM}\nv_lshlrev_b32 v{li}, 16, v{vLAM+1}\nv_lshlrev_b32 v{dt}, 16, v{vLAM+2}")
    a(f"v_mul_f32 v{dt}, {f2u(LOG2E)}, v{dt}\nv_exp_f32 v{dt}, v{dt}")
    bf16_round(a, dt, dt)
    a(f"v_mul_f32 v{zr}, v{dt}, v{lr}\nv_mul_f32 v{zi}, v{dt}, v{li}\nv_mul_f32 v{zr}, {f2u(LOG2E)}, v{zr}\nv_mul_f32 v{zi}, 0.15915494, v{zi}")
    for idx, n in ((0, 1), (4, 40), (6, 80), (8, 160), (10, 320)):
        d = vLAM + idx
        a(f"v_mul_f32 v{t}, {f2u(float(n))}, v{zr}\nv_mul_f32 v{u0}, {f2u(float(n))}, v{zi}\nv_exp_f32 v{t}, v{t}\nv_fract_f32 v{u0}, v{u0}")
        a(f"v_cos_f32 v{d}, v{u0}\nv_sin_f32 v{d+1}, v{u0}\nv_mul_f32 v{d}, v{d}, v{t}\nv_mul_f32 v{d+1}, v{d+1}, v{t}")
    c = vLAM + 2
    a(f"v_mul_f32 v{t}, v{lr}, v{lr}\nv_fmac_f32 v{t}, v{li}, v{li}\nv_rcp_f32 v{t}, v{t}\nv_add_f32 v{u0}, -1.0, v{vLAM}")
    a(f"v_mul_f32 v{c}, v{u0}, v{lr}\nv_fmac_f32 v{c}, v{vLAM+1}, v{li}\nv_mul_f32 v{c+1}, v{vLAM+1}, v{lr}\nv_fma_f32 v{c+1}, -v{u0}, v{li}, v{c+1}")
    a(f"v_add_f32 v{t}, v{t}, v{t}\nv_mul_f32 v{c}, v{c}, v{t}\nv_mul_f32 v{c+1}, v{c+1}, v{t}")

def cmul_add(a, d, x, l, add):
    a(f"v_pk_fma_f32 {P(d)}, {P(x)}, {P(l)}, {P(add)} op_sel:[0,0,0] op_sel_hi:[1,0,1]")
    a(f"v_pk_fma_f32 {P(d)}, {P(x)}, {P(l)}, {P(d)} op_sel:[1,1,0] op_sel_hi:[0,1,1] neg_lo:[1,0,0]")

def div10(d, r, src):
    return f"s_mul_i32 s{d}, s{src}, 6554\ns_lshr_b32 s{d}, s{d}, 16\ns_mul_i32 s{r}, s{d}, 10\ns_sub_u32 s{r}, s{src}, s{r}"

def wd_issue(ldsoff_expr, tag):
    return [(div10(sJ0, sJ1, sU), None),
            (f"v_lshrrev_b32 v{vT}, 3, v{vL}", None), (f"v_mul_u32_u24 v{vT}, 1280, v{vT}", None), (f"v_and_b32 v{vT+1}, 0x70, v{vA}", None), (f"v_add_u32 v{vT}, v{vT}, v{vT+1}", None),
            ('M0FREE', None),
            (f"s_mul_i32 s{sT0}, s{sJ0}, {8*1280}\ns_lshl_b32 s{sT1}, s{sJ1}, 7\ns_add_u32 s{sT0}, s{sT0}, s{sT1}\n{ldsoff_expr}\ns_nop 0\nbuffer_load_dwordx4 v{vT}, {S(rWd)}, s{sT0} offen lds", tag)]
def wd_finish(ldsbase_s, ldsoff, tag, adst):
    return [(f"v_bfe_u32 v{vT}, v{vL}, 2, 2", None), (f"v_lshlrev_b32 v{vT}, 7, v{vT}", None), (f"v_lshrrev_b32 v{vT+1}, 4, v{vL}", None), (f"v_lshl_add_u32 v{vT}, v{vT+1}, 5, v{vT}", None),
            (f"v_and_b32 v{vT+2}, 3, v{vL}", None), (f"v_lshlrev_b32 v{vT+2}, 3, v{vT+2}", None), (f"v_add3_u32 v{vT}, v{vT}, v{vT+2}, s{ldsbase_s}", None),
            ('WAITVM', tag),
            (f"ds_read_b64_tr_b16 {A(adst,2)}, v{vT} offset:{ldsoff}", 'rp'), (f"ds_read_b64_tr_b16 {A(adst+2,2)}, v{vT} offset:{ldsoff+512}", 'rp'),
            (f"s_lshl_b32 s{sT0}, s{sJ1}, 2\nv_add_u32 v{vT+1}, s{sT0}, v{vT+1}", None),
            (f"v_mul_u32_u24 v{vT+2}, 13, v{vT+1}", None), (f"v_lshrrev_b32 v{vT+2}, 6, v{vT+2}", None), (f"v_mul_u32_u24 v{vT+2}, {N8S-5120}, v{vT+2}", None),
            (f"v_lshl_add_u32 v{vT+2}, v{vT+1}, 10, v{vT+2}", None), (f"v_and_b32 v{vT+1}, 0xf0, v{vA}", None), (f"v_add_u32 v{vT+2}, v{vT+2}, v{vT+1}", None),
            ('WAITLG', 'rp'),
            (f"s_lshr_b32 s{sT0}, s{sJ0}, 2\ns_mul_i32 s{sT0}, s{sT0}, 5120\ns_and_b32 s{sT1}, s{sJ0}, 3\ns_lshl_b32 s{sT1}, s{sT1}, 8\ns_add_u32 s{sT0}, s{sT0}, s{sT1}\n"
             f"s_cmp_ge_u32 s{sJ0}, 216\ns_cselect_b32 s{sT0}, {OOB}, s{sT0}\nbuffer_store_dwordx4 {A(adst)}, v{vT+2}, {S(rM)}, s{sT0} offen sc1", 'early')]
def c_decode():
    return f"s_lshl_b32 s{sT2}, s{sTile}, 2\ns_add_u32 s{sT2}, s{sT2}, s{sW}\n" + div10(sT0, sT1, sT2)
def c_issue(adst):
    return [(f"v_and_b32 v{vT+3}, 15, v{vL}", None), (f"v_mul_u32_u24 v{vT+3}, 1280, v{vT+3}", None), (f"v_and_b32 v{vT+4}, 48, v{vL}", None), (f"v_add_u32 v{vT+3}, v{vT+3}, v{vT+4}", None),
            (c_decode() + f"\ns_cmp_ge_u32 s{sT0}, 40\ns_cselect_b32 s{rC}, s{sCim}, s{sCre}\ns_cselect_b32 s{rC+1}, s{sCim+1}, s{sCre+1}\ns_cselect_b32 s{sT2}, 40, 0\n"
             f"s_sub_u32 s{sT0}, s{sT0}, s{sT2}\ns_mul_i32 s{sT0}, s{sT0}, {16*1280}\ns_lshl_b32 s{sT1}, s{sT1}, 7\ns_add_u32 s{sT0}, s{sT0}, s{sT1}\n"
             f"buffer_load_dwordx4 {A(adst)}, v{vT+3}, {S(rC)}, s{sT0} offen\nbuffer_load_dwordx4 {A(adst+4)}, v{vT+3}, {S(rC)}, s{sT0} offen offset:64", 'cj')]
def c_finish(adst):
    return [('WAITVM', 'cj'),
            (c_decode() + f"\ns_mul_i32 s{sT1}, s{sT1}, {4*5120}\ns_add_u32 s{sT1}, s{sT1}, {54*5120}\ns_cmp_ge_u32 s{sT0}, 80\ns_cselect_b32 s{sT1}, {OOB}, s{sT1}\n"
             f"s_cmp_ge_u32 s{sT0}, 40\ns_cselect_b32 s{sT2}, {5120 - 40*1024 - 8*(N8S-5120)}, 0\ns_add_u32 s{sT1}, s{sT1}, s{sT2}\n"
             f"s_mul_i32 s{sT2}, s{sT0}, 205\ns_lshr_b32 s{sT2}, s{sT2}, 10\ns_mul_i32 s{sT2}, s{sT2}, {N8S-5120}\ns_lshl_b32 s{sT0}, s{sT0}, 10\ns_add_u32 s{sT1}, s{sT1}, s{sT2}\ns_add_u32 s{sT1}, s{sT1}, s{sT0}\n"
             f"s_add_u32 s{sT0}, s{sT1}, 10240\n"
             f"buffer_store_dwordx4 {A(adst)}, v{vA}, {S(rM)}, s{sT1} offen sc1\nbuffer_store_dwordx4 {A(adst+4)}, v{vA}, {S(rM)}, s{sT0} offen sc1", 'early')]

def touch(role, p):
    if not TOUCH: return []
    if role == 'glu':
        return [(f"s_mul_i32 s{sT0}, s{sRB}, 15\ns_add_u32 s{sT0}, s{sT0}, {192*p}\nv_add_u32 v{vT+3}, s{sT0}, v{vL}", None), (f"v_mul_u32_u24 v{vT+3}, 3456, v{vT+3}", None),
                (f"v_mov_b32 v{vT+4}, {OOB}", None), (f"v_cmp_gt_u32 vcc, 15, v{vL}\nv_add_u32 v{vT+3}, s{sKind}, v{vT+3}\ns_nop 0\nv_cndmask_b32 v{vT+3}, v{vT+4}, v{vT+3}, vcc", None),
                (f"buffer_load_dword a{aDUM}, v{vT+3}, {S(rA)}, 0 offen", 'touch')]
    else:
        return [(f"s_lshl_b32 s{sT0}, s{sRB}, 3\ns_add_u32 s{sT0}, s{sT0}, {96*p}\nv_add_u32 v{vT+3}, s{sT0}, v{vL}", None),
                (f"v_and_b32 v{vT+4}, 31, v{vT+3}", None), (f"v_mul_u32_u24 v{vT+4}, 1280, v{vT+4}", None), (f"v_lshrrev_b32 v{vT+3}, 5, v{vT+3}", None), (f"v_min_u32 v{vT+3}, 9, v{vT+3}", None),
                (f"v_lshl_add_u32 v{vT+3}, v{vT+3}, 7, v{vT+4}", None), (f"v_mov_b32 v{vT+4}, {OOB}", None),
                (f"v_cmp_gt_u32 vcc, 8, v{vL}\nv_add_u32 v{vT+3}, s{sKind}, v{vT+3}\ns_nop 0\nv_cndmask_b32 v{vT+3}, v{vT+4}, v{vT+3}, vcc", None),
                (f"buffer_load_dword a{aDUM}, v{vT+3}, {S(rA)}, 0 offen\nbuffer_load_dword a{aDUM}, v{vT+3}, {S(rB)}, 0 offen", 'touch')]

VB2 = 160
def b2_dest(p):
    if p < 12: return ('a', 20*p)
    if p < 20: return ('l', p-12)
    if p < 22: return ('v', VB2 + 20*(p-20))
    return ('a', 20*(p-22+8))
def b2_items(p):
    k, d = b2_dest(p)
    pre = f"s_add_u32 s{sJ0}, s{sBo+(p&3)}, {(p&~3)*4*5120}"
    if p >= 20: pre += f"\ns_cmp_ge_u32 s{sJ0}, s{sBlim}\ns_cselect_b32 s{sJ0}, {OOB}, s{sJ0}"
    L = []
    for q in range(5):
        so = sJ0
        t = ""
        if q == 0: t = pre + "\n"
        if q == 4: t = f"s_add_u32 s{sJ0}, s{sJ0}, 4096\n"
        off = f" offset:{q*1024}" if 0 < q < 4 else ""
        if k == 'l':
            if q in (0, 4): t += f"s_add_u32 m0, s{sReg}, {d*5120 + q*1024}\n"
            t += f"buffer_load_dwordx4 v{vA}, {S(rM)}, s{so} offen{off} sc1 lds"
        else:
            r = A(d+4*q) if k == 'a' else V(d+4*q)
            t += f"buffer_load_dwordx4 {r}, v{vA}, {S(rM)}, s{so} offen{off} sc1"
        L.append((t, f'b{p}'))
    return L
class B2Q:
    def __init__(self): self.q = [x for p in range(22) for x in b2_items(p)]; self.i = 0
    def take(self, n, maxpos):
        out = []
        while n > 0 and self.i < min(len(self.q), 5*maxpos):
            out.append(self.q[self.i]); self.i += 1; n -= 1
        return out
    def emit(self, a, n, maxpos):
        for t, tag in self.take(n, maxpos): a(t, tag=tag)

def p2_scalars():
    t = f"""s_and_b32 s{sT0}, s2, 7
s_lshl_b32 s{sT0}, s{sT0}, 2
s_bfe_u32 s{sT1}, s2, 0x20003
s_add_u32 s{sRT}, s{sT0}, s{sT1}
s_lshr_b32 s{sN8}, s2, 5
s_mul_i32 s{sReg}, s{sW}, 40960
s_add_u32 s{sT0}, s{sRT}, 1
s_mul_i32 s{sAlim}, s{sT0}, {94*4096}
s_add_u32 s{sT0}, s{sN8}, 1
s_mul_i32 s{sBlim}, s{sT0}, {N8S}"""
    L = [(t, None)]
    for j in range(4):
        L.append((f"""s_add_u32 s{sT0}, s{sRT}, s{sN8}
s_and_b32 s{sT0}, s{sT0}, {Q2-1}
s_xor_b32 s{sT0}, s{sT0}, {j}
s_lshl_b32 s{sT0}, s{sT0}, 2
s_add_u32 s{sT0}, s{sT0}, s{sW}
s_sub_u32 s{sT0}, s{sT0}, 94
s_lshl_b32 s{sT1}, s{sT0}, 12
s_add_u32 s{sAo+j}, s{sAlim}, s{sT1}
s_mul_i32 s{sT1}, s{sT0}, 5120
s_add_u32 s{sBo+j}, s{sBlim}, s{sT1}""", None))
    return L

SLOW = []
def spin(a, name, load, check):
    a(f"L_chk_{name}:\n{check}\ns_cbranch_vccnz L_slow_{name}\nL_go_{name}:")
    SLOW.append(f"L_slow_{name}:\ns_add_u32 s{sSpin}, s{sSpin}, 1\ns_cmp_gt_u32 s{sSpin}, {SPINMAX}\ns_cbranch_scc1 L_go_{name}\ns_sleep 2\n{load}\ns_waitcnt vmcnt(0)\ns_branch L_chk_{name}")

NONCE_LOAD = f"buffer_load_dword v{vT+4}, off, {S(rF)}, 0 sc1"
def nonce_check(a, role):
    a.wait(vm='non')
    spin(a, 'non_' + role, NONCE_LOAD, f"v_cmp_eq_u32 vcc, 0, v{vT+4}")
    a(f"v_readfirstlane_b32 s{sNon}, v{vT+4}")
def flag1_store():
    return [(f"v_mov_b32 v{vT}, {OOB}", None), (f"s_lshl_b32 s{sT0}, s{sW}, 6\nv_or_b32 v{vT+1}, s{sT0}, v{vL}", None),
            (f"v_cmp_eq_u32 vcc, 0, v{vT+1}\nv_mov_b32 v{vT+2}, s{sNon}\ns_nop 0\nv_cndmask_b32 v{vT}, v{vT}, v{vT+1}, vcc", None),
            (f"s_lshl_b32 s{sT0}, s2, 4\ns_add_u32 s{sT0}, s{sT0}, {FLAG1}\nbuffer_store_dword v{vT+2}, v{vT}, {S(rM)}, s{sT0} offen sc1", 'flag')]
F1_LOAD = f"s_lshl_b32 s{sT0}, s{sW}, 10\ns_add_u32 s{sT0}, s{sT0}, {FLAG1}\nbuffer_load_dword v{vT+4}, v{vA}, {S(rM)}, s{sT0} offen sc1"
def flag1_check(a, role):
    a.wait(vm='f1')
    spin(a, 'f1_' + role, F1_LOAD, f"v_cmp_ne_u32 vcc, s{sNon}, v{vT+4}")

def stat_loads(role):
    L = [(f"s_mul_i32 s{sU}, s{sRB}, {160*8}\ns_add_u32 s{sU}, s{sU}, {STATS}", None)]
    if role == 'glu':
        L += [(f"v_and_b32 v{vT}, 31, v{vL}", None), (f"v_lshlrev_b32 v{vT}, 3, v{vT}", None)]
        L += [(f"buffer_load_dwordx2 {A(aST+2*j,2)}, v{vT}, {S(rM)}, s{sU} offen offset:{j*256} sc1", 'epi') for j in range(5)]
    else:
        L += [(f"v_lshlrev_b32 v{vT}, 3, v{vL}", None)]
        L += [(f"buffer_load_dwordx2 {A(aST+2*j,2)}, v{vT}, {S(rM)}, s{sU} offen offset:{j*512} sc1", 'epi') for j in range(3)]
    return L

def emit_item(a, x, tag, role):
    if x == 'WAITVM': a.wait(vm=tag)
    elif x == 'WAITLG': a.wait(lg=tag)
    elif x == 'NONCE': nonce_check(a, role)
    elif x == 'F1': flag1_check(a, role)
    elif x == 'M0FREE': pass
    else: a(x, tag=tag)

def mainloop(a, role, dq, b2):
    a.wait(vm='c0')
    a("s_barrier")
    stamp(a, 7)
    for r in reads(role, 0): a(r, tag='r0')
    spare_m0 = f"s_lshl_b32 s{sT1}, s{sW}, 10\ns_add_u32 m0, s{sT1}, {SPARE}"
    side = {k: [] for k in range(40)}
    side[0] += [(f"s_lshl_b32 s{sU}, s{sTile}, 2\ns_add_u32 s{sU}, s{sU}, s{sW}\ns_lshl_b32 s{sReg}, s{sW}, 10\ns_add_u32 s{sReg}, s{sReg}, {SPARE}", None)] + wd_issue(spare_m0, 'w1')
    side[1] += touch(role, 1)
    side[2] += c_issue(8)
    f = wd_finish(sReg, 0, 'w1', 0)
    side[4] += f[:10]; side[5] += f[10:]
    side[6] += [(f"s_add_u32 s{sU}, s{sU}, 988", None)] + wd_issue(spare_m0, 'w2')
    side[7] += c_finish(8)
    side[8] += touch(role, 2)
    side[9] += [(NONCE_LOAD, 'non')]
    f = wd_finish(sReg, 0, 'w2', 4)
    side[10] += f[:10]; side[11] += f[10:]
    side[13] += [('NONCE', None)]
    side[14] += touch(role, 3)
    side[16] += flag1_store()
    ps = p2_scalars()
    side[17] += ps[:1]; side[18] += ps[1:2]; side[19] += ps[2:3] + [(F1_LOAD, 'f1')]; side[20] += ps[3:4]; side[21] += ps[4:]
    side[22] += [('F1', None)]
    side[30] += stat_loads(role)
    for ks in range(40):
        c, s = ks // 4, ks % 4
        b = ks & 1
        maxc = (ks + 1)//4 + 2
        dm = []
        while dq and len(dm) < DQ and dq[0][2] <= maxc:
            dm.append(dq.pop(0))
        if any(x == 'M0FREE' for x, _ in side[ks]):
            while dq and dq[0][3] not in (0, 4, 5, 9): dm.append(dq.pop(0))
        extra = list(side[ks])
        if ks >= 24: extra += b2.take(B2A if ks < 33 else B2B, 12)
        so = [(x, None) for x in s_ops(ks)]
        a.wait(lg=f'r{ks}')
        if ks == 13: stamp(a, 14)
        if ks == 26: stamp(a, 15)
        gaps = [[] for _ in range(10)]
        rd = [(x, f'r{ks+1}') for x in reads(role, ks+1)] if ks < 39 else []
        if s == 3: gaps[0].append(('BAR', f'c{c+1}'))
        for i, x in enumerate(rd): gaps[(i*6)//len(rd)].append(x)
        m0side = any(x == 'M0FREE' for x, _ in extra)
        if m0side:
            seq = [(x[0], x[1]) for x in dm] + extra
            for i, x in enumerate(seq): gaps[1 + (i*9)//len(seq)].append(x)
        else:
            for lst in ([(x[0], x[1]) for x in dm], extra):
                for i, x in enumerate(lst): gaps[1 + (i*9)//len(lst)].append(x)
        load = [sum(x.count('\n') + 1 for x, _ in g) for g in gaps]
        tot = sum(load) + len(so)
        k = 0
        for i in range(10):
            want = max(0, round(tot*(i+1)/10) - sum(load[:i+1]) - k) if i < 9 else len(so) - k
            gaps[i] += so[k:k+want]; k += min(want, len(so) - k)
        for i in range(10):
            j, m = i // 2, i % 2
            acc = V(accg(j) + 16*m, 16)
            xf = V(XF + b*20 + j*4); wf = V(WF + b*8 + m*4)
            o = f"{wf}, {xf}" if role == 'glu' else f"{xf}, {wf}"
            a(f"v_mfma_f32_32x32x16_bf16 {acc}, {o}, {'0' if ks == 0 else acc}")
            for (x, tag) in gaps[i]:
                if x == 'BAR':
                    a.wait(vm=[tag, 'early'] if c+1 == 4 else tag)
                    a("s_barrier")
                else:
                    emit_item(a, x, tag, role)
    assert not dq

def flag2_store(a, slot_expr):
    a(slot_expr)
    a(f"s_lshl_b32 s{sT1}, s{sRB}, 2\ns_add_u32 s{sT1}, s{sT1}, s{sW}\ns_lshl_b32 s{sT1}, s{sT1}, 5\ns_add_u32 s{sT0}, s{sT0}, s{sT1}\ns_lshl_b32 s{sT0}, s{sT0}, 5\ns_add_u32 s{sT0}, s{sT0}, {FLAG2}")
    a(f"v_mov_b32 v{vT}, s{sNon}\ns_mov_b64 exec, 1")
    a.wait(vm='hst')
    a(f"buffer_store_dword v{vT}, off, {S(rM)}, s{sT0} sc1\ns_mov_b64 exec, -1", tag='flag')

def epilogue_glu(a, b2):
    vSG, vRC, vO, vAd = XF, XF+32, 212, 228
    a(f"v_permlane32_swap_b32 v{vS}, v{vS+1}\nv_lshrrev_b32 v{vT}, 2, v{vA}\ns_add_u32 s{sT0}, s{sReg}, 36864\nv_add_u32 v{vT}, s{sT0}, v{vT}\nv_add_f32 v{vS}, v{vS}, v{vS+1}")
    a(f"ds_write_b32 v{vT}, v{vS}", tag='sw')
    a(f"v_lshrrev_b32 v{vT+1}, 5, v{vL}\nv_lshlrev_b32 v{vT+2}, 4, v{vT+1}\nv_add_u32 v{vT+2}, s{sT0}, v{vT+2}")
    a.wait(vm='epi')
    for j in range(5):
        a(f"v_accvgpr_read_b32 v{vRC+4*j+2}, a{aST+2*j+1}\nv_accvgpr_read_b32 v{vRC+4*j}, a{aST+2*j}\nv_rcp_f32 v{vRC+4*j+1}, v{vRC+4*j+2}")
    a.wait(lg='sw')
    for m in range(2):
        for q in range(4):
            a(f"ds_read_b128 {V(vSG+16*m+4*q)}, v{vT+2} offset:{m*128+q*32}", tag='sr')
    for j in range(5): a(f"v_mul_f32 v{vRC+4*j+1}, {f2u(-LOG2E)}, v{vRC+4*j+1}")
    a(f"v_and_b32 v{vT+3}, 0xf0, v{vA}\nv_lshl_add_u32 v{vT+3}, v{vT+1}, 9, v{vT+3}\nv_bfe_u32 v{vT+4}, v{vL}, 4, 1\nv_lshl_add_u32 v{vAd}, v{vT+4}, 10, v{vT+3}")
    a(f"s_lshl_b32 s{sT2}, s{sPair}, 12\ns_cmp_ge_u32 s{sPair}, 54\ns_cselect_b32 s{sT2}, {OOB}, s{sT2}")
    a.wait(lg='sr')
    for j in range(5):
        rc = vRC + 4*j
        o = vO + (j & 1)*8
        a(f"s_mul_i32 s{sT0}, s{sRB}, 5\ns_add_u32 s{sT0}, s{sT0}, {j}\ns_lshr_b32 s{sT1}, s{sT0}, 1\ns_mul_i32 s{sT1}, s{sT1}, {94*4096}")
        a(f"s_and_b32 s{sT0}, s{sT0}, 1\ns_lshl_b32 s{sT0}, s{sT0}, 11\ns_add_u32 s{sT1}, s{sT1}, s{sT0}\ns_add_u32 s{sT1}, s{sT1}, s{sT2}")
        for half in range(2):
            ps = range(half*4, half*4+4)
            g = lambda p: P(accg(j)+2*p)
            u = lambda p: P(accu(j)+2*p)
            ex = b2.take(B2E, 20)
            def slip(k):
                for t, tag in ex[k::3]: pass
            for p in ps: a(f"v_pk_fma_f32 {g(p)}, {P(vSG+2*p)}, {P(rc)}, {g(p)} op_sel_hi:[1,0,1]")
            for p in ps: a(f"v_pk_mul_f32 {g(p)}, {g(p)}, {P(rc)} op_sel:[0,1] op_sel_hi:[1,1]")
            n3 = (len(ex) + 2)//3
            for t, tag in ex[:n3]: a(t, tag=tag)
            for p in ps: a(f"v_exp_f32 v{accg(j)+2*p}, v{accg(j)+2*p}\nv_exp_f32 v{accg(j)+2*p+1}, v{accg(j)+2*p+1}")
            for p in ps: a(f"v_pk_fma_f32 {u(p)}, {P(vSG+16+2*p)}, {P(rc)}, {u(p)} op_sel_hi:[1,0,1]")
            for t, tag in ex[n3:2*n3]: a(t, tag=tag)
            for p in ps: a(f"v_pk_fma_f32 {g(p)}, {g(p)}, {P(rc+2)}, {P(rc+2)} op_sel_hi:[1,0,0]")
            for p in ps: a(f"v_rcp_f32 v{accg(j)+2*p}, v{accg(j)+2*p}\nv_rcp_f32 v{accg(j)+2*p+1}, v{accg(j)+2*p+1}")
            for t, tag in ex[2*n3:]: a(t, tag=tag)
            for p in ps: a(f"v_pk_mul_f32 {u(p)}, {u(p)}, {g(p)}")
            for p in ps: a(f"v_cvt_pk_bf16_f32 v{o+p}, v{accu(j)+2*p}, v{accu(j)+2*p+1}")
            a(f"buffer_store_dwordx4 {V(o+half*4)}, v{vAd}, {S(rH)}, s{sT1} offen offset:{half*256} sc1", tag='hst')
    stamp(a, 5)
    b2.emit(a, B2W, 22)
    flag2_store(a, f"s_mov_b32 s{sT0}, s{sG}")
    stamp(a, 6)

def epilogue_ssm(a, b2):
    lam, cc, l40, l80, l160, l320 = [vLAM + 2*i for i in range(6)]
    vG, vRT, vE, vX = XF+2, XF+12, XF+28, 212
    TB, TAB = 15360, 36864
    a(f"v_permlane32_swap_b32 v{vS}, v{vS+1}\nv_add_f32 v{vS}, v{vS}, v{vS+1}\nv_mov_b32 v{vS+1}, v{vS}\nv_permlane32_swap_b32 v{vS}, v{vS+1}")
    a(f"s_add_u32 s{sT0}, s{sReg}, {TAB}")
    a.wait(vm='epi')
    for j in range(3):
        t, sg, ad, r, nm = vX, vX+1, vX+2, vX+3, vX+4
        a(f"v_accvgpr_read_b32 v{r}, a{aST+2*j+1}\nv_accvgpr_read_b32 v{nm}, a{aST+2*j}\nv_rcp_f32 v{r}, v{r}")
        a(f"v_add_u32 v{t}, {64*j}, v{vL}\nv_mul_u32_u24 v{sg}, 1639, v{t}\nv_lshrrev_b32 v{sg}, 16, v{sg}")
        a(f"v_add_u32 v{ad}, 1, v{sg}\nv_lshrrev_b32 v{ad}, 1, v{ad}\nv_mul_u32_u24 v{ad}, 40, v{ad}\nv_sub_u32 v{ad}, v{t}, v{ad}")
        a(f"v_lshlrev_b32 v{ad}, 4, v{ad}\nv_and_b32 v{sg}, 1, v{sg}\nv_lshl_add_u32 v{ad}, v{sg}, 2, v{ad}\nv_add_u32 v{ad}, s{sT0}, v{ad}\nv_mul_f32 v{nm}, v{nm}, v{r}")
        a(f"ds_write2_b32 v{ad}, v{r}, v{nm} offset0:0 offset1:2", tag='sw')
    vRA = vX + 5
    a(f"v_lshrrev_b32 v{vRA}, 5, v{vL}\nv_mul_u32_u24 v{vRA}, 640, v{vRA}\nv_add_u32 v{vRA}, s{sT0}, v{vRA}")
    a.wait(lg='sw')
    re = lambda i: accg(i // 8) + 2*(i % 8)
    im = lambda i: accu(i // 8) + 2*(i % 8)
    for i in range(3): a(f"ds_read_b128 {V(vRT+4*i)}, v{vRA} offset:{16*i}", tag=f't{i}')
    gr, gi, ar, ai = vG, vG+2, vG+4, vG+6
    def ufix(i):
        rt = vRT + 4*(i % 4)
        a.wait(lg=f't{i}')
        a(f"v_pk_mul_f32 {P(re(i))}, {P(re(i))}, {P(rt)}\nv_pk_mul_f32 {P(im(i))}, {P(im(i))}, {P(rt)}")
        a(f"v_pk_fma_f32 {P(re(i))}, {P(rt+2)}, {P(vS)}, {P(re(i))} op_sel_hi:[1,0,1]")
        a(f"v_pk_fma_f32 {P(im(i))}, {P(rt+2)}, {P(vS)}, {P(im(i))} op_sel:[0,1,0] op_sel_hi:[1,1,1]")
        if i + 3 < 40: a(f"ds_read_b128 {V(vRT+4*((i+3)%4))}, v{vRA} offset:{16*(i+3)}", tag=f't{i+3}')
    def step(pr, pi, ur, ui, dr, di):
        a(f"v_pk_fma_f32 {P(dr)}, {P(pr)}, {P(lam)}, {P(ur)} op_sel_hi:[1,0,1]")
        a(f"v_pk_fma_f32 {P(di)}, {P(pi)}, {P(lam)}, {P(ui)} op_sel_hi:[1,0,1]")
        a(f"v_pk_fma_f32 {P(dr)}, {P(pi)}, {P(lam)}, {P(dr)} op_sel:[0,1,0] op_sel_hi:[1,1,1] neg_lo:[0,1,0] neg_hi:[0,1,0]")
        a(f"v_pk_fma_f32 {P(di)}, {P(pr)}, {P(lam)}, {P(di)} op_sel:[0,1,0] op_sel_hi:[1,1,1]")
    ufix(0)
    cur = (re(0), im(0))
    done = 0
    for i in range(1, 40):
        ufix(i)
        nxt = (gr, gi) if cur != (gr, gi) else (ar, ai)
        step(cur[0], cur[1], re(i), im(i), nxt[0], nxt[1])
        cur = nxt
        want = min(B2S, (B2S*i)//30)
        b2.emit(a, want - done, 15); done = want
    e0, e1, eh, eo, ef = vX, vX+2, vX+6, vX+8, vX+12
    a(f"v_mov_b32 v{e0}, v{cur[0]}\nv_mov_b32 v{e0+1}, v{cur[1]}\nv_mov_b32 v{e1}, v{cur[0]+1}\nv_mov_b32 v{e1+1}, v{cur[1]+1}")
    cmul_add(a, eh, e0, l40, e1)
    a(f"v_mov_b32 v{eo}, v{eh}\nv_mov_b32 v{eo+1}, v{eh+1}\nv_mov_b32 v{ef+2}, s{sNon}\nv_mov_b32 v{ef+3}, 0")
    a(f"v_permlane32_swap_b32 v{eh}, v{eo}\nv_permlane32_swap_b32 v{eh+1}, v{eo+1}")
    a(f"s_mul_i32 s{sT0}, s{sPair}, 13\ns_add_u32 s{sT1}, s{sT0}, s{sRB}\ns_lshl_b32 s{sT1}, s{sT1}, 9\ns_add_u32 s{sT1}, s{sT1}, {EOFF}")
    cmul_add(a, ef, eh, l80, eo)
    a(f"s_mov_b32 exec_hi, 0\nbuffer_store_dwordx4 {V(ef)}, v{vA}, {S(rM)}, s{sT1} offen sc1\ns_mov_b64 exec, -1", tag='epub')
    stamp(a, 3)
    vA6, vK6, vPA = vRT, vRT+6, vX+10
    a(f"s_lshl_b32 s{sU}, s{sT0}, 9\ns_add_u32 s{sU}, s{sU}, {EOFF}")
    a(f"v_lshrrev_b32 v{vPA}, 5, v{vL}\nv_sub_u32 v{vPA}, s{sRB}, v{vPA}\nv_mov_b32 v{vPA+1}, {OOB}\nv_and_b32 v{vT}, 0x1f0, v{vA}\nv_mov_b32 v{vT+2}, s{sNon}")
    for m in range(6):
        a(f"v_add_u32 v{vT+1}, {-(1+2*m)}, v{vPA}\nv_cmp_le_i32 vcc, 0, v{vT+1}\nv_lshl_add_u32 v{vT+1}, v{vT+1}, 9, v{vT}")
        a(f"v_cndmask_b32 v{vA6+m}, v{vPA+1}, v{vT+1}, vcc\nv_cndmask_b32 v{vK6+m}, 0, v{vT+2}, vcc")
    polls = "\n".join(f"buffer_load_dwordx4 {V(vE+4*m)}, v{vA6+m}, {S(rM)}, s{sU} offen sc1" for m in range(6))
    for i in range(40):
        t = gr if i & 1 else gi
        if i == 20: a(polls, tag='ep')
        a(f"v_pk_mul_f32 {P(t)}, {P(im(i))}, {P(cc)} op_sel:[0,1] op_sel_hi:[1,1]")
        a(f"v_pk_mul_f32 {P(im(i))}, {P(im(i))}, {P(cc)} op_sel_hi:[1,0]")
        a(f"v_pk_fma_f32 {P(im(i))}, {P(re(i))}, {P(cc)}, {P(im(i))} op_sel:[0,1,0] op_sel_hi:[1,1,1]")
        a(f"v_pk_fma_f32 {P(re(i))}, {P(re(i))}, {P(cc)}, {P(t)} op_sel_hi:[1,0,1] neg_lo:[0,0,1] neg_hi:[0,0,1]")
    vTW, vTR = vX+16, vX+17
    a(f"s_add_u32 s{sT0}, s{sReg}, {TB}")
    a(f"v_and_b32 v{vTW}, 31, v{vL}\nv_mul_u32_u24 v{vTW}, 336, v{vTW}\nv_lshrrev_b32 v{vTR}, 5, v{vL}\nv_mul_u32_u24 v{vTR}, 160, v{vTR}\nv_add3_u32 v{vTW}, v{vTW}, v{vTR}, s{sT0}")
    a(f"v_lshrrev_b32 v{vTR}, 4, v{vL}\nv_lshlrev_b32 v{vTR}, 3, v{vTR}\nv_bfe_u32 v{vT}, v{vL}, 2, 2\nv_add_u32 v{vTR}, v{vTR}, v{vT}\nv_mul_u32_u24 v{vTR}, 336, v{vTR}")
    a(f"v_and_b32 v{vT}, 3, v{vL}\nv_lshlrev_b32 v{vT}, 3, v{vT}\nv_add3_u32 v{vTR}, v{vTR}, v{vT}, s{sT0}")
    a.wait(vm='ep')
    chk = f"v_xor_b32 v{vT}, v{vE+2}, v{vK6}\n" + "".join(f"v_xor_b32 v{vT+1}, v{vE+4*m+2}, v{vK6+m}\nv_or_b32 v{vT}, v{vT}, v{vT+1}\n" for m in range(1, 6)) + f"v_cmp_ne_u32 vcc, 0, v{vT}"
    spin(a, 'e', polls, chk)
    stamp(a, 4)
    cur = vE + 20
    for m in range(4, -1, -1):
        cmul_add(a, vE+4*m, cur, l320, vE+4*m); cur = vE + 4*m
    g0, g1 = ar, ai
    a(f"v_mov_b32 v{g1}, v{cur}\nv_mov_b32 v{g1+1}, v{cur+1}\nv_mov_b32 v{eo}, 0\nv_mov_b32 v{eo+1}, 0\nv_cmp_gt_u32 vcc, 32, v{vL}")
    a(f"v_permlane32_swap_b32 v{cur}, v{g1}\nv_permlane32_swap_b32 v{cur+1}, v{g1+1}")
    cmul_add(a, g0, g1, l160, cur)
    cmul_add(a, eh, g0, l80, eh)
    a(f"v_cndmask_b32 v{g0}, v{eh}, v{g0}, vcc\nv_cndmask_b32 v{g0+1}, v{eh+1}, v{g0+1}, vcc")
    cmul_add(a, e0, g0, l40, e0)
    cmul_add(a, e1, g0, cc, eo)
    cmul_add(a, eh, e0, cc, eo)
    a(f"v_mov_b32 v{gr}, v{e1}\nv_mov_b32 v{gr+1}, v{eh}\nv_mov_b32 v{gi}, v{e1+1}\nv_mov_b32 v{gi+1}, v{eh+1}")
    vPK = vRT
    cur = (gr, gi)
    for i in range(40):
        step(cur[0], cur[1], re(i), im(i), re(i), im(i))
        cur = (re(i), im(i))
        if i % 3 == 0: b2.emit(a, 1, 15)
        if i & 1:
            blk = i // 8
            pk = vPK + (blk & 1)*16 + (i % 8)//2
            for e in range(2):
                a(f"v_cvt_pk_bf16_f32 v{pk+4*e}, v{re(i-1)+e}, v{re(i)+e}")
                a(f"v_cvt_pk_bf16_f32 v{pk+8+4*e}, -v{im(i-1)+e}, -v{im(i)+e}")
            if i % 8 == 7:
                for comp in range(2):
                    for e in range(2):
                        a(f"ds_write_b128 v{vTW}, {V(vPK+(blk&1)*16+comp*8+e*4)} offset:{comp*32*336 + e*80 + blk*16}", tag='tw')
    a(f"s_lshl_b32 s{sT2}, s{sPair}, 1\ns_add_u32 s{sT2}, s{sT2}, 54\ns_lshl_b32 s{sT2}, s{sT2}, 12")
    a.wait(lg='tw')
    def hstore(q):
        a(f"s_mul_i32 s{sT0}, s{sRB}, 10\ns_add_u32 s{sT0}, s{sT0}, {q}\ns_lshr_b32 s{sT1}, s{sT0}, 2\ns_mul_i32 s{sT1}, s{sT1}, {94*4096}")
        a(f"s_and_b32 s{sT0}, s{sT0}, 3\ns_lshl_b32 s{sT0}, s{sT0}, 10\ns_add_u32 s{sT1}, s{sT1}, s{sT0}\ns_add_u32 s{sT1}, s{sT1}, s{sT2}\ns_add_u32 s{sT3}, s{sT1}, 4096")
        a.wait(lg=f'f{q}')
        a(f"buffer_store_dwordx4 {V(8*q)}, v{vA}, {S(rH)}, s{sT1} offen sc1", tag='hst')
        a(f"buffer_store_dwordx4 {V(8*q+4)}, v{vA}, {S(rH)}, s{sT3} offen sc1", tag='hst')
    for q in range(10):
        for comp in range(2):
            d = 8*q + 4*comp
            off = comp*32*336 + q*32
            a(f"ds_read_b64_tr_b16 v[{d}:{d+1}], v{vTR} offset:{off}\nds_read_b64_tr_b16 v[{d+2}:{d+3}], v{vTR} offset:{off+4*336}", tag=f'f{q}')
        if q >= 2: hstore(q-2)
    hstore(8); hstore(9)
    stamp(a, 5)
    b2.emit(a, B2W, 22)
    flag2_store(a, f"s_add_u32 s{sT0}, s{sG}, 16")
    stamp(a, 6)

def stats_compute(a, vin, vt):
    stamp(a, 12)
    a.wait(vm='st')
    stamp(a, 13)
    x = vt
    for i in range(10):
        a(f"v_lshlrev_b32 v{x+2*i}, 16, v{vin+i}\nv_and_b32 v{x+2*i+1}, 0xffff0000, v{vin+i}")
    s = vt + 20
    a(f"v_pk_add_f32 {P(s)}, {P(x)}, {P(x+2)}")
    for i in range(2, 10): a(f"v_pk_add_f32 {P(s)}, {P(s)}, {P(x+2*i)}")
    a(f"v_add_f32 v{s}, v{s}, v{s+1}")
    reduce32(a, s, s+1)
    a(f"v_mul_f32 v{s}, {f2u(-1.0/640)}, v{s}")
    for i in range(10): a(f"v_pk_add_f32 {P(x+2*i)}, {P(x+2*i)}, {P(s)} op_sel_hi:[1,0]")
    q = vt + 22
    a(f"v_pk_mul_f32 {P(q)}, {P(x)}, {P(x)}")
    for i in range(1, 10): a(f"v_pk_fma_f32 {P(q)}, {P(x+2*i)}, {P(x+2*i)}, {P(q)}")
    a(f"v_add_f32 v{q}, v{q}, v{q+1}")
    reduce32(a, q, q+1)
    o = vt
    bf16_round(a, o, s)
    a(f"v_mul_f32 v{q}, {f2u(1.0/640)}, v{q}")
    bf16_round(a, q, q)
    a(f"v_add_f32 v{q}, {f2u(1e-5)}, v{q}")
    bf16_round(a, q, q)
    a(f"v_sqrt_f32 v{q}, v{q}")
    bf16_round(a, o+1, q)
    a(f"v_lshrrev_b32 v{o+4}, 2, v{vL}")
    a(f"s_lshl_b32 s{sT0}, s2, 6\ns_lshl_b32 s{sT1}, s{sW}, 4\ns_add_u32 s{sT0}, s{sT0}, s{sT1}\ns_add_u32 s{sT0}, s{sT0}, {STATS}\ns_mov_b32 exec_lo, 1\ns_mov_b32 exec_hi, 1")
    a(f"buffer_store_dwordx2 {P(o)}, v{o+4}, {S(rM)}, s{sT0} offen sc1\ns_mov_b64 exec, -1", tag='early')

def stats_issue(a):
    a(f"s_lshl_b32 s{sT0}, s2, 2\ns_add_u32 s{sT0}, s{sT0}, s{sW}\ns_mul_i32 s{sT0}, s{sT0}, 2560")
    for i in range(5):
        a(f"buffer_load_dwordx2 v[{100+2*i}:{101+2*i}], v11, {S(rX)}, s{sT0} offen offset:{i*256}", tag='st')

def after_kernarg(a, role):
    a("s_waitcnt lgkmcnt(0)")
    if PROBE != -2: a("s_mov_b32 s0, s80\ns_mov_b32 s1, s80")
    srd(a, rF, sDbg, 256)
    if role == 'glu':
        a(f"s_or_b32 s{sT0}, s2, s{sW}\ns_cbranch_scc1 L_nonon\ns_or_b32 s{sT2}, s{sT2}, 1\nv_mov_b32 v12, s{sT2}\ns_mov_b64 exec, 1")
        st = a.state()
        a(f"buffer_store_dword v12, off, {S(rF)}, 0 sc1\ns_mov_b64 exec, -1\nL_nonon:")
        a.set_state(st)
    srd(a, rX, sX, 2048*1280)

def common_srds(a):
    srd(a, rH, sWs, H_SIZE)
    a(f"s_add_u32 s{rM}, s{sWs}, {MISC}\ns_addc_u32 s{rM+1}, s{sWs+1}, 0\ns_mov_b32 s{rM+2}, {MISC_SIZE}\ns_mov_b32 s{rM+3}, 0x20000")
    srd(a, rWd, sWd, 1728*1280)
    srd(a, rC, sCre, 640*1280)
    if STAMP:
        a(f"s_lshl_b32 s82, s2, 2\ns_add_u32 s82, s82, s{sW}\ns_lshl_b32 s82, s82, 7\ns_add_u32 s82, s82, {STAMPS}")
        a(f"v_accvgpr_write_b32 a253, s98\nv_accvgpr_write_b32 a252, s96")
        a(f"buffer_store_dword a253, off, {S(rM)}, s82 offset:{18*4}\nbuffer_store_dword a252, off, {S(rM)}, s82 offset:{19*4}", tag='stamp')

def start_loads(a, role):
    q = [(t, f'c{c}', c, i) for c in range(10) for i, t in enumerate(dma_chunk(role, c))]
    for _ in range(9):
        t = q.pop(0); a(t[0], tag=t[1])
    common_srds(a)
    stamp(a, 0)
    for x, tag in touch(role, 0): a(x, tag=tag)
    if role == 'ssm':
        for i, p in enumerate((sLre, sLim, sLdt)):
            a(f"global_load_ushort v{vLAM+i}, v13, s[{p}:{p+1}]", tag='lam')
    stats_issue(a)
    for _ in range(4):
        t = q.pop(0); a(t[0], tag=t[1])
    if role == 'ssm': lam_setup(a, 20)
    for _ in range(N1):
        t = q.pop(0); a(t[0], tag=t[1])
    stats_compute(a, 100, 120)
    stamp(a, 1)
    return q

def phase2(a):
    NR = 5
    RING = 80
    vBase, vEA, vLA, vLW, vFl, vPo, vBR = 200, 220, 225, 230, 231, 232, 234
    rO, rD = rA, rB
    a("L_p2:")
    srd(a, rD, sD, 1280)
    srd(a, rO, sOut, 2048*2560)
    tid = vT+4
    a(f"s_lshl_b32 s{sT0}, s{sW}, 6\nv_add_u32 v{tid}, s{sT0}, v{vL}")
    a(f"s_lshl_b32 s{sT0}, s{sRT}, 6\ns_mul_i32 s{sT1}, s{sN8}, 20\ns_mov_b32 s{sT2}, {STATS}")
    for i in range(5):
        f, r, c = vT, vT+1, vT+2
        a(f"v_add_u32 v{f}, {256*i}, v{tid}\nv_mul_u32_u24 v{r}, 3277, v{f}\nv_lshrrev_b32 v{r}, 16, v{r}\nv_mul_u32_u24 v{c}, 20, v{r}\nv_sub_u32 v{c}, v{f}, v{c}")
        a(f"v_mul_u32_u24 v{f}, 336, v{r}\nv_lshl_add_u32 v{vLA+i}, v{c}, 4, v{f}")
        a(f"v_add_u32 v{r}, s{sT0}, v{r}\nv_add_u32 v{c}, s{sT1}, v{c}\nv_mul_u32_u24 v{f}, 160, v{r}\nv_add_u32 v{f}, v{f}, v{c}\nv_lshlrev_b32 v{vEA+i}, 4, v{f}")
        a(f"v_lshlrev_b32 v{f}, 3, v{f}\nv_lshlrev_b32 v{c}, 3, v{c}\nv_lshlrev_b32 v{r}, 3, v{r}")
        a(f"buffer_load_dwordx2 {P(8*i)}, v{f}, {S(rX)}, 0 offen", tag='ep')
        a(f"buffer_load_dwordx2 {P(8*i+2)}, v{c}, {S(rD)}, 0 offen", tag='ep')
        a(f"buffer_load_dwordx2 {P(8*i+4)}, v{r}, {S(rM)}, s{sT2} offen sc1", tag='ep')
    j, rb, t = vT, vT+1, vT+2
    a(f"v_lshrrev_b32 v{rb}, 5, v{vL}\nv_mul_u32_u24 v{rb}, 63, v{rb}\nv_add_u32 v{rb}, s{sT0}, v{rb}\nv_lshrrev_b32 v{rb}, 5, v{rb}\nv_mul_u32_u24 v{rb}, 205, v{rb}\nv_lshrrev_b32 v{rb}, 10, v{rb}")
    a(f"v_and_b32 v{j}, 31, v{vL}\ns_lshr_b32 s{sT1}, s{sW}, 1\ns_xor_b32 s{sT1}, s{sT1}, 1\ns_lshl_b32 s{sT2}, s{sW}, 5")
    a(f"v_and_b32 v{t}, 15, v{j}\nv_lshlrev_b32 v{t}, 1, v{t}\nv_add_u32 v{t}, s{sT1}, v{t}")
    a(f"v_and_b32 v{vFl}, 3, v{t}\nv_lshlrev_b32 v{vFl}, 5, v{vFl}\nv_lshrrev_b32 v{t}, 2, v{t}\nv_add3_u32 v{vFl}, v{vFl}, v{t}, 16")
    a(f"v_cmp_gt_u32 vcc, 16, v{j}\nv_add_u32 v{j}, s{sT2}, v{j}\ns_mov_b32 s{sU}, {FLAG2}\nv_cndmask_b32 v{vFl}, v{vFl}, v{j}, vcc\nv_lshl_add_u32 v{vFl}, v{rb}, 7, v{vFl}\nv_lshlrev_b32 v{vFl}, 5, v{vFl}")
    poll = f"buffer_load_dword v{vPo}, v{vFl}, {S(rM)}, s{sU} offen sc1"
    a(poll, tag='po')
    a(f"s_mul_i32 s{sT0}, s{sW}, 21504\nv_and_b32 v{vLW}, 15, v{vL}\nv_mul_u32_u24 v{vLW}, 336, v{vLW}\nv_and_b32 v{vT}, 48, v{vL}\nv_add3_u32 v{vLW}, v{vLW}, v{vT}, s{sT0}")
    a(f"v_add_u32 v{vBR}, s{sReg}, v{vA}\ns_mov_b32 s16, 0x3fff\ns_mov_b32 s17, 0x3fff\ns_mov_b32 s22, 0x3ff0000\ns_mov_b32 s23, 0x3ff0000")
    a.wait(vm='ep')
    for i in range(5):
        x, d, s = 48, 52, 8*i+4
        a(f"v_rcp_f32 v{s+1}, v{s+1}")
        for r, src in ((x, 8*i), (x+2, 8*i+1), (d, 8*i+2), (d+2, 8*i+3)):
            a(f"v_lshlrev_b32 v{r}, 16, v{src}\nv_and_b32 v{r+1}, 0xffff0000, v{src}")
        for h in range(2):
            o = vBase + 4*i + 2*h
            a(f"v_pk_add_f32 {P(o)}, {P(x+2*h)}, {P(s)} op_sel_hi:[1,0]")
            a(f"v_pk_mul_f32 {P(d+2*h)}, {P(d+2*h)}, {P(s)} op_sel:[0,1] op_sel_hi:[1,1]")
            a(f"v_pk_fma_f32 {P(o)}, {P(o)}, {P(d+2*h)}, {P(x+2*h)}")
    a.wait(vm='po')
    stamp(a, 16)
    def chk(m): return f"v_cmp_ne_u32 vcc, s{sNon}, v{vPo}\ns_and_b64 vcc, vcc, s[{m}:{m+1}]"
    spin(a, 'g', poll, chk(16))
    stamp(a, 8)
    def aloads(p):
        st = p % NR
        t = f"s_add_u32 s{sJ1}, s{sAo+(p&3)}, {(p&~3)*4*4096}\n"
        if p >= 20: t += f"s_cmp_ge_u32 s{sJ1}, s{sAlim}\ns_cselect_b32 s{sJ1}, {OOB}, s{sJ1}\n"
        L = [f"buffer_load_dwordx4 {V(RING+16*st+4*q)}, v{vA}, {S(rH)}, s{sJ1} offen offset:{q*1024} sc1" for q in range(4)]
        L[0] = t + L[0]
        return [(x, f'a{p}') for x in L]
    for p in range(NR-1):
        for x, tag in aloads(p): a(x, tag=tag)
    for p in range(24):
        st = p % NR
        nx = p + NR - 1
        fill = []
        if nx == 9: fill += [(poll, 'po')]
        if nx == 12: fill += [('SSMCHK', None)]
        if nx < 24: fill += aloads(nx)
        if p in (10, 11): fill += b2_items(p + 12)
        if 10 <= p < 18:
            fill += [(f"ds_read_b128 {A(20*(p-10)+4*q)}, v{vBR} offset:{(p-10)*5120+q*1024}", f'l{p+2}') for q in range(5)]
        if p == 21: fill += [('s_barrier', None)]
        a.wait(vm=[f'a{p}', f'b{p}'], lg=f'l{p}')
        k, d = b2_dest(p)
        if k == 'l': k, d = 'a', 20*d
        n = 0
        for mt in range(4):
            for nt in range(5):
                acc = V((mt*5+nt)*4)
                bf = A(d+4*nt) if k == 'a' else V(d+4*nt)
                a(f"v_mfma_f32_16x16x32_bf16 {acc}, {bf}, {V(RING+16*st+4*mt)}, {'0' if p == 0 else acc}")
                if n < len(fill):
                    x, tag = fill[n]
                    if x == 'SSMCHK':
                        a.wait(vm='po'); spin(a, 's', poll, chk(22))
                        stamp(a, 17)
                    else: a(x, tag=tag)
                n += 1
        assert len(fill) <= 20
    stamp(a, 9)
    for mt in range(4):
        for nt in range(5):
            a(f"ds_write_b128 v{vLW}, {V((mt*5+nt)*4)} offset:{mt*16*336 + nt*64}", tag='w')
    a("s_waitcnt lgkmcnt(0)\ns_barrier")
    for i in range(5):
        for w in range(4):
            a(f"ds_read_b128 {V(RING+16*i+4*w)}, v{vLA+i} offset:{w*21504}", tag=f'q{i}')
    for i in range(5):
        a.wait(lg=f'q{i}')
        for w in range(4):
            for h in range(2):
                o = vBase + 4*i + 2*h
                a(f"v_pk_add_f32 {P(o)}, {P(o)}, {P(RING+16*i+4*w+2*h)}")
        a(f"buffer_store_dwordx4 {V(vBase+4*i)}, v{vEA+i}, {S(rO)}, 0 offen")
    stamp(a, 10)
    if PROBE != -2:
        a("s_sub_u32 s1, s1, s0\ns_lshl_b32 s1, s1, 2")
        if PWG >= 0: a(f"s_cmp_eq_u32 s2, {PWG}\ns_cselect_b32 s1, s1, 0")
        a("s_add_u32 s1, s1, 6000\nL_probe:\ns_sleep 1\ns_memrealtime s[80:81]\ns_waitcnt lgkmcnt(0)\ns_sub_u32 s80, s80, s0\ns_cmp_lt_u32 s80, s1\ns_cbranch_scc1 L_probe")
    if STAMP:
        a("s_waitcnt vmcnt(0)"); stamp(a, 11)
        a(f"s_memrealtime s[80:81]\ns_waitcnt lgkmcnt(0)\nv_accvgpr_write_b32 a254, s80\nbuffer_store_dword a254, off, {S(rM)}, s82 offset:{20*4}")
    a("s_endpgm")

def kernel():
    a = Asm()
    a(f"s_cmp_ge_u32 s2, 256\ns_cbranch_scc1 L_end")
    if PROBE != -2: a("s_memrealtime s[80:81]")
    if STAMP: a("s_memtime s[98:99]\ns_memrealtime s[96:97]")
    a(f"s_load_dwordx16 s[8:23], s[0:1], 0\ns_load_dwordx16 s[24:39], s[0:1], 64")
    a(f"s_getpc_b64 s[{rP}:{rP+1}]\nL_pf:\ns_mov_b32 s{rP+2}, L_end-L_pf\ns_mov_b32 s{rP+3}, 0x20000")
    a(f"s_lshr_b32 s{sT1}, s2, 3\ns_lshl_b32 s{sT0}, s{sT1}, 11\nv_lshlrev_b32 v1, 7, v0\nv_cmp_gt_u32 vcc, 16, v0\nv_mov_b32 v2, {OOB}\nv_add_u32 v1, s{sT0}, v1\nv_cndmask_b32 v1, v2, v1, vcc")
    a(f"buffer_load_dword a{aDUM}, v1, {S(rP)}, 0 offen", tag='pf')
    a(f"v_and_b32 v{vL}, 63, v0\nv_lshrrev_b32 v1, 6, v0\nv_lshlrev_b32 v{vA}, 4, v{vL}\nv_readfirstlane_b32 s{sW}, v1")
    a(f"""s_mov_b32 s{sSpin}, 0
s_and_b32 s{sT0}, s2, 7
s_mul_i32 s{sTile}, s{sT0}, 31
s_add_u32 s{sTile}, s{sTile}, s{sT1}
s_mul_i32 s{sG}, s{sTile}, 9363
s_lshr_b32 s{sG}, s{sG}, 16
s_mul_i32 s{sRB}, s{sG}, 7
s_sub_u32 s{sRB}, s{sTile}, s{sRB}
s_sub_u32 s{sT3}, s{sTile}, 133
s_mul_i32 s{sCls}, s{sT3}, 10923
s_lshr_b32 s{sCls}, s{sCls}, 16
s_mul_i32 s{sXo}, s{sCls}, 6
s_sub_u32 s{sXo}, s{sT3}, s{sXo}
s_add_u32 s{sXo}, s{sXo}, 7
s_sub_u32 s{sCls}, 18, s{sCls}
s_cmp_ge_u32 s{sTile}, 133
s_cselect_b32 s{sG}, s{sCls}, s{sG}
s_cselect_b32 s{sRB}, s{sXo}, s{sRB}
s_add_u32 s{sCls}, s{sRB}, s{sG}""")
    if Q1 <= 2: a(f"s_and_b32 s{sCls}, s{sCls}, {Q1-1}")
    else: a(f"s_mul_i32 s{sXo}, s{sCls}, {65536//Q1+1}\ns_lshr_b32 s{sXo}, s{sXo}, 16\ns_mul_i32 s{sXo}, s{sXo}, {Q1}\ns_sub_u32 s{sCls}, s{sCls}, s{sXo}")
    a(f"""s_and_b32 s{sKind}, s{sG}, 3
s_cmp_eq_u32 s{sKind}, 2
s_cselect_b32 s{sKind}, 1, 0
s_cmp_eq_u32 s{sTile}, 247
s_cselect_b32 s{sKind}, 2, s{sKind}
s_cselect_b32 s{sG}, 8, s{sG}
s_cmp_eq_u32 s{sT1}, 31
s_cselect_b32 s{sKind}, 2, s{sKind}
s_cselect_b32 s{sG}, s{sT0}, s{sG}""")
    a(f"v_lshrrev_b32 v7, 5, v{vL}\nv_mul_u32_u24 v11, 1280, v7\nv_and_b32 v12, 31, v{vL}\nv_lshl_add_u32 v11, v12, 3, v11")
    st0 = a.state()
    a(f"s_cmp_eq_u32 s{sKind}, 2\ns_cbranch_scc1 L_spare")
    a(f"s_mul_i32 s{sXm}, s{sW}, 5120")
    a(f"v_lshrrev_b32 v2, 3, v{vL}\nv_and_b32 v3, 7, v{vL}")
    a(f"s_lshl_b32 s{sT0}, s{sW}, 2\nv_lshrrev_b32 v4, 1, v2\nv_add_u32 v4, s{sT0}, v4\nv_and_b32 v4, 7, v4\nv_xor_b32 v4, v4, v3\nv_lshlrev_b32 v4, 4, v4")
    a(f"s_mul_i32 s{sT1}, s{sRB}, 160")
    a(f"v_bfe_u32 v5, v{vL}, 3, 2\nv_mul_u32_u24 v5, 5120, v5\nv_lshl_add_u32 v5, v3, 7, v5")
    a(f"v_bfe_u32 v6, v{vL}, 1, 3\nv_xor_b32 v6, v6, v7")
    for s in range(4):
        a(f"v_xor_b32 v8, {2*s}, v6\nv_lshl_add_u32 v{vXR+s}, v8, 4, v5")
    a(f"s_cmp_eq_u32 s{sKind}, 1\ns_cbranch_scc1 L_ssm")
    a(f"s_add_u32 s{sT0}, s{sG}, 2\ns_lshr_b32 s{sT0}, s{sT0}, 2\ns_sub_u32 s{sG}, s{sG}, s{sT0}\ns_lshl_b32 s{sPair}, s{sG}, 2\ns_add_u32 s{sPair}, s{sPair}, s{sW}")
    a(f"s_lshl_b32 s{sT0}, s{sW}, 3\ns_add_u32 s{sT1}, s{sT1}, s{sT0}\nv_add_u32 v8, s{sT1}, v2\nv_mul_u32_u24 v8, 1280, v8\nv_add_u32 v{vXD}, v8, v4")
    for j in range(1, 5):
        a(f"v_add_u32 v{vXD+j}, {j*32*1280 - (j*1024 if j < 4 else 0)}, v{vXD}")
    a(f"s_lshr_b32 s{sT0}, s{sW}, 1\ns_lshl_b32 s{sT2}, s{sG}, 1\ns_add_u32 s{sT2}, s{sT2}, s{sT0}\ns_lshl_b32 s{sKind}, s{sT2}, 7\ns_cmp_ge_u32 s{sT2}, 27\ns_cselect_b32 s{sKind}, {OOB}, s{sKind}")
    a(f"v_bfe_u32 v8, v{vL}, 2, 3\nv_mul_u32_u24 v8, 3456, v8\nv_lshl_add_u32 v8, v7, 6, v8\nv_and_b32 v10, 0x30, v{vA}\nv_add3_u32 v{vWD}, v8, v10, s{sKind}")
    for j in range(1, 4):
        a(f"v_add_u32 v{vWD+j}, {j*(8*3456-1024)}, v{vWD}")
    a(f"s_mul_i32 s{sWm}, s{sT0}, 49152\ns_and_b32 s{sT2}, s{sW}, 1\ns_lshl_b32 s{sT3}, s{sT2}, 13\ns_add_u32 s{sT3}, s{sT3}, s{sWm}\ns_lshl_b32 s{sT2}, s{sT2}, 9\ns_add_u32 s{sT2}, s{sT2}, s{sWm}\ns_add_u32 s{sT2}, s{sT2}, {WB}\ns_add_u32 s{sWm}, s{sT3}, {WB}")
    a(f"v_bfe_u32 v8, v{vL}, 2, 2\nv_lshlrev_b32 v8, 6, v8\nv_lshl_add_u32 v8, v7, 10, v8\nv_and_b32 v10, 1, v{vL}\nv_lshl_add_u32 v8, v10, 5, v8")
    a(f"v_bfe_u32 v10, v{vL}, 4, 1\nv_lshl_add_u32 v8, v10, 4, v8\nv_bfe_u32 v10, v{vL}, 1, 1\nv_lshl_add_u32 v8, v10, 3, v8\nv_add_u32 v{vWR}, s{sT2}, v8")
    a(f"s_memrealtime s[74:75]")
    a("s_waitcnt lgkmcnt(0)")
    a(f"s_mov_b32 s{sT2}, s74")
    after_kernarg(a, 'glu')
    a(f"s_bitcmp1_b32 s{sW}, 0\ns_cselect_b32 s{rA}, s{sWu}, s{sWg}\ns_cselect_b32 s{rA+1}, s{sWu+1}, s{sWg+1}\ns_mov_b32 s{rA+2}, {640*3456}\ns_mov_b32 s{rA+3}, 0x20000")
    q = start_loads(a, 'glu')
    b2 = B2Q()
    mainloop(a, 'glu', q, b2)
    stamp(a, 2)
    epilogue_glu(a, b2)
    b2.emit(a, 999, 22)
    a("s_branch L_p2")
    a.set_state(st0)
    a("L_ssm:")
    a(f"s_lshr_b32 s{sG}, s{sG}, 2\ns_lshl_b32 s{sPair}, s{sG}, 2\ns_add_u32 s{sPair}, s{sPair}, s{sW}")
    a(f"s_lshl_b32 s{sT0}, s{sW}, 1\ns_add_u32 s{sT1}, s{sT1}, s{sT0}\nv_mul_u32_u24 v8, 80, v7\nv_and_b32 v9, 1, v2\nv_mul_u32_u24 v9, 40, v9\nv_bfe_u32 v10, v2, 1, 1")
    a(f"v_add3_u32 v8, v8, v9, v10\nv_add_u32 v8, s{sT1}, v8\nv_mul_u32_u24 v8, 1280, v8\nv_add_u32 v{vXD}, v8, v4")
    for j in range(1, 5):
        a(f"v_add_u32 v{vXD+j}, {j*8*1280 - (j*1024 if j < 4 else 0)}, v{vXD}")
    a(f"s_lshl_b32 s{sT0}, s{sPair}, 5\ns_mul_i32 s{sKind}, s{sT0}, 1280")
    for rg in range(4):
        a(f"v_add_u32 v8, {8*rg}, v2\nv_bfe_u32 v9, v8, 1, 3\nv_xor_b32 v9, v9, v3\nv_add_u32 v8, s{sT0}, v8\nv_mul_u32_u24 v8, 1280, v8\nv_add_u32 v8, {-1024*rg}, v8\nv_lshl_add_u32 v{vWD+rg}, v9, 4, v8")
    a(f"s_mul_i32 s{sWm}, s{sW}, 24576\ns_add_u32 s{sWm}, s{sWm}, {WB}")
    a(f"v_lshlrev_b32 v9, 7, v12\nv_add_u32 v9, s{sWm}, v9")
    for s in range(4):
        a(f"v_xor_b32 v10, {2*s}, v6\nv_lshl_add_u32 v{vWR+s}, v10, 4, v9")
    a(f"v_add_u32 v13, s{sT0}, v12\nv_lshlrev_b32 v13, 1, v13")
    after_kernarg(a, 'ssm')
    srd(a, rA, sBre, 640*1280)
    srd(a, rB, sBim, 640*1280)
    q = start_loads(a, 'ssm')
    b2 = B2Q()
    mainloop(a, 'ssm', q, b2)
    stamp(a, 2)
    epilogue_ssm(a, b2)
    b2.emit(a, 999, 22)
    a("s_branch L_p2")
    a.set_state(st0)
    a("L_spare:")
    after_kernarg(a, 'spare')
    common_srds(a)
    stamp(a, 0)
    stats_issue(a)
    a(f"s_lshl_b32 s{sPair}, s{sG}, 2\ns_add_u32 s{sPair}, s{sPair}, s{sW}\ns_lshl_b32 s{sReg}, s{sW}, 13")
    for i in range(6):
        a(f"s_add_u32 s{sU}, s{sPair}, {1976+36*i}")
        for x, tag in wd_issue(f"s_add_u32 m0, s{sReg}, {i*1024}", f'w{i}'): emit_item(a, x, tag, 'spare')
    stats_compute(a, 100, 120)
    for i in range(6):
        a(f"s_add_u32 s{sU}, s{sPair}, {1976+36*i}\n" + div10(sJ0, sJ1, sU))
        for x, tag in wd_finish(sReg, i*1024, f'w{i}', 4*i): emit_item(a, x, tag, 'spare')
    a(NONCE_LOAD, tag='non')
    nonce_check(a, 'spare')
    a("s_waitcnt vmcnt(0)\ns_barrier")
    for x, tag in flag1_store(): a(x, tag=tag)
    for x, tag in p2_scalars(): a(x)
    a(F1_LOAD, tag='f1')
    flag1_check(a, 'spare')
    a("s_barrier")
    B2Q().emit(a, 999, 22)
    a.set_state(([], [], False))
    phase2(a)
    for t in SLOW: a(t)
    a("L_end:")
    return a

def wrap(name, a):
    return f"""
.text
.globl {name}
.p2align 8
.type {name},@function
{name}:
{a.text()}    s_endpgm
.section .rodata,"a"
.p2align 6
.amdhsa_kernel {name}
  .amdhsa_next_free_vgpr 512
  .amdhsa_next_free_sgpr 102
  .amdhsa_accum_offset 256
  .amdhsa_group_segment_fixed_size 0
  .amdhsa_kernarg_size 128
  .amdhsa_user_sgpr_count 2
  .amdhsa_user_sgpr_kernarg_segment_ptr 1
  .amdhsa_system_sgpr_workgroup_id_x 1
.end_amdhsa_kernel
"""

if __name__ == "__main__":
    out = [x for x in sys.argv[1:] if not x.startswith('--')][0]
    hdr = open('cdna_kernels/' + NAME + '.s.ref').read().split('; Override launch')[0]
    s = hdr
    if '--list' in sys.argv:
        s += f"; @launch kernel={NAME}_kernel grid=(256,1,1) block=(256,1,1) lds={LDS}\n"
    else:
        s += f"; @launch grid=(256,1,1) block=(256,1,1) lds={LDS}\n"
    s += '.amdgcn_target "amdgcn-amd-amdhsa--gfx950"\n'
    k = kernel()
    s += wrap(NAME + "_kernel", k)
    open(out, 'w').write(s)
    print("pads", k.npad, "instrs", len(k.ins))
```

```python
import sys, math, struct
from emit import Asm

NAME = "parallel_sum__ssm_conv_s5__glu_gated_glu__prompt"
def opt(name, default):
    for x in sys.argv:
        if x.startswith(f'--{name}='):
            return type(default)(x.split('=', 1)[1])
    return default
STAMP = '--stamp' in sys.argv
Q1 = opt('q1', 2)
Q2 = opt('q2', 4)
N1 = opt('n1', 8)
DQ = opt('dq', 4)
TOUCH = opt('touch', 1)
B2A = opt('b2a', 1)
B2B = opt('b2b', 4)
B2E = opt('b2e', 3)
B2W = opt('b2w', 10)
B2S = opt('b2s', 20)
PROBE = opt('probe', -2)
PWG = opt('pwg', -1)
PCYC = opt('pcyc', 0)
OST = opt('ost', '')
LOG2E = 1.4426950408889634
def f2u(x): return "0x%08x" % struct.unpack('<I', struct.pack('<f', x))[0]

H_SIZE = 32*94*4096
MISC = 0x1000000
STATS = 0x400000
FLAG1 = 0x410000
FLAG2 = 0x420000
EOFF = 0x460000
STAMPS = 0x490000
MISC_SIZE = 0x500000
OOB = 0x8000000
SPINMAX = 100000
XB, WB, SPARE, LDS = 0, 61440, 159744, 163840
N8S = 94*5120

sX, sLre, sLim, sBre, sBim, sCre, sCim, sLdt, sD, sWg, sWu, sWd, sOut, sDbg, sWs = 8,10,12,14,16,18,20,22,24,28,30,32,34,36,38
rX, rA, rB, rH, rM, rF, rP, rWd, rC = 40, 44, 48, 52, 56, 60, 84, 88, 92
(sW, sRB, sG, sCls, sXo, sWo, sWo2, sXm, sWm, sT0, sT1, sT2, sT3, sKind, sPair, sSpin) = range(64, 80)
sNon = 83
sTile, sRT, sN8, sReg, sAlim, sBlim = 3, 4, 5, 6, 7, 26
sU = 27
sAo = 96
sBo = 12
sJ0, sJ1 = 100, 101

def srd(a, r, base, size):
    a(f"s_mov_b32 s{r}, s{base}\ns_mov_b32 s{r+1}, s{base+1}\ns_mov_b32 s{r+2}, {size}\ns_mov_b32 s{r+3}, 0x20000")
def S(r, n=4): return f"s[{r}:{r+n-1}]"
def V(r, n=4): return f"v[{r}:{r+n-1}]"
def A(r, n=4): return f"a[{r}:{r+n-1}]"
def P(r): return f"v[{r}:{r+1}]"

def stamp(a, idx):
    if PROBE == idx and not PCYC: a("s_memrealtime s[80:81]\ns_waitcnt lgkmcnt(0)\ns_mov_b32 s1, s80")
    if PROBE == idx and PCYC: a("s_memtime s[80:81]\ns_waitcnt lgkmcnt(0)\ns_sub_u32 s1, s80, s82\ns_lshr_b32 s1, s1, 4\ns_add_u32 s1, s1, s0")
    if not STAMP: return
    a(f"s_memtime s[80:81]\ns_waitcnt lgkmcnt(0)\nv_accvgpr_write_b32 a254, s80\ns_add_u32 s81, s82, {idx*4}")
    a(f"buffer_store_dword a254, off, {S(rM)}, s81", tag='stamp')

def bf16_round(a, d, s):
    a(f"v_cvt_pk_bf16_f32 v{d}, v{s}, v{s}\nv_lshlrev_b32 v{d}, 16, v{d}")
def reduce32(a, v, t):
    for sh in (8, 4, 2, 1):
        a(f"v_add_f32_dpp v{v}, v{v}, v{v} row_ror:{sh} row_mask:0xf bank_mask:0xf")
    a(f"v_mov_b32 v{t}, v{v}\nv_permlane16_swap_b32 v{v}, v{t}\nv_add_f32 v{v}, v{v}, v{t}")

XF, WF, vXR, vWR, vXD, vWD, vL, vS, vSt, vA, vT, vLAM = 160, 200, 216, 220, 224, 229, 233, 234, 236, 238, 239, 244
def accg(j): return 32*j
def accu(j): return 32*j + 16
aST = 240
aDUM = 255

def dma_chunk(role, c):
    slot = c % 3
    L = []
    if Q1 == 1: L.append(f"s_mov_b32 s{sT3}, {c}")
    elif Q1 == 2: L.append(f"s_xor_b32 s{sT3}, s{sCls}, {c}")
    else:
        L.append(f"s_add_u32 s{sT3}, s{sCls}, {c}\ns_sub_u32 s{sXo}, s{sT3}, {Q1}\ns_cmp_ge_u32 s{sT3}, {Q1*(c//Q1+1)}\ns_cselect_b32 s{sT3}, s{sXo}, s{sT3}")
    L[-1] += f"\ns_lshl_b32 s{sXo}, s{sT3}, 7"
    if role == 'glu':
        L[-1] += f"\ns_mul_i32 s{sWo}, s{sT3}, {64*3456}\ns_add_u32 s{sWo2}, s{sWo}, {32*3456}"
    def grp(m0, loads):
        loads[0] = m0 + "\n" + loads[0]
        return loads
    x = grp(f"s_add_u32 m0, s{sXm}, {slot*20480}", [f"buffer_load_dwordx4 v{vXD+j}, {S(rX)}, s{sXo} offen offset:{j*1024} lds" for j in range(4)])
    x[0] = L[0] + "\n" + x[0]
    x += grp(f"s_add_u32 m0, s{sXm}, {slot*20480+4096}", [f"buffer_load_dwordx4 v{vXD+4}, {S(rX)}, s{sXo} offen lds"])
    st = 16384 if role == 'glu' else 8192
    o1, o2, r2 = (sWo, sWo2, rA) if role == 'glu' else (sXo, sXo, rB)
    x += grp(f"s_add_u32 m0, s{sWm}, {slot*st}", [f"buffer_load_dwordx4 v{vWD+j}, {S(rA)}, s{o1} offen offset:{j*1024} lds" for j in range(4)])
    x += grp(f"s_add_u32 m0, s{sWm}, {slot*st+4096}", [f"buffer_load_dwordx4 v{vWD+j}, {S(r2)}, s{o2} offen offset:{j*1024} lds" for j in range(4)])
    return x

def reads(role, ks):
    c, s = ks // 4, ks % 4
    slot, b = c % 3, ks & 1
    L = []
    for m in range(2):
        d = WF + b*8 + m*4
        if role == 'glu':
            off = slot*16384 + m*8192 + s*2048
            L.append(f"ds_read_b64_tr_b16 v[{d}:{d+1}], v{vWR} offset:{off}")
            L.append(f"ds_read_b64_tr_b16 v[{d+2}:{d+3}], v{vWR} offset:{off+256}")
        else:
            L.append(f"ds_read_b128 {V(d)}, v{vWR+s} offset:{slot*8192 + m*4096}")
    for j in range(5):
        L.append(f"ds_read_b128 {V(XF + b*20 + j*4)}, v{vXR+s} offset:{slot*20480 + j*1024}")
    return L

def s_ops(ks):
    b = ks & 1
    L = []
    for i in range(4):
        for m in range(2):
            w = WF + b*8 + m*4 + i
            if ks == 0 and i == 0:
                L += [f"v_lshlrev_b32 v{vS+m}, 16, v{w}", f"v_and_b32 v{vSt+1}, 0xffff0000, v{w}", f"v_add_f32 v{vS+m}, v{vS+m}, v{vSt+1}"]
            else:
                L += [f"v_lshlrev_b32 v{vSt}, 16, v{w}", f"v_and_b32 v{vSt+1}, 0xffff0000, v{w}",
                      f"v_add_f32 v{vS+m}, v{vS+m}, v{vSt}", f"v_add_f32 v{vS+m}, v{vS+m}, v{vSt+1}"]
    return L

def lam_setup(a, t0):
    lr, li, dt, zr, zi, t, u0 = range(t0, t0+7)
    a.wait(vm='lam')
    a(f"v_lshlrev_b32 v{lr}, 16, v{vLAM}\nv_lshlrev_b32 v{li}, 16, v{vLAM+1}\nv_lshlrev_b32 v{dt}, 16, v{vLAM+2}")
    a(f"v_mul_f32 v{dt}, {f2u(LOG2E)}, v{dt}\nv_exp_f32 v{dt}, v{dt}")
    bf16_round(a, dt, dt)
    a(f"v_mul_f32 v{zr}, v{dt}, v{lr}\nv_mul_f32 v{zi}, v{dt}, v{li}\nv_mul_f32 v{zr}, {f2u(LOG2E)}, v{zr}\nv_mul_f32 v{zi}, 0.15915494, v{zi}")
    for idx, n in ((0, 1), (4, 40), (6, 80), (8, 160), (10, 320)):
        d = vLAM + idx
        a(f"v_mul_f32 v{t}, {f2u(float(n))}, v{zr}\nv_mul_f32 v{u0}, {f2u(float(n))}, v{zi}\nv_exp_f32 v{t}, v{t}\nv_fract_f32 v{u0}, v{u0}")
        a(f"v_cos_f32 v{d}, v{u0}\nv_sin_f32 v{d+1}, v{u0}\nv_mul_f32 v{d}, v{d}, v{t}\nv_mul_f32 v{d+1}, v{d+1}, v{t}")
    c = vLAM + 2
    a(f"v_mul_f32 v{t}, v{lr}, v{lr}\nv_fmac_f32 v{t}, v{li}, v{li}\nv_rcp_f32 v{t}, v{t}\nv_add_f32 v{u0}, -1.0, v{vLAM}")
    a(f"v_mul_f32 v{c}, v{u0}, v{lr}\nv_fmac_f32 v{c}, v{vLAM+1}, v{li}\nv_mul_f32 v{c+1}, v{vLAM+1}, v{lr}\nv_fma_f32 v{c+1}, -v{u0}, v{li}, v{c+1}")
    a(f"v_add_f32 v{t}, v{t}, v{t}\nv_mul_f32 v{c}, v{c}, v{t}\nv_mul_f32 v{c+1}, v{c+1}, v{t}")

def cmul_add(a, d, x, l, add):
    a(f"v_pk_fma_f32 {P(d)}, {P(x)}, {P(l)}, {P(add)} op_sel:[0,0,0] op_sel_hi:[1,0,1]")
    a(f"v_pk_fma_f32 {P(d)}, {P(x)}, {P(l)}, {P(d)} op_sel:[1,1,0] op_sel_hi:[0,1,1] neg_lo:[1,0,0]")

def div10(d, r, src):
    return f"s_mul_i32 s{d}, s{src}, 6554\ns_lshr_b32 s{d}, s{d}, 16\ns_mul_i32 s{r}, s{d}, 10\ns_sub_u32 s{r}, s{src}, s{r}"

def wd_issue(ldsoff_expr, tag):
    return [(div10(sJ0, sJ1, sU), None),
            (f"v_lshrrev_b32 v{vT}, 3, v{vL}", None), (f"v_mul_u32_u24 v{vT}, 1280, v{vT}", None), (f"v_and_b32 v{vT+1}, 0x70, v{vA}", None), (f"v_add_u32 v{vT}, v{vT}, v{vT+1}", None),
            ('M0FREE', None),
            (f"s_mul_i32 s{sT0}, s{sJ0}, {8*1280}\ns_lshl_b32 s{sT1}, s{sJ1}, 7\ns_add_u32 s{sT0}, s{sT0}, s{sT1}\n{ldsoff_expr}\ns_nop 0\nbuffer_load_dwordx4 v{vT}, {S(rWd)}, s{sT0} offen lds", tag)]
def wd_finish(ldsbase_s, ldsoff, tag, adst):
    return [(f"v_bfe_u32 v{vT}, v{vL}, 2, 2", None), (f"v_lshlrev_b32 v{vT}, 7, v{vT}", None), (f"v_lshrrev_b32 v{vT+1}, 4, v{vL}", None), (f"v_lshl_add_u32 v{vT}, v{vT+1}, 5, v{vT}", None),
            (f"v_and_b32 v{vT+2}, 3, v{vL}", None), (f"v_lshlrev_b32 v{vT+2}, 3, v{vT+2}", None), (f"v_add3_u32 v{vT}, v{vT}, v{vT+2}, s{ldsbase_s}", None),
            ('WAITVM', tag),
            (f"ds_read_b64_tr_b16 {A(adst,2)}, v{vT} offset:{ldsoff}", 'rp'), (f"ds_read_b64_tr_b16 {A(adst+2,2)}, v{vT} offset:{ldsoff+512}", 'rp'),
            (f"s_lshl_b32 s{sT0}, s{sJ1}, 2\nv_add_u32 v{vT+1}, s{sT0}, v{vT+1}", None),
            (f"v_mul_u32_u24 v{vT+2}, 13, v{vT+1}", None), (f"v_lshrrev_b32 v{vT+2}, 6, v{vT+2}", None), (f"v_mul_u32_u24 v{vT+2}, {N8S-5120}, v{vT+2}", None),
            (f"v_lshl_add_u32 v{vT+2}, v{vT+1}, 10, v{vT+2}", None), (f"v_and_b32 v{vT+1}, 0xf0, v{vA}", None), (f"v_add_u32 v{vT+2}, v{vT+2}, v{vT+1}", None),
            ('WAITLG', 'rp'),
            (f"s_lshr_b32 s{sT0}, s{sJ0}, 2\ns_mul_i32 s{sT0}, s{sT0}, 5120\ns_and_b32 s{sT1}, s{sJ0}, 3\ns_lshl_b32 s{sT1}, s{sT1}, 8\ns_add_u32 s{sT0}, s{sT0}, s{sT1}\n"
             f"s_cmp_ge_u32 s{sJ0}, 216\ns_cselect_b32 s{sT0}, {OOB}, s{sT0}\nbuffer_store_dwordx4 {A(adst)}, v{vT+2}, {S(rM)}, s{sT0} offen sc1", 'early')]
def c_decode():
    return f"s_lshl_b32 s{sT2}, s{sTile}, 2\ns_add_u32 s{sT2}, s{sT2}, s{sW}\n" + div10(sT0, sT1, sT2)
def c_issue(adst):
    return [(f"v_and_b32 v{vT+3}, 15, v{vL}", None), (f"v_mul_u32_u24 v{vT+3}, 1280, v{vT+3}", None), (f"v_and_b32 v{vT+4}, 48, v{vL}", None), (f"v_add_u32 v{vT+3}, v{vT+3}, v{vT+4}", None),
            (c_decode() + f"\ns_cmp_ge_u32 s{sT0}, 40\ns_cselect_b32 s{rC}, s{sCim}, s{sCre}\ns_cselect_b32 s{rC+1}, s{sCim+1}, s{sCre+1}\ns_cselect_b32 s{sT2}, 40, 0\n"
             f"s_sub_u32 s{sT0}, s{sT0}, s{sT2}\ns_mul_i32 s{sT0}, s{sT0}, {16*1280}\ns_lshl_b32 s{sT1}, s{sT1}, 7\ns_add_u32 s{sT0}, s{sT0}, s{sT1}\n"
             f"buffer_load_dwordx4 {A(adst)}, v{vT+3}, {S(rC)}, s{sT0} offen\nbuffer_load_dwordx4 {A(adst+4)}, v{vT+3}, {S(rC)}, s{sT0} offen offset:64", 'cj')]
def c_finish(adst):
    return [('WAITVM', 'cj'),
            (c_decode() + f"\ns_mul_i32 s{sT1}, s{sT1}, {4*5120}\ns_add_u32 s{sT1}, s{sT1}, {54*5120}\ns_cmp_ge_u32 s{sT0}, 80\ns_cselect_b32 s{sT1}, {OOB}, s{sT1}\n"
             f"s_cmp_ge_u32 s{sT0}, 40\ns_cselect_b32 s{sT2}, {5120 - 40*1024 - 8*(N8S-5120)}, 0\ns_add_u32 s{sT1}, s{sT1}, s{sT2}\n"
             f"s_mul_i32 s{sT2}, s{sT0}, 205\ns_lshr_b32 s{sT2}, s{sT2}, 10\ns_mul_i32 s{sT2}, s{sT2}, {N8S-5120}\ns_lshl_b32 s{sT0}, s{sT0}, 10\ns_add_u32 s{sT1}, s{sT1}, s{sT2}\ns_add_u32 s{sT1}, s{sT1}, s{sT0}\n"
             f"s_add_u32 s{sT0}, s{sT1}, 10240\n"
             f"buffer_store_dwordx4 {A(adst)}, v{vA}, {S(rM)}, s{sT1} offen sc1\nbuffer_store_dwordx4 {A(adst+4)}, v{vA}, {S(rM)}, s{sT0} offen sc1", 'early')]

def touch(role, p):
    if not TOUCH: return []
    if role == 'glu':
        return [(f"s_mul_i32 s{sT0}, s{sRB}, 15\ns_add_u32 s{sT0}, s{sT0}, {192*p}\nv_add_u32 v{vT+3}, s{sT0}, v{vL}", None), (f"v_mul_u32_u24 v{vT+3}, 3456, v{vT+3}", None),
                (f"v_mov_b32 v{vT+4}, {OOB}", None), (f"v_cmp_gt_u32 vcc, 15, v{vL}\nv_add_u32 v{vT+3}, s{sKind}, v{vT+3}\ns_nop 0\nv_cndmask_b32 v{vT+3}, v{vT+4}, v{vT+3}, vcc", None),
                (f"buffer_load_dword a{aDUM}, v{vT+3}, {S(rA)}, 0 offen", 'touch')]
    else:
        return [(f"s_lshl_b32 s{sT0}, s{sRB}, 3\ns_add_u32 s{sT0}, s{sT0}, {96*p}\nv_add_u32 v{vT+3}, s{sT0}, v{vL}", None),
                (f"v_and_b32 v{vT+4}, 31, v{vT+3}", None), (f"v_mul_u32_u24 v{vT+4}, 1280, v{vT+4}", None), (f"v_lshrrev_b32 v{vT+3}, 5, v{vT+3}", None), (f"v_min_u32 v{vT+3}, 9, v{vT+3}", None),
                (f"v_lshl_add_u32 v{vT+3}, v{vT+3}, 7, v{vT+4}", None), (f"v_mov_b32 v{vT+4}, {OOB}", None),
                (f"v_cmp_gt_u32 vcc, 8, v{vL}\nv_add_u32 v{vT+3}, s{sKind}, v{vT+3}\ns_nop 0\nv_cndmask_b32 v{vT+3}, v{vT+4}, v{vT+3}, vcc", None),
                (f"buffer_load_dword a{aDUM}, v{vT+3}, {S(rA)}, 0 offen\nbuffer_load_dword a{aDUM}, v{vT+3}, {S(rB)}, 0 offen", 'touch')]

VB2 = 160
def b2_dest(p):
    if p < 12: return ('a', 20*p)
    if p < 20: return ('l', p-12)
    if p < 22: return ('v', VB2 + 20*(p-20))
    return ('a', 20*(p-22+8))
def b2_items(p):
    k, d = b2_dest(p)
    pre = f"s_add_u32 s{sJ0}, s{sBo+(p&3)}, {(p&~3)*4*5120}"
    if p >= 20: pre += f"\ns_cmp_ge_u32 s{sJ0}, s{sBlim}\ns_cselect_b32 s{sJ0}, {OOB}, s{sJ0}"
    L = []
    for q in range(5):
        so = sJ0
        t = ""
        if q == 0: t = pre + "\n"
        if q == 4: t = f"s_add_u32 s{sJ0}, s{sJ0}, 4096\n"
        off = f" offset:{q*1024}" if 0 < q < 4 else ""
        if k == 'l':
            if q in (0, 4): t += f"s_add_u32 m0, s{sReg}, {d*5120 + q*1024}\n"
            t += f"buffer_load_dwordx4 v{vA}, {S(rM)}, s{so} offen{off} sc1 lds"
        else:
            r = A(d+4*q) if k == 'a' else V(d+4*q)
            t += f"buffer_load_dwordx4 {r}, v{vA}, {S(rM)}, s{so} offen{off} sc1"
        L.append((t, f'b{p}'))
    return L
class B2Q:
    def __init__(self): self.q = [x for p in range(22) for x in b2_items(p)]; self.i = 0
    def take(self, n, maxpos):
        out = []
        while n > 0 and self.i < min(len(self.q), 5*maxpos):
            out.append(self.q[self.i]); self.i += 1; n -= 1
        return out
    def emit(self, a, n, maxpos):
        for t, tag in self.take(n, maxpos): a(t, tag=tag)

def p2_scalars():
    t = f"""s_and_b32 s{sT0}, s2, 7
s_lshl_b32 s{sT0}, s{sT0}, 2
s_bfe_u32 s{sT1}, s2, 0x20003
s_add_u32 s{sRT}, s{sT0}, s{sT1}
s_lshr_b32 s{sN8}, s2, 5
s_mul_i32 s{sReg}, s{sW}, 40960
s_add_u32 s{sT0}, s{sRT}, 1
s_mul_i32 s{sAlim}, s{sT0}, {94*4096}
s_add_u32 s{sT0}, s{sN8}, 1
s_mul_i32 s{sBlim}, s{sT0}, {N8S}"""
    L = [(t, None)]
    for j in range(4):
        L.append((f"""s_add_u32 s{sT0}, s{sRT}, s{sN8}
s_and_b32 s{sT0}, s{sT0}, {Q2-1}
s_xor_b32 s{sT0}, s{sT0}, {j}
s_lshl_b32 s{sT0}, s{sT0}, 2
s_add_u32 s{sT0}, s{sT0}, s{sW}
s_sub_u32 s{sT0}, s{sT0}, 94
s_lshl_b32 s{sT1}, s{sT0}, 12
s_add_u32 s{sAo+j}, s{sAlim}, s{sT1}
s_mul_i32 s{sT1}, s{sT0}, 5120
s_add_u32 s{sBo+j}, s{sBlim}, s{sT1}""", None))
    return L

SLOW = []
def spin(a, name, load, check):
    a(f"L_chk_{name}:\n{check}\ns_cbranch_vccnz L_slow_{name}\nL_go_{name}:")
    SLOW.append(f"L_slow_{name}:\ns_add_u32 s{sSpin}, s{sSpin}, 1\ns_cmp_gt_u32 s{sSpin}, {SPINMAX}\ns_cbranch_scc1 L_go_{name}\ns_sleep 2\n{load}\ns_waitcnt vmcnt(0)\ns_branch L_chk_{name}")

NONCE_LOAD = f"buffer_load_dword v{vT+4}, off, {S(rF)}, 0 sc1"
def nonce_check(a, role):
    a.wait(vm='non')
    spin(a, 'non_' + role, NONCE_LOAD, f"v_cmp_eq_u32 vcc, 0, v{vT+4}")
    a(f"v_readfirstlane_b32 s{sNon}, v{vT+4}")
def flag1_store():
    return [(f"v_mov_b32 v{vT}, {OOB}", None), (f"s_lshl_b32 s{sT0}, s{sW}, 6\nv_or_b32 v{vT+1}, s{sT0}, v{vL}", None),
            (f"v_cmp_eq_u32 vcc, 0, v{vT+1}\nv_mov_b32 v{vT+2}, s{sNon}\ns_nop 0\nv_cndmask_b32 v{vT}, v{vT}, v{vT+1}, vcc", None),
            (f"s_lshl_b32 s{sT0}, s2, 4\ns_add_u32 s{sT0}, s{sT0}, {FLAG1}\nbuffer_store_dword v{vT+2}, v{vT}, {S(rM)}, s{sT0} offen sc1", 'flag')]
F1_LOAD = f"s_lshl_b32 s{sT0}, s{sW}, 10\ns_add_u32 s{sT0}, s{sT0}, {FLAG1}\nbuffer_load_dword v{vT+4}, v{vA}, {S(rM)}, s{sT0} offen sc1"
def flag1_check(a, role):
    a.wait(vm='f1')
    spin(a, 'f1_' + role, F1_LOAD, f"v_cmp_ne_u32 vcc, s{sNon}, v{vT+4}")

def stat_loads(role):
    L = [(f"s_mul_i32 s{sU}, s{sRB}, {160*8}\ns_add_u32 s{sU}, s{sU}, {STATS}", None)]
    if role == 'glu':
        L += [(f"v_and_b32 v{vT}, 31, v{vL}", None), (f"v_lshlrev_b32 v{vT}, 3, v{vT}", None)]
        L += [(f"buffer_load_dwordx2 {A(aST+2*j,2)}, v{vT}, {S(rM)}, s{sU} offen offset:{j*256} sc1", 'epi') for j in range(5)]
    else:
        L += [(f"v_lshlrev_b32 v{vT}, 3, v{vL}", None)]
        L += [(f"buffer_load_dwordx2 {A(aST+2*j,2)}, v{vT}, {S(rM)}, s{sU} offen offset:{j*512} sc1", 'epi') for j in range(3)]
    return L

def emit_item(a, x, tag, role):
    if x == 'WAITVM': a.wait(vm=tag)
    elif x == 'WAITLG': a.wait(lg=tag)
    elif x == 'NONCE': nonce_check(a, role)
    elif x == 'F1': flag1_check(a, role)
    elif x == 'M0FREE': pass
    else: a(x, tag=tag)

def mainloop(a, role, dq, b2):
    a.wait(vm='c0')
    a("s_barrier")
    stamp(a, 7)
    for r in reads(role, 0): a(r, tag='r0')
    spare_m0 = f"s_lshl_b32 s{sT1}, s{sW}, 10\ns_add_u32 m0, s{sT1}, {SPARE}"
    side = {k: [] for k in range(40)}
    side[0] += [(f"s_lshl_b32 s{sU}, s{sTile}, 2\ns_add_u32 s{sU}, s{sU}, s{sW}\ns_lshl_b32 s{sReg}, s{sW}, 10\ns_add_u32 s{sReg}, s{sReg}, {SPARE}", None)] + wd_issue(spare_m0, 'w1')
    side[1] += touch(role, 1)
    side[2] += c_issue(8)
    f = wd_finish(sReg, 0, 'w1', 0)
    side[4] += f[:10]; side[5] += f[10:]
    side[6] += [(f"s_add_u32 s{sU}, s{sU}, 988", None)] + wd_issue(spare_m0, 'w2')
    side[7] += c_finish(8)
    side[8] += touch(role, 2)
    side[9] += [(NONCE_LOAD, 'non')]
    f = wd_finish(sReg, 0, 'w2', 4)
    side[10] += f[:10]; side[11] += f[10:]
    side[13] += [('NONCE', None)]
    side[14] += touch(role, 3)
    side[16] += flag1_store()
    ps = p2_scalars()
    side[17] += ps[:1]; side[18] += ps[1:2]; side[19] += ps[2:3] + [(F1_LOAD, 'f1')]; side[20] += ps[3:4]; side[21] += ps[4:]
    side[22] += [('F1', None)]
    side[30] += stat_loads(role)
    for ks in range(40):
        c, s = ks // 4, ks % 4
        b = ks & 1
        maxc = (ks + 1)//4 + 2
        dm = []
        while dq and len(dm) < DQ and dq[0][2] <= maxc:
            dm.append(dq.pop(0))
        if any(x == 'M0FREE' for x, _ in side[ks]):
            while dq and dq[0][3] not in (0, 4, 5, 9): dm.append(dq.pop(0))
        extra = list(side[ks])
        if ks >= 24: extra += b2.take(B2A if ks < 33 else B2B, 12)
        so = [(x, None) for x in s_ops(ks)]
        a.wait(lg=f'r{ks}')
        if ks == 13: stamp(a, 14)
        if ks == 26: stamp(a, 15)
        gaps = [[] for _ in range(10)]
        rd = [(x, f'r{ks+1}') for x in reads(role, ks+1)] if ks < 39 else []
        if s == 3: gaps[0].append(('BAR', f'c{c+1}'))
        for i, x in enumerate(rd): gaps[(i*6)//len(rd)].append(x)
        m0side = any(x == 'M0FREE' for x, _ in extra)
        if m0side:
            seq = [(x[0], x[1]) for x in dm] + extra
            for i, x in enumerate(seq): gaps[1 + (i*9)//len(seq)].append(x)
        else:
            for lst in ([(x[0], x[1]) for x in dm], extra):
                for i, x in enumerate(lst): gaps[1 + (i*9)//len(lst)].append(x)
        load = [sum(x.count('\n') + 1 for x, _ in g) for g in gaps]
        tot = sum(load) + len(so)
        k = 0
        for i in range(10):
            want = max(0, round(tot*(i+1)/10) - sum(load[:i+1]) - k) if i < 9 else len(so) - k
            gaps[i] += so[k:k+want]; k += min(want, len(so) - k)
        for i in range(10):
            j, m = i // 2, i % 2
            acc = V(accg(j) + 16*m, 16)
            xf = V(XF + b*20 + j*4); wf = V(WF + b*8 + m*4)
            o = f"{wf}, {xf}" if role == 'glu' else f"{xf}, {wf}"
            a(f"v_mfma_f32_32x32x16_bf16 {acc}, {o}, {'0' if ks == 0 else acc}")
            for (x, tag) in gaps[i]:
                if x == 'BAR':
                    a.wait(vm=[tag, 'early'] if c+1 == 4 else tag)
                    a("s_barrier")
                else:
                    emit_item(a, x, tag, role)
    assert not dq

def flag2_store(a, slot_expr):
    a(slot_expr)
    a(f"s_lshl_b32 s{sT1}, s{sRB}, 2\ns_add_u32 s{sT1}, s{sT1}, s{sW}\ns_lshl_b32 s{sT1}, s{sT1}, 5\ns_add_u32 s{sT0}, s{sT0}, s{sT1}\ns_lshl_b32 s{sT0}, s{sT0}, 5\ns_add_u32 s{sT0}, s{sT0}, {FLAG2}")
    a(f"v_mov_b32 v{vT}, s{sNon}\ns_mov_b64 exec, 1")
    a.wait(vm='hst')
    a(f"buffer_store_dword v{vT}, off, {S(rM)}, s{sT0} sc1\ns_mov_b64 exec, -1", tag='flag')

def epilogue_glu(a, b2):
    vSG, vRC, vO, vAd = XF, XF+32, 212, 228
    a(f"v_permlane32_swap_b32 v{vS}, v{vS+1}\nv_lshrrev_b32 v{vT}, 2, v{vA}\ns_add_u32 s{sT0}, s{sReg}, 36864\nv_add_u32 v{vT}, s{sT0}, v{vT}\nv_add_f32 v{vS}, v{vS}, v{vS+1}")
    a(f"ds_write_b32 v{vT}, v{vS}", tag='sw')
    a(f"v_lshrrev_b32 v{vT+1}, 5, v{vL}\nv_lshlrev_b32 v{vT+2}, 4, v{vT+1}\nv_add_u32 v{vT+2}, s{sT0}, v{vT+2}")
    a.wait(vm='epi')
    for j in range(5):
        a(f"v_accvgpr_read_b32 v{vRC+4*j+2}, a{aST+2*j+1}\nv_accvgpr_read_b32 v{vRC+4*j}, a{aST+2*j}\nv_rcp_f32 v{vRC+4*j+1}, v{vRC+4*j+2}")
    a.wait(lg='sw')
    for m in range(2):
        for q in range(4):
            a(f"ds_read_b128 {V(vSG+16*m+4*q)}, v{vT+2} offset:{m*128+q*32}", tag='sr')
    for j in range(5): a(f"v_mul_f32 v{vRC+4*j+1}, {f2u(-LOG2E)}, v{vRC+4*j+1}")
    a(f"v_and_b32 v{vT+3}, 0xf0, v{vA}\nv_lshl_add_u32 v{vT+3}, v{vT+1}, 9, v{vT+3}\nv_bfe_u32 v{vT+4}, v{vL}, 4, 1\nv_lshl_add_u32 v{vAd}, v{vT+4}, 10, v{vT+3}")
    a(f"s_lshl_b32 s{sT2}, s{sPair}, 12\ns_cmp_ge_u32 s{sPair}, 54\ns_cselect_b32 s{sT2}, {OOB}, s{sT2}")
    a.wait(lg='sr')
    for j in range(5):
        rc = vRC + 4*j
        o = vO + (j & 1)*8
        a(f"s_mul_i32 s{sT0}, s{sRB}, 5\ns_add_u32 s{sT0}, s{sT0}, {j}\ns_lshr_b32 s{sT1}, s{sT0}, 1\ns_mul_i32 s{sT1}, s{sT1}, {94*4096}")
        a(f"s_and_b32 s{sT0}, s{sT0}, 1\ns_lshl_b32 s{sT0}, s{sT0}, 11\ns_add_u32 s{sT1}, s{sT1}, s{sT0}\ns_add_u32 s{sT1}, s{sT1}, s{sT2}")
        for half in range(2):
            ps = range(half*4, half*4+4)
            g = lambda p: P(accg(j)+2*p)
            u = lambda p: P(accu(j)+2*p)
            ex = b2.take(B2E, 20)
            def slip(k):
                for t, tag in ex[k::3]: pass
            for p in ps: a(f"v_pk_fma_f32 {g(p)}, {P(vSG+2*p)}, {P(rc)}, {g(p)} op_sel_hi:[1,0,1]")
            for p in ps: a(f"v_pk_mul_f32 {g(p)}, {g(p)}, {P(rc)} op_sel:[0,1] op_sel_hi:[1,1]")
            n3 = (len(ex) + 2)//3
            for t, tag in ex[:n3]: a(t, tag=tag)
            for p in ps: a(f"v_exp_f32 v{accg(j)+2*p}, v{accg(j)+2*p}\nv_exp_f32 v{accg(j)+2*p+1}, v{accg(j)+2*p+1}")
            for p in ps: a(f"v_pk_fma_f32 {u(p)}, {P(vSG+16+2*p)}, {P(rc)}, {u(p)} op_sel_hi:[1,0,1]")
            for t, tag in ex[n3:2*n3]: a(t, tag=tag)
            for p in ps: a(f"v_pk_fma_f32 {g(p)}, {g(p)}, {P(rc+2)}, {P(rc+2)} op_sel_hi:[1,0,0]")
            for p in ps: a(f"v_rcp_f32 v{accg(j)+2*p}, v{accg(j)+2*p}\nv_rcp_f32 v{accg(j)+2*p+1}, v{accg(j)+2*p+1}")
            for t, tag in ex[2*n3:]: a(t, tag=tag)
            for p in ps: a(f"v_pk_mul_f32 {u(p)}, {u(p)}, {g(p)}")
            for p in ps: a(f"v_cvt_pk_bf16_f32 v{o+p}, v{accu(j)+2*p}, v{accu(j)+2*p+1}")
            a(f"buffer_store_dwordx4 {V(o+half*4)}, v{vAd}, {S(rH)}, s{sT1} offen offset:{half*256} sc1", tag='hst')
    stamp(a, 5)
    b2.emit(a, B2W, 22)
    flag2_store(a, f"s_mov_b32 s{sT0}, s{sG}")
    stamp(a, 6)

def epilogue_ssm(a, b2):
    lam, cc, l40, l80, l160, l320 = [vLAM + 2*i for i in range(6)]
    vG, vRT, vE, vX = XF+2, XF+12, XF+28, 212
    TB, TAB = 15360, 36864
    a(f"v_permlane32_swap_b32 v{vS}, v{vS+1}\nv_add_f32 v{vS}, v{vS}, v{vS+1}\nv_mov_b32 v{vS+1}, v{vS}\nv_permlane32_swap_b32 v{vS}, v{vS+1}")
    a(f"s_add_u32 s{sT0}, s{sReg}, {TAB}")
    a.wait(vm='epi')
    for j in range(3):
        t, sg, ad, r, nm = vX, vX+1, vX+2, vX+3, vX+4
        a(f"v_accvgpr_read_b32 v{r}, a{aST+2*j+1}\nv_accvgpr_read_b32 v{nm}, a{aST+2*j}\nv_rcp_f32 v{r}, v{r}")
        a(f"v_add_u32 v{t}, {64*j}, v{vL}\nv_mul_u32_u24 v{sg}, 1639, v{t}\nv_lshrrev_b32 v{sg}, 16, v{sg}")
        a(f"v_add_u32 v{ad}, 1, v{sg}\nv_lshrrev_b32 v{ad}, 1, v{ad}\nv_mul_u32_u24 v{ad}, 40, v{ad}\nv_sub_u32 v{ad}, v{t}, v{ad}")
        a(f"v_lshlrev_b32 v{ad}, 4, v{ad}\nv_and_b32 v{sg}, 1, v{sg}\nv_lshl_add_u32 v{ad}, v{sg}, 2, v{ad}\nv_add_u32 v{ad}, s{sT0}, v{ad}\nv_mul_f32 v{nm}, v{nm}, v{r}")
        a(f"ds_write2_b32 v{ad}, v{r}, v{nm} offset0:0 offset1:2", tag='sw')
    vRA = vX + 5
    a(f"v_lshrrev_b32 v{vRA}, 5, v{vL}\nv_mul_u32_u24 v{vRA}, 640, v{vRA}\nv_add_u32 v{vRA}, s{sT0}, v{vRA}")
    a.wait(lg='sw')
    re = lambda i: accg(i // 8) + 2*(i % 8)
    im = lambda i: accu(i // 8) + 2*(i % 8)
    for i in range(3): a(f"ds_read_b128 {V(vRT+4*i)}, v{vRA} offset:{16*i}", tag=f't{i}')
    gr, gi, ar, ai = vG, vG+2, vG+4, vG+6
    def ufix(i):
        rt = vRT + 4*(i % 4)
        a.wait(lg=f't{i}')
        a(f"v_pk_mul_f32 {P(re(i))}, {P(re(i))}, {P(rt)}\nv_pk_mul_f32 {P(im(i))}, {P(im(i))}, {P(rt)}")
        a(f"v_pk_fma_f32 {P(re(i))}, {P(rt+2)}, {P(vS)}, {P(re(i))} op_sel_hi:[1,0,1]")
        a(f"v_pk_fma_f32 {P(im(i))}, {P(rt+2)}, {P(vS)}, {P(im(i))} op_sel:[0,1,0] op_sel_hi:[1,1,1]")
        if i + 3 < 40: a(f"ds_read_b128 {V(vRT+4*((i+3)%4))}, v{vRA} offset:{16*(i+3)}", tag=f't{i+3}')
    def step(pr, pi, ur, ui, dr, di):
        a(f"v_pk_fma_f32 {P(dr)}, {P(pr)}, {P(lam)}, {P(ur)} op_sel_hi:[1,0,1]")
        a(f"v_pk_fma_f32 {P(di)}, {P(pi)}, {P(lam)}, {P(ui)} op_sel_hi:[1,0,1]")
        a(f"v_pk_fma_f32 {P(dr)}, {P(pi)}, {P(lam)}, {P(dr)} op_sel:[0,1,0] op_sel_hi:[1,1,1] neg_lo:[0,1,0] neg_hi:[0,1,0]")
        a(f"v_pk_fma_f32 {P(di)}, {P(pr)}, {P(lam)}, {P(di)} op_sel:[0,1,0] op_sel_hi:[1,1,1]")
    ufix(0)
    cur = (re(0), im(0))
    done = 0
    for i in range(1, 40):
        ufix(i)
        nxt = (gr, gi) if cur != (gr, gi) else (ar, ai)
        step(cur[0], cur[1], re(i), im(i), nxt[0], nxt[1])
        cur = nxt
        want = min(B2S, (B2S*i)//30)
        b2.emit(a, want - done, 15); done = want
    e0, e1, eh, eo, ef = vX, vX+2, vX+6, vX+8, vX+12
    a(f"v_mov_b32 v{e0}, v{cur[0]}\nv_mov_b32 v{e0+1}, v{cur[1]}\nv_mov_b32 v{e1}, v{cur[0]+1}\nv_mov_b32 v{e1+1}, v{cur[1]+1}")
    cmul_add(a, eh, e0, l40, e1)
    a(f"v_mov_b32 v{eo}, v{eh}\nv_mov_b32 v{eo+1}, v{eh+1}\nv_mov_b32 v{ef+2}, s{sNon}\nv_mov_b32 v{ef+3}, 0")
    a(f"v_permlane32_swap_b32 v{eh}, v{eo}\nv_permlane32_swap_b32 v{eh+1}, v{eo+1}")
    a(f"s_mul_i32 s{sT0}, s{sPair}, 13\ns_add_u32 s{sT1}, s{sT0}, s{sRB}\ns_lshl_b32 s{sT1}, s{sT1}, 9\ns_add_u32 s{sT1}, s{sT1}, {EOFF}")
    cmul_add(a, ef, eh, l80, eo)
    a(f"s_mov_b32 exec_hi, 0\nbuffer_store_dwordx4 {V(ef)}, v{vA}, {S(rM)}, s{sT1} offen sc1\ns_mov_b64 exec, -1", tag='epub')
    stamp(a, 3)
    vA6, vK6, vPA = vRT, vRT+6, vX+10
    a(f"s_lshl_b32 s{sU}, s{sT0}, 9\ns_add_u32 s{sU}, s{sU}, {EOFF}")
    a(f"v_lshrrev_b32 v{vPA}, 5, v{vL}\nv_sub_u32 v{vPA}, s{sRB}, v{vPA}\nv_mov_b32 v{vPA+1}, {OOB}\nv_and_b32 v{vT}, 0x1f0, v{vA}\nv_mov_b32 v{vT+2}, s{sNon}")
    for m in range(6):
        a(f"v_add_u32 v{vT+1}, {-(1+2*m)}, v{vPA}\nv_cmp_le_i32 vcc, 0, v{vT+1}\nv_lshl_add_u32 v{vT+1}, v{vT+1}, 9, v{vT}")
        a(f"v_cndmask_b32 v{vA6+m}, v{vPA+1}, v{vT+1}, vcc\nv_cndmask_b32 v{vK6+m}, 0, v{vT+2}, vcc")
    polls = "\n".join(f"buffer_load_dwordx4 {V(vE+4*m)}, v{vA6+m}, {S(rM)}, s{sU} offen sc1" for m in range(6))
    for i in range(40):
        t = gr if i & 1 else gi
        if i == 20: a(polls, tag='ep')
        a(f"v_pk_mul_f32 {P(t)}, {P(im(i))}, {P(cc)} op_sel:[0,1] op_sel_hi:[1,1]")
        a(f"v_pk_mul_f32 {P(im(i))}, {P(im(i))}, {P(cc)} op_sel_hi:[1,0]")
        a(f"v_pk_fma_f32 {P(im(i))}, {P(re(i))}, {P(cc)}, {P(im(i))} op_sel:[0,1,0] op_sel_hi:[1,1,1]")
        a(f"v_pk_fma_f32 {P(re(i))}, {P(re(i))}, {P(cc)}, {P(t)} op_sel_hi:[1,0,1] neg_lo:[0,0,1] neg_hi:[0,0,1]")
    vTW, vTR = vX+16, vX+17
    a(f"s_add_u32 s{sT0}, s{sReg}, {TB}")
    a(f"v_and_b32 v{vTW}, 31, v{vL}\nv_mul_u32_u24 v{vTW}, 336, v{vTW}\nv_lshrrev_b32 v{vTR}, 5, v{vL}\nv_mul_u32_u24 v{vTR}, 160, v{vTR}\nv_add3_u32 v{vTW}, v{vTW}, v{vTR}, s{sT0}")
    a(f"v_lshrrev_b32 v{vTR}, 4, v{vL}\nv_lshlrev_b32 v{vTR}, 3, v{vTR}\nv_bfe_u32 v{vT}, v{vL}, 2, 2\nv_add_u32 v{vTR}, v{vTR}, v{vT}\nv_mul_u32_u24 v{vTR}, 336, v{vTR}")
    a(f"v_and_b32 v{vT}, 3, v{vL}\nv_lshlrev_b32 v{vT}, 3, v{vT}\nv_add3_u32 v{vTR}, v{vTR}, v{vT}, s{sT0}")
    a.wait(vm='ep')
    chk = f"v_xor_b32 v{vT}, v{vE+2}, v{vK6}\n" + "".join(f"v_xor_b32 v{vT+1}, v{vE+4*m+2}, v{vK6+m}\nv_or_b32 v{vT}, v{vT}, v{vT+1}\n" for m in range(1, 6)) + f"v_cmp_ne_u32 vcc, 0, v{vT}"
    spin(a, 'e', polls, chk)
    stamp(a, 4)
    cur = vE + 20
    for m in range(4, -1, -1):
        cmul_add(a, vE+4*m, cur, l320, vE+4*m); cur = vE + 4*m
    g0, g1 = ar, ai
    a(f"v_mov_b32 v{g1}, v{cur}\nv_mov_b32 v{g1+1}, v{cur+1}\nv_mov_b32 v{eo}, 0\nv_mov_b32 v{eo+1}, 0\nv_cmp_gt_u32 vcc, 32, v{vL}")
    a(f"v_permlane32_swap_b32 v{cur}, v{g1}\nv_permlane32_swap_b32 v{cur+1}, v{g1+1}")
    cmul_add(a, g0, g1, l160, cur)
    cmul_add(a, eh, g0, l80, eh)
    a(f"v_cndmask_b32 v{g0}, v{eh}, v{g0}, vcc\nv_cndmask_b32 v{g0+1}, v{eh+1}, v{g0+1}, vcc")
    cmul_add(a, e0, g0, l40, e0)
    cmul_add(a, e1, g0, cc, eo)
    cmul_add(a, eh, e0, cc, eo)
    a(f"v_mov_b32 v{gr}, v{e1}\nv_mov_b32 v{gr+1}, v{eh}\nv_mov_b32 v{gi}, v{e1+1}\nv_mov_b32 v{gi+1}, v{eh+1}")
    vPK = vRT
    cur = (gr, gi)
    for i in range(40):
        step(cur[0], cur[1], re(i), im(i), re(i), im(i))
        cur = (re(i), im(i))
        if i % 3 == 0: b2.emit(a, 1, 15)
        if i & 1:
            blk = i // 8
            pk = vPK + (blk & 1)*16 + (i % 8)//2
            for e in range(2):
                a(f"v_cvt_pk_bf16_f32 v{pk+4*e}, v{re(i-1)+e}, v{re(i)+e}")
                a(f"v_cvt_pk_bf16_f32 v{pk+8+4*e}, -v{im(i-1)+e}, -v{im(i)+e}")
            if i % 8 == 7:
                for comp in range(2):
                    for e in range(2):
                        a(f"ds_write_b128 v{vTW}, {V(vPK+(blk&1)*16+comp*8+e*4)} offset:{comp*32*336 + e*80 + blk*16}", tag='tw')
    a(f"s_lshl_b32 s{sT2}, s{sPair}, 1\ns_add_u32 s{sT2}, s{sT2}, 54\ns_lshl_b32 s{sT2}, s{sT2}, 12")
    a.wait(lg='tw')
    def hstore(q):
        a(f"s_mul_i32 s{sT0}, s{sRB}, 10\ns_add_u32 s{sT0}, s{sT0}, {q}\ns_lshr_b32 s{sT1}, s{sT0}, 2\ns_mul_i32 s{sT1}, s{sT1}, {94*4096}")
        a(f"s_and_b32 s{sT0}, s{sT0}, 3\ns_lshl_b32 s{sT0}, s{sT0}, 10\ns_add_u32 s{sT1}, s{sT1}, s{sT0}\ns_add_u32 s{sT1}, s{sT1}, s{sT2}\ns_add_u32 s{sT3}, s{sT1}, 4096")
        a.wait(lg=f'f{q}')
        a(f"buffer_store_dwordx4 {V(8*q)}, v{vA}, {S(rH)}, s{sT1} offen sc1", tag='hst')
        a(f"buffer_store_dwordx4 {V(8*q+4)}, v{vA}, {S(rH)}, s{sT3} offen sc1", tag='hst')
    for q in range(10):
        for comp in range(2):
            d = 8*q + 4*comp
            off = comp*32*336 + q*32
            a(f"ds_read_b64_tr_b16 v[{d}:{d+1}], v{vTR} offset:{off}\nds_read_b64_tr_b16 v[{d+2}:{d+3}], v{vTR} offset:{off+4*336}", tag=f'f{q}')
        if q >= 2: hstore(q-2)
    hstore(8); hstore(9)
    stamp(a, 5)
    b2.emit(a, B2W, 22)
    flag2_store(a, f"s_add_u32 s{sT0}, s{sG}, 16")
    stamp(a, 6)

def stats_compute(a, vin, vt):
    stamp(a, 12)
    a.wait(vm='st')
    stamp(a, 13)
    x = vt
    for i in range(10):
        a(f"v_lshlrev_b32 v{x+2*i}, 16, v{vin+i}\nv_and_b32 v{x+2*i+1}, 0xffff0000, v{vin+i}")
    s = vt + 20
    a(f"v_pk_add_f32 {P(s)}, {P(x)}, {P(x+2)}")
    for i in range(2, 10): a(f"v_pk_add_f32 {P(s)}, {P(s)}, {P(x+2*i)}")
    a(f"v_add_f32 v{s}, v{s}, v{s+1}")
    reduce32(a, s, s+1)
    a(f"v_mul_f32 v{s}, {f2u(-1.0/640)}, v{s}")
    for i in range(10): a(f"v_pk_add_f32 {P(x+2*i)}, {P(x+2*i)}, {P(s)} op_sel_hi:[1,0]")
    q = vt + 22
    a(f"v_pk_mul_f32 {P(q)}, {P(x)}, {P(x)}")
    for i in range(1, 10): a(f"v_pk_fma_f32 {P(q)}, {P(x+2*i)}, {P(x+2*i)}, {P(q)}")
    a(f"v_add_f32 v{q}, v{q}, v{q+1}")
    reduce32(a, q, q+1)
    o = vt
    bf16_round(a, o, s)
    a(f"v_mul_f32 v{q}, {f2u(1.0/640)}, v{q}")
    bf16_round(a, q, q)
    a(f"v_add_f32 v{q}, {f2u(1e-5)}, v{q}")
    bf16_round(a, q, q)
    a(f"v_sqrt_f32 v{q}, v{q}")
    bf16_round(a, o+1, q)
    a(f"v_lshrrev_b32 v{o+4}, 2, v{vL}")
    a(f"s_lshl_b32 s{sT0}, s2, 6\ns_lshl_b32 s{sT1}, s{sW}, 4\ns_add_u32 s{sT0}, s{sT0}, s{sT1}\ns_add_u32 s{sT0}, s{sT0}, {STATS}\ns_mov_b32 exec_lo, 1\ns_mov_b32 exec_hi, 1")
    a(f"buffer_store_dwordx2 {P(o)}, v{o+4}, {S(rM)}, s{sT0} offen sc1\ns_mov_b64 exec, -1", tag='early')

def stats_issue(a):
    a(f"s_lshl_b32 s{sT0}, s2, 2\ns_add_u32 s{sT0}, s{sT0}, s{sW}\ns_mul_i32 s{sT0}, s{sT0}, 2560")
    for i in range(5):
        a(f"buffer_load_dwordx2 v[{100+2*i}:{101+2*i}], v11, {S(rX)}, s{sT0} offen offset:{i*256}", tag='st')

def after_kernarg(a, role):
    a("s_waitcnt lgkmcnt(0)")
    if PROBE != -2: a("s_mov_b32 s0, s80\ns_mov_b32 s1, s80")
    srd(a, rF, sDbg, 256)
    if role == 'glu':
        a(f"s_or_b32 s{sT0}, s2, s{sW}\ns_cbranch_scc1 L_nonon\ns_or_b32 s{sT2}, s{sT2}, 1\nv_mov_b32 v12, s{sT2}\ns_mov_b64 exec, 1")
        st = a.state()
        a(f"buffer_store_dword v12, off, {S(rF)}, 0 sc1\ns_mov_b64 exec, -1\nL_nonon:")
        a.set_state(st)
    srd(a, rX, sX, 2048*1280)

def common_srds(a):
    srd(a, rH, sWs, H_SIZE)
    a(f"s_add_u32 s{rM}, s{sWs}, {MISC}\ns_addc_u32 s{rM+1}, s{sWs+1}, 0\ns_mov_b32 s{rM+2}, {MISC_SIZE}\ns_mov_b32 s{rM+3}, 0x20000")
    srd(a, rWd, sWd, 1728*1280)
    srd(a, rC, sCre, 640*1280)
    if STAMP:
        a(f"s_lshl_b32 s82, s2, 2\ns_add_u32 s82, s82, s{sW}\ns_lshl_b32 s82, s82, 7\ns_add_u32 s82, s82, {STAMPS}")
        a(f"v_accvgpr_write_b32 a253, s98\nv_accvgpr_write_b32 a252, s96")
        a(f"buffer_store_dword a253, off, {S(rM)}, s82 offset:{18*4}\nbuffer_store_dword a252, off, {S(rM)}, s82 offset:{19*4}", tag='stamp')

def start_loads(a, role):
    q = [(t, f'c{c}', c, i) for c in range(10) for i, t in enumerate(dma_chunk(role, c))]
    for _ in range(9):
        t = q.pop(0); a(t[0], tag=t[1])
    common_srds(a)
    stamp(a, 0)
    for x, tag in touch(role, 0): a(x, tag=tag)
    if role == 'ssm':
        for i, p in enumerate((sLre, sLim, sLdt)):
            a(f"global_load_ushort v{vLAM+i}, v13, s[{p}:{p+1}]", tag='lam')
    stats_issue(a)
    for _ in range(4):
        t = q.pop(0); a(t[0], tag=t[1])
    if role == 'ssm': lam_setup(a, 20)
    for _ in range(N1):
        t = q.pop(0); a(t[0], tag=t[1])
    stats_compute(a, 100, 120)
    stamp(a, 1)
    return q

def phase2(a):
    NR = 5
    RING = 80
    vBase, vEA, vLA, vLW, vFl, vPo, vBR = 200, 220, 225, 230, 231, 232, 234
    rO, rD = rA, rB
    a("L_p2:")
    srd(a, rD, sD, 1280)
    srd(a, rO, sOut, 2048*2560)
    tid = vT+4
    a(f"s_lshl_b32 s{sT0}, s{sW}, 6\nv_add_u32 v{tid}, s{sT0}, v{vL}")
    a(f"s_lshl_b32 s{sT0}, s{sRT}, 6\ns_mul_i32 s{sT1}, s{sN8}, 20\ns_mov_b32 s{sT2}, {STATS}")
    for i in range(5):
        f, r, c = vT, vT+1, vT+2
        a(f"v_add_u32 v{f}, {256*i}, v{tid}\nv_mul_u32_u24 v{r}, 3277, v{f}\nv_lshrrev_b32 v{r}, 16, v{r}\nv_mul_u32_u24 v{c}, 20, v{r}\nv_sub_u32 v{c}, v{f}, v{c}")
        a(f"v_mul_u32_u24 v{f}, 336, v{r}\nv_lshl_add_u32 v{vLA+i}, v{c}, 4, v{f}")
        a(f"v_add_u32 v{r}, s{sT0}, v{r}\nv_add_u32 v{c}, s{sT1}, v{c}\nv_mul_u32_u24 v{f}, 160, v{r}\nv_add_u32 v{f}, v{f}, v{c}\nv_lshlrev_b32 v{vEA+i}, 4, v{f}")
        a(f"v_lshlrev_b32 v{f}, 3, v{f}\nv_lshlrev_b32 v{c}, 3, v{c}\nv_lshlrev_b32 v{r}, 3, v{r}")
        a(f"buffer_load_dwordx2 {P(8*i)}, v{f}, {S(rX)}, 0 offen", tag='ep')
        a(f"buffer_load_dwordx2 {P(8*i+2)}, v{c}, {S(rD)}, 0 offen", tag='ep')
        a(f"buffer_load_dwordx2 {P(8*i+4)}, v{r}, {S(rM)}, s{sT2} offen sc1", tag='ep')
    j, rb, t = vT, vT+1, vT+2
    a(f"v_lshrrev_b32 v{rb}, 5, v{vL}\nv_mul_u32_u24 v{rb}, 63, v{rb}\nv_add_u32 v{rb}, s{sT0}, v{rb}\nv_lshrrev_b32 v{rb}, 5, v{rb}\nv_mul_u32_u24 v{rb}, 205, v{rb}\nv_lshrrev_b32 v{rb}, 10, v{rb}")
    a(f"v_and_b32 v{j}, 31, v{vL}\ns_lshr_b32 s{sT1}, s{sW}, 1\ns_xor_b32 s{sT1}, s{sT1}, 1\ns_lshl_b32 s{sT2}, s{sW}, 5")
    a(f"v_and_b32 v{t}, 15, v{j}\nv_lshlrev_b32 v{t}, 1, v{t}\nv_add_u32 v{t}, s{sT1}, v{t}")
    a(f"v_and_b32 v{vFl}, 3, v{t}\nv_lshlrev_b32 v{vFl}, 5, v{vFl}\nv_lshrrev_b32 v{t}, 2, v{t}\nv_add3_u32 v{vFl}, v{vFl}, v{t}, 16")
    a(f"v_cmp_gt_u32 vcc, 16, v{j}\nv_add_u32 v{j}, s{sT2}, v{j}\ns_mov_b32 s{sU}, {FLAG2}\nv_cndmask_b32 v{vFl}, v{vFl}, v{j}, vcc\nv_lshl_add_u32 v{vFl}, v{rb}, 7, v{vFl}\nv_lshlrev_b32 v{vFl}, 5, v{vFl}")
    poll = f"buffer_load_dword v{vPo}, v{vFl}, {S(rM)}, s{sU} offen sc1"
    a(poll, tag='po')
    a(f"s_mul_i32 s{sT0}, s{sW}, 21504\nv_and_b32 v{vLW}, 15, v{vL}\nv_mul_u32_u24 v{vLW}, 336, v{vLW}\nv_and_b32 v{vT}, 48, v{vL}\nv_add3_u32 v{vLW}, v{vLW}, v{vT}, s{sT0}")
    a(f"v_add_u32 v{vBR}, s{sReg}, v{vA}\ns_mov_b32 s16, 0x3fff\ns_mov_b32 s17, 0x3fff\ns_mov_b32 s22, 0x3ff0000\ns_mov_b32 s23, 0x3ff0000")
    a.wait(vm='ep')
    for i in range(5):
        x, d, s = 48, 52, 8*i+4
        a(f"v_rcp_f32 v{s+1}, v{s+1}")
        for r, src in ((x, 8*i), (x+2, 8*i+1), (d, 8*i+2), (d+2, 8*i+3)):
            a(f"v_lshlrev_b32 v{r}, 16, v{src}\nv_and_b32 v{r+1}, 0xffff0000, v{src}")
        for h in range(2):
            o = vBase + 4*i + 2*h
            a(f"v_pk_add_f32 {P(o)}, {P(x+2*h)}, {P(s)} op_sel_hi:[1,0]")
            a(f"v_pk_mul_f32 {P(d+2*h)}, {P(d+2*h)}, {P(s)} op_sel:[0,1] op_sel_hi:[1,1]")
            a(f"v_pk_fma_f32 {P(o)}, {P(o)}, {P(d+2*h)}, {P(x+2*h)}")
    a.wait(vm='po')
    stamp(a, 16)
    def chk(m): return f"v_cmp_ne_u32 vcc, s{sNon}, v{vPo}\ns_and_b64 vcc, vcc, s[{m}:{m+1}]"
    spin(a, 'g', poll, chk(16))
    stamp(a, 8)
    def aloads(p):
        st = p % NR
        t = f"s_add_u32 s{sJ1}, s{sAo+(p&3)}, {(p&~3)*4*4096}\n"
        if p >= 20: t += f"s_cmp_ge_u32 s{sJ1}, s{sAlim}\ns_cselect_b32 s{sJ1}, {OOB}, s{sJ1}\n"
        L = [f"buffer_load_dwordx4 {V(RING+16*st+4*q)}, v{vA}, {S(rH)}, s{sJ1} offen offset:{q*1024} sc1" for q in range(4)]
        L[0] = t + L[0]
        return [(x, f'a{p}') for x in L]
    for p in range(NR-1):
        for x, tag in aloads(p): a(x, tag=tag)
    for p in range(24):
        st = p % NR
        nx = p + NR - 1
        fill = []
        if nx == 9: fill += [(poll, 'po')]
        if nx == 12: fill += [('SSMCHK', None)]
        if nx < 24: fill += aloads(nx)
        if p in (10, 11): fill += b2_items(p + 12)
        if 10 <= p < 18:
            fill += [(f"ds_read_b128 {A(20*(p-10)+4*q)}, v{vBR} offset:{(p-10)*5120+q*1024}", f'l{p+2}') for q in range(5)]
        if p == 21: fill += [('s_barrier', None)]
        a.wait(vm=[f'a{p}', f'b{p}'], lg=f'l{p}')
        k, d = b2_dest(p)
        if k == 'l': k, d = 'a', 20*d
        n = 0
        for mt in range(4):
            for nt in range(5):
                acc = V((mt*5+nt)*4)
                bf = A(d+4*nt) if k == 'a' else V(d+4*nt)
                a(f"v_mfma_f32_16x16x32_bf16 {acc}, {bf}, {V(RING+16*st+4*mt)}, {'0' if p == 0 else acc}")
                if n < len(fill):
                    x, tag = fill[n]
                    if x == 'SSMCHK':
                        a.wait(vm='po'); spin(a, 's', poll, chk(22))
                        stamp(a, 17)
                    else: a(x, tag=tag)
                n += 1
        assert len(fill) <= 20
    stamp(a, 9)
    for mt in range(4):
        for nt in range(5):
            a(f"ds_write_b128 v{vLW}, {V((mt*5+nt)*4)} offset:{mt*16*336 + nt*64}", tag='w')
    a("s_waitcnt lgkmcnt(0)\ns_barrier")
    for i in range(5):
        for w in range(4):
            a(f"ds_read_b128 {V(RING+16*i+4*w)}, v{vLA+i} offset:{w*21504}", tag=f'q{i}')
    for i in range(5):
        a.wait(lg=f'q{i}')
        for w in range(4):
            for h in range(2):
                o = vBase + 4*i + 2*h
                a(f"v_pk_add_f32 {P(o)}, {P(o)}, {P(RING+16*i+4*w+2*h)}")
        a(f"buffer_store_dwordx4 {V(vBase+4*i)}, v{vEA+i}, {S(rO)}, 0 offen {OST}")
    stamp(a, 10)
    if PROBE != -2:
        a("s_sub_u32 s1, s1, s0\ns_lshl_b32 s1, s1, 2")
        if PWG >= 0: a(f"s_cmp_eq_u32 s2, {PWG}\ns_cselect_b32 s1, s1, 0")
        a("s_add_u32 s1, s1, 6000\nL_probe:\ns_sleep 1\ns_memrealtime s[80:81]\ns_waitcnt lgkmcnt(0)\ns_sub_u32 s80, s80, s0\ns_cmp_lt_u32 s80, s1\ns_cbranch_scc1 L_probe")
    if STAMP:
        a("s_waitcnt vmcnt(0)"); stamp(a, 11)
        a(f"s_memrealtime s[80:81]\ns_waitcnt lgkmcnt(0)\nv_accvgpr_write_b32 a254, s80\nbuffer_store_dword a254, off, {S(rM)}, s82 offset:{20*4}")
    a("s_endpgm")

def kernel():
    a = Asm()
    a(f"s_cmp_ge_u32 s2, 256\ns_cbranch_scc1 L_end")
    if PROBE != -2: a("s_memrealtime s[80:81]\ns_memtime s[82:83]")
    if STAMP: a("s_memtime s[98:99]\ns_memrealtime s[96:97]")
    a(f"s_load_dwordx16 s[8:23], s[0:1], 0\ns_load_dwordx16 s[24:39], s[0:1], 64")
    a(f"s_getpc_b64 s[{rP}:{rP+1}]\nL_pf:\ns_mov_b32 s{rP+2}, L_end-L_pf\ns_mov_b32 s{rP+3}, 0x20000")
    a(f"s_lshr_b32 s{sT1}, s2, 3\ns_lshl_b32 s{sT0}, s{sT1}, 11\nv_lshlrev_b32 v1, 7, v0\nv_cmp_gt_u32 vcc, 16, v0\nv_mov_b32 v2, {OOB}\nv_add_u32 v1, s{sT0}, v1\nv_cndmask_b32 v1, v2, v1, vcc")
    a(f"buffer_load_dword a{aDUM}, v1, {S(rP)}, 0 offen", tag='pf')
    a(f"v_and_b32 v{vL}, 63, v0\nv_lshrrev_b32 v1, 6, v0\nv_lshlrev_b32 v{vA}, 4, v{vL}\nv_readfirstlane_b32 s{sW}, v1")
    a(f"""s_mov_b32 s{sSpin}, 0
s_and_b32 s{sT0}, s2, 7
s_mul_i32 s{sTile}, s{sT0}, 31
s_add_u32 s{sTile}, s{sTile}, s{sT1}
s_mul_i32 s{sG}, s{sTile}, 9363
s_lshr_b32 s{sG}, s{sG}, 16
s_mul_i32 s{sRB}, s{sG}, 7
s_sub_u32 s{sRB}, s{sTile}, s{sRB}
s_sub_u32 s{sT3}, s{sTile}, 133
s_mul_i32 s{sCls}, s{sT3}, 10923
s_lshr_b32 s{sCls}, s{sCls}, 16
s_mul_i32 s{sXo}, s{sCls}, 6
s_sub_u32 s{sXo}, s{sT3}, s{sXo}
s_add_u32 s{sXo}, s{sXo}, 7
s_sub_u32 s{sCls}, 18, s{sCls}
s_cmp_ge_u32 s{sTile}, 133
s_cselect_b32 s{sG}, s{sCls}, s{sG}
s_cselect_b32 s{sRB}, s{sXo}, s{sRB}
s_add_u32 s{sCls}, s{sRB}, s{sG}""")
    if Q1 <= 2: a(f"s_and_b32 s{sCls}, s{sCls}, {Q1-1}")
    else: a(f"s_mul_i32 s{sXo}, s{sCls}, {65536//Q1+1}\ns_lshr_b32 s{sXo}, s{sXo}, 16\ns_mul_i32 s{sXo}, s{sXo}, {Q1}\ns_sub_u32 s{sCls}, s{sCls}, s{sXo}")
    a(f"""s_and_b32 s{sKind}, s{sG}, 3
s_cmp_eq_u32 s{sKind}, 2
s_cselect_b32 s{sKind}, 1, 0
s_cmp_eq_u32 s{sTile}, 247
s_cselect_b32 s{sKind}, 2, s{sKind}
s_cselect_b32 s{sG}, 8, s{sG}
s_cmp_eq_u32 s{sT1}, 31
s_cselect_b32 s{sKind}, 2, s{sKind}
s_cselect_b32 s{sG}, s{sT0}, s{sG}""")
    a(f"v_lshrrev_b32 v7, 5, v{vL}\nv_mul_u32_u24 v11, 1280, v7\nv_and_b32 v12, 31, v{vL}\nv_lshl_add_u32 v11, v12, 3, v11")
    st0 = a.state()
    a(f"s_cmp_eq_u32 s{sKind}, 2\ns_cbranch_scc1 L_spare")
    a(f"s_mul_i32 s{sXm}, s{sW}, 5120")
    a(f"v_lshrrev_b32 v2, 3, v{vL}\nv_and_b32 v3, 7, v{vL}")
    a(f"s_lshl_b32 s{sT0}, s{sW}, 2\nv_lshrrev_b32 v4, 1, v2\nv_add_u32 v4, s{sT0}, v4\nv_and_b32 v4, 7, v4\nv_xor_b32 v4, v4, v3\nv_lshlrev_b32 v4, 4, v4")
    a(f"s_mul_i32 s{sT1}, s{sRB}, 160")
    a(f"v_bfe_u32 v5, v{vL}, 3, 2\nv_mul_u32_u24 v5, 5120, v5\nv_lshl_add_u32 v5, v3, 7, v5")
    a(f"v_bfe_u32 v6, v{vL}, 1, 3\nv_xor_b32 v6, v6, v7")
    for s in range(4):
        a(f"v_xor_b32 v8, {2*s}, v6\nv_lshl_add_u32 v{vXR+s}, v8, 4, v5")
    a(f"s_cmp_eq_u32 s{sKind}, 1\ns_cbranch_scc1 L_ssm")
    a(f"s_add_u32 s{sT0}, s{sG}, 2\ns_lshr_b32 s{sT0}, s{sT0}, 2\ns_sub_u32 s{sG}, s{sG}, s{sT0}\ns_lshl_b32 s{sPair}, s{sG}, 2\ns_add_u32 s{sPair}, s{sPair}, s{sW}")
    a(f"s_lshl_b32 s{sT0}, s{sW}, 3\ns_add_u32 s{sT1}, s{sT1}, s{sT0}\nv_add_u32 v8, s{sT1}, v2\nv_mul_u32_u24 v8, 1280, v8\nv_add_u32 v{vXD}, v8, v4")
    for j in range(1, 5):
        a(f"v_add_u32 v{vXD+j}, {j*32*1280 - (j*1024 if j < 4 else 0)}, v{vXD}")
    a(f"s_lshr_b32 s{sT0}, s{sW}, 1\ns_lshl_b32 s{sT2}, s{sG}, 1\ns_add_u32 s{sT2}, s{sT2}, s{sT0}\ns_lshl_b32 s{sKind}, s{sT2}, 7\ns_cmp_ge_u32 s{sT2}, 27\ns_cselect_b32 s{sKind}, {OOB}, s{sKind}")
    a(f"v_bfe_u32 v8, v{vL}, 2, 3\nv_mul_u32_u24 v8, 3456, v8\nv_lshl_add_u32 v8, v7, 6, v8\nv_and_b32 v10, 0x30, v{vA}\nv_add3_u32 v{vWD}, v8, v10, s{sKind}")
    for j in range(1, 4):
        a(f"v_add_u32 v{vWD+j}, {j*(8*3456-1024)}, v{vWD}")
    a(f"s_mul_i32 s{sWm}, s{sT0}, 49152\ns_and_b32 s{sT2}, s{sW}, 1\ns_lshl_b32 s{sT3}, s{sT2}, 13\ns_add_u32 s{sT3}, s{sT3}, s{sWm}\ns_lshl_b32 s{sT2}, s{sT2}, 9\ns_add_u32 s{sT2}, s{sT2}, s{sWm}\ns_add_u32 s{sT2}, s{sT2}, {WB}\ns_add_u32 s{sWm}, s{sT3}, {WB}")
    a(f"v_bfe_u32 v8, v{vL}, 2, 2\nv_lshlrev_b32 v8, 6, v8\nv_lshl_add_u32 v8, v7, 10, v8\nv_and_b32 v10, 1, v{vL}\nv_lshl_add_u32 v8, v10, 5, v8")
    a(f"v_bfe_u32 v10, v{vL}, 4, 1\nv_lshl_add_u32 v8, v10, 4, v8\nv_bfe_u32 v10, v{vL}, 1, 1\nv_lshl_add_u32 v8, v10, 3, v8\nv_add_u32 v{vWR}, s{sT2}, v8")
    a(f"s_memrealtime s[74:75]")
    a("s_waitcnt lgkmcnt(0)")
    a(f"s_mov_b32 s{sT2}, s74")
    after_kernarg(a, 'glu')
    a(f"s_bitcmp1_b32 s{sW}, 0\ns_cselect_b32 s{rA}, s{sWu}, s{sWg}\ns_cselect_b32 s{rA+1}, s{sWu+1}, s{sWg+1}\ns_mov_b32 s{rA+2}, {640*3456}\ns_mov_b32 s{rA+3}, 0x20000")
    q = start_loads(a, 'glu')
    b2 = B2Q()
    mainloop(a, 'glu', q, b2)
    stamp(a, 2)
    epilogue_glu(a, b2)
    b2.emit(a, 999, 22)
    a("s_branch L_p2")
    a.set_state(st0)
    a("L_ssm:")
    a(f"s_lshr_b32 s{sG}, s{sG}, 2\ns_lshl_b32 s{sPair}, s{sG}, 2\ns_add_u32 s{sPair}, s{sPair}, s{sW}")
    a(f"s_lshl_b32 s{sT0}, s{sW}, 1\ns_add_u32 s{sT1}, s{sT1}, s{sT0}\nv_mul_u32_u24 v8, 80, v7\nv_and_b32 v9, 1, v2\nv_mul_u32_u24 v9, 40, v9\nv_bfe_u32 v10, v2, 1, 1")
    a(f"v_add3_u32 v8, v8, v9, v10\nv_add_u32 v8, s{sT1}, v8\nv_mul_u32_u24 v8, 1280, v8\nv_add_u32 v{vXD}, v8, v4")
    for j in range(1, 5):
        a(f"v_add_u32 v{vXD+j}, {j*8*1280 - (j*1024 if j < 4 else 0)}, v{vXD}")
    a(f"s_lshl_b32 s{sT0}, s{sPair}, 5\ns_mul_i32 s{sKind}, s{sT0}, 1280")
    for rg in range(4):
        a(f"v_add_u32 v8, {8*rg}, v2\nv_bfe_u32 v9, v8, 1, 3\nv_xor_b32 v9, v9, v3\nv_add_u32 v8, s{sT0}, v8\nv_mul_u32_u24 v8, 1280, v8\nv_add_u32 v8, {-1024*rg}, v8\nv_lshl_add_u32 v{vWD+rg}, v9, 4, v8")
    a(f"s_mul_i32 s{sWm}, s{sW}, 24576\ns_add_u32 s{sWm}, s{sWm}, {WB}")
    a(f"v_lshlrev_b32 v9, 7, v12\nv_add_u32 v9, s{sWm}, v9")
    for s in range(4):
        a(f"v_xor_b32 v10, {2*s}, v6\nv_lshl_add_u32 v{vWR+s}, v10, 4, v9")
    a(f"v_add_u32 v13, s{sT0}, v12\nv_lshlrev_b32 v13, 1, v13")
    after_kernarg(a, 'ssm')
    srd(a, rA, sBre, 640*1280)
    srd(a, rB, sBim, 640*1280)
    q = start_loads(a, 'ssm')
    b2 = B2Q()
    mainloop(a, 'ssm', q, b2)
    stamp(a, 2)
    epilogue_ssm(a, b2)
    b2.emit(a, 999, 22)
    a("s_branch L_p2")
    a.set_state(st0)
    a("L_spare:")
    after_kernarg(a, 'spare')
    common_srds(a)
    stamp(a, 0)
    stats_issue(a)
    a(f"s_lshl_b32 s{sPair}, s{sG}, 2\ns_add_u32 s{sPair}, s{sPair}, s{sW}\ns_lshl_b32 s{sReg}, s{sW}, 13")
    for i in range(6):
        a(f"s_add_u32 s{sU}, s{sPair}, {1976+36*i}")
        for x, tag in wd_issue(f"s_add_u32 m0, s{sReg}, {i*1024}", f'w{i}'): emit_item(a, x, tag, 'spare')
    stats_compute(a, 100, 120)
    for i in range(6):
        a(f"s_add_u32 s{sU}, s{sPair}, {1976+36*i}\n" + div10(sJ0, sJ1, sU))
        for x, tag in wd_finish(sReg, i*1024, f'w{i}', 4*i): emit_item(a, x, tag, 'spare')
    a(NONCE_LOAD, tag='non')
    nonce_check(a, 'spare')
    a("s_waitcnt vmcnt(0)\ns_barrier")
    for x, tag in flag1_store(): a(x, tag=tag)
    for x, tag in p2_scalars(): a(x)
    a(F1_LOAD, tag='f1')
    flag1_check(a, 'spare')
    a("s_barrier")
    B2Q().emit(a, 999, 22)
    a.set_state(([], [], False))
    phase2(a)
    for t in SLOW: a(t)
    a("L_end:")
    return a

def wrap(name, a):
    return f"""
.text
.globl {name}
.p2align 8
.type {name},@function
{name}:
{a.text()}    s_endpgm
.section .rodata,"a"
.p2align 6
.amdhsa_kernel {name}
  .amdhsa_next_free_vgpr 512
  .amdhsa_next_free_sgpr 102
  .amdhsa_accum_offset 256
  .amdhsa_group_segment_fixed_size 0
  .amdhsa_kernarg_size 128
  .amdhsa_user_sgpr_count 2
  .amdhsa_user_sgpr_kernarg_segment_ptr 1
  .amdhsa_system_sgpr_workgroup_id_x 1
.end_amdhsa_kernel
"""

if __name__ == "__main__":
    out = [x for x in sys.argv[1:] if not x.startswith('--')][0]
    hdr = open('cdna_kernels/' + NAME + '.s.ref').read().split('; Override launch')[0]
    s = hdr
    if '--list' in sys.argv:
        s += f"; @launch kernel={NAME}_kernel grid=(256,1,1) block=(256,1,1) lds={LDS}\n"
    else:
        s += f"; @launch grid=(256,1,1) block=(256,1,1) lds={LDS}\n"
    s += '.amdgcn_target "amdgcn-amd-amdhsa--gfx950"\n'
    k = kernel()
    s += wrap(NAME + "_kernel", k)
    open(out, 'w').write(s)
    print("pads", k.npad, "instrs", len(k.ins))
```

```python
import sys, math, struct
from emit import Asm

NAME = "parallel_sum__ssm_conv_s5__glu_gated_glu__prompt"
def opt(name, default):
    for x in sys.argv:
        if x.startswith(f'--{name}='):
            return type(default)(x.split('=', 1)[1])
    return default
STAMP = '--stamp' in sys.argv
Q1 = opt('q1', 2)
Q2 = opt('q2', 1)
N1 = opt('n1', 8)
DQ = opt('dq', 3.4)
FB = opt('fb', 5)
FL = opt('fl', 13)
FC = opt('fc', 15)
MQ = opt('mq', 4.4)
N0 = opt('n0', 9)
SCK = opt('sck', 10)
B2C = opt('b2c', 8)
B2P = opt('b2p', 10)
B2E = opt('b2e', 2)
PBS = opt('pbs', 19)
PBG = opt('pbg', 22)
MAP2 = opt('map2', 0)
EPC = opt('epc', 38)
NPL = opt('npl', 4)
EPL = opt('epl', 36)
B2W = opt('b2w', 10)
B2S = opt('b2s', 20)
PROBE = opt('probe', -2)
PWG = opt('pwg', -1)
PCYC = opt('pcyc', 0)
OST = opt('ost', 'nt')
PFL = 20
NOREP = opt('norep', 0)
RPK = opt('rpk', 0)
LSC = opt('lsc', 'sc1')
if LSC == 'none': LSC = ''
SLP = opt('slp', 2)
LOG2E = 1.4426950408889634
def f2u(x): return "0x%08x" % struct.unpack('<I', struct.pack('<f', x))[0]

H_SIZE = 32*94*4096
MISC = 0x1000000
STATS = 0x400000
FLAG1 = 0x410000
FLAG2 = 0x420000
SUMS = 0x440000
EOFF = 0x460000
STAMPS = 0x490000
MISC_SIZE = 0x500000
OOB = 0x8000000
SPINMAX = 100000
XB, WB, SPARE, LDS = 0, 61440, 159744, 163840
N8S = 94*5120

sX, sLre, sLim, sBre, sBim, sCre, sCim, sLdt, sD, sWg, sWu, sWd, sOut, sDbg, sWs = 8,10,12,14,16,18,20,22,24,28,30,32,34,36,38
rX, rA, rB, rH, rM, rF, rP, rWd, rC = 40, 44, 48, 52, 56, 60, 84, 88, 92
(sW, sRB, sG, sCls, sXo, sWo, sWo2, sXm, sWm, sT0, sT1, sT2, sT3, sKind, sPair, sSpin) = range(64, 80)
sNon = 83
sTile, sRT, sN8, sReg, sAlim, sBlim = 3, 4, 5, 6, 7, 26
sU = 27
sAo = 96
sBo = 12
sJ0, sJ1 = 100, 101

def srd(a, r, base, size):
    a(f"s_mov_b32 s{r}, s{base}\ns_mov_b32 s{r+1}, s{base+1}\ns_mov_b32 s{r+2}, {size}\ns_mov_b32 s{r+3}, 0x20000")
def S(r, n=4): return f"s[{r}:{r+n-1}]"
def V(r, n=4): return f"v[{r}:{r+n-1}]"
def A(r, n=4): return f"a[{r}:{r+n-1}]"
def P(r): return f"v[{r}:{r+1}]"

def stamp(a, idx):
    if PROBE == idx and not PCYC: a("s_memrealtime s[80:81]\ns_waitcnt lgkmcnt(0)\ns_mov_b32 s1, s80")
    if PROBE == idx and PCYC: a("s_memtime s[80:81]\ns_waitcnt lgkmcnt(0)\ns_sub_u32 s1, s80, s82\ns_lshr_b32 s1, s1, 4\ns_add_u32 s1, s1, s0")
    if not STAMP: return
    a(f"s_memtime s[80:81]\ns_memrealtime s[0:1]\ns_waitcnt lgkmcnt(0)\nv_accvgpr_write_b32 a252, s80\nv_accvgpr_write_b32 a253, s0")
    a(f"buffer_store_dwordx2 a[252:253], off, {S(rM)}, s82 offset:{idx*8}", tag='stamp')

def bf16_round(a, d, s):
    a(f"v_cvt_pk_bf16_f32 v{d}, v{s}, v{s}\nv_lshlrev_b32 v{d}, 16, v{d}")
def reduce32(a, v, t):
    for sh in (8, 4, 2, 1):
        a(f"v_add_f32_dpp v{v}, v{v}, v{v} row_ror:{sh} row_mask:0xf bank_mask:0xf")
    a(f"v_mov_b32 v{t}, v{v}\nv_permlane16_swap_b32 v{v}, v{t}\nv_add_f32 v{v}, v{v}, v{t}")

XF, WF, vXR, vWR, vXD, vWD, vL, vS, vSt, vA, vT, vLAM = 160, 200, 216, 220, 224, 229, 233, 234, 236, 238, 239, 244
def accg(j): return 32*j
def accu(j): return 32*j + 16
aST = 240
aDUM = 255

def dma_chunk(role, c, wfirst=False):
    slot = c % 3
    glu = role.startswith('glu')
    if Q1 == 1: pre = f"s_mov_b32 s{sT3}, {c}"
    elif Q1 == 2: pre = f"s_xor_b32 s{sT3}, s{sCls}, {c}"
    else: pre = f"s_add_u32 s{sT3}, s{sCls}, {c}\ns_sub_u32 s{sXo}, s{sT3}, {Q1}\ns_cmp_ge_u32 s{sT3}, {Q1*(c//Q1+1)}\ns_cselect_b32 s{sT3}, s{sXo}, s{sT3}"
    pre += f"\ns_lshl_b32 s{sXo}, s{sT3}, 7"
    if glu: pre += f"\ns_mul_i32 s{sWo}, s{sT3}, {64*3456}\ns_add_u32 s{sWo2}, s{sWo}, {32*3456}"
    def grp(m0, loads):
        return [(m0 + "\n" + loads[0], True)] + [(x, False) for x in loads[1:]]
    x = grp(f"s_add_u32 m0, s{sXm}, {slot*20480}", [f"buffer_load_dwordx4 v{vXD+j}, {S(rX)}, s{sXo} offen offset:{j*1024} lds" for j in range(4)])
    if role != 'glu12':
        x += grp(f"s_add_u32 m0, s{sXm}, {slot*20480+4096}", [f"buffer_load_dwordx4 v{vXD+4}, {S(rX)}, s{sXo} offen lds"])
    st = 16384 if glu else 8192
    o1, o2, r2 = (sWo, sWo2, rA) if glu else (sXo, sXo, rB)
    w = grp(f"s_add_u32 m0, s{sWm}, {slot*st}", [f"buffer_load_dwordx4 v{vWD+j}, {S(rA)}, s{o1} offen offset:{j*1024} lds" for j in range(4)])
    w += grp(f"s_add_u32 m0, s{sWm}, {slot*st+4096}", [f"buffer_load_dwordx4 v{vWD+j}, {S(r2)}, s{o2} offen offset:{j*1024} lds" for j in range(4)])
    L = w + x if wfirst else x + w
    t = L[0][0].split("\n")
    L[0] = (t[0] + "\n" + pre + "\n" + t[1], True)
    return L

def reads(role, ks):
    c, s = ks // 4, ks % 4
    slot, b = c % 3, ks & 1
    L = []
    for m in range(2):
        d = WF + b*8 + m*4
        if role.startswith('glu'):
            off = slot*16384 + m*8192 + s*2048
            L.append(f"ds_read_b64_tr_b16 v[{d}:{d+1}], v{vWR} offset:{off}")
            L.append(f"ds_read_b64_tr_b16 v[{d+2}:{d+3}], v{vWR} offset:{off+256}")
        else:
            L.append(f"ds_read_b128 {V(d)}, v{vWR+s} offset:{slot*8192 + m*4096}")
    for j in range(4 if role == 'glu12' else 5):
        L.append(f"ds_read_b128 {V(XF + b*20 + j*4)}, v{vXR+s} offset:{slot*20480 + j*1024}")
    return L

def s_ops(ks):
    b = ks & 1
    L = []
    for i in range(4):
        for m in range(2):
            w = WF + b*8 + m*4 + i
            if ks == 0 and i == 0:
                L += [f"v_lshlrev_b32 v{vS+m}, 16, v{w}", f"v_and_b32 v{vSt+1}, 0xffff0000, v{w}", f"v_add_f32 v{vS+m}, v{vS+m}, v{vSt+1}"]
            else:
                L += [f"v_lshlrev_b32 v{vSt}, 16, v{w}", f"v_and_b32 v{vSt+1}, 0xffff0000, v{w}",
                      f"v_add_f32 v{vS+m}, v{vS+m}, v{vSt}", f"v_add_f32 v{vS+m}, v{vS+m}, v{vSt+1}"]
    return L

def lam_setup():
    lr, li, dt, zr, zi, t = vLAM+10, vLAM+11, vT, vT+1, vT+2, vT+3
    u0 = dt
    L = [f"v_lshlrev_b32 v{lr}, 16, v{vLAM}", f"v_lshlrev_b32 v{li}, 16, v{vLAM+1}", f"v_lshlrev_b32 v{dt}, 16, v{vLAM+2}",
         f"v_mul_f32 v{dt}, {f2u(LOG2E)}, v{dt}", f"v_exp_f32 v{dt}, v{dt}", f"v_cvt_pk_bf16_f32 v{dt}, v{dt}, v{dt}", f"v_lshlrev_b32 v{dt}, 16, v{dt}",
         f"v_mul_f32 v{zr}, v{dt}, v{lr}", f"v_mul_f32 v{zi}, v{dt}, v{li}", f"v_mul_f32 v{zr}, {f2u(LOG2E)}, v{zr}", f"v_mul_f32 v{zi}, 0.15915494, v{zi}"]
    def pw(d, n):
        return [f"v_mul_f32 v{t}, {f2u(float(n))}, v{zr}", f"v_mul_f32 v{u0}, {f2u(float(n))}, v{zi}", f"v_exp_f32 v{t}, v{t}", f"v_fract_f32 v{u0}, v{u0}",
                f"v_cos_f32 v{d}, v{u0}", f"v_sin_f32 v{d+1}, v{u0}", f"v_mul_f32 v{d}, v{d}, v{t}", f"v_mul_f32 v{d+1}, v{d+1}, v{t}"]
    L += pw(vLAM, 1)
    c = vLAM + 2
    L += [f"v_mul_f32 v{t}, v{lr}, v{lr}", f"v_fmac_f32 v{t}, v{li}, v{li}", f"v_rcp_f32 v{t}, v{t}", f"v_add_f32 v{u0}, -1.0, v{vLAM}",
          f"v_mul_f32 v{c}, v{u0}, v{lr}", f"v_fmac_f32 v{c}, v{vLAM+1}, v{li}", f"v_mul_f32 v{c+1}, v{vLAM+1}, v{lr}", f"v_fma_f32 v{c+1}, -v{u0}, v{li}, v{c+1}",
          f"v_add_f32 v{t}, v{t}, v{t}", f"v_mul_f32 v{c}, v{c}, v{t}", f"v_mul_f32 v{c+1}, v{c+1}, v{t}"]
    for idx, n in ((4, 40), (6, 80), (8, 160), (10, 320)): L += pw(vLAM+idx, n)
    return [('WAITVM', 'lam')] + [(x, None) for x in L]

def cmul_add(a, d, x, l, add):
    a(f"v_pk_fma_f32 {P(d)}, {P(x)}, {P(l)}, {P(add)} op_sel:[0,0,0] op_sel_hi:[1,0,1]")
    a(f"v_pk_fma_f32 {P(d)}, {P(x)}, {P(l)}, {P(d)} op_sel:[1,1,0] op_sel_hi:[0,1,1] neg_lo:[1,0,0]")

def div10(d, r, src):
    return f"s_mul_i32 s{d}, s{src}, 6554\ns_lshr_b32 s{d}, s{d}, 16\ns_mul_i32 s{r}, s{d}, 10\ns_sub_u32 s{r}, s{src}, s{r}"

def wd_issue(a, vsrc, m0expr, tag):
    a(div10(sJ0, sJ1, sU))
    a(f"{m0expr}\ns_mul_i32 s{sT0}, s{sJ0}, {16*1280}\ns_lshl_b32 s{sT1}, s{sJ1}, 7\ns_add_u32 s{sT0}, s{sT0}, s{sT1}\ns_add_u32 s{sT1}, s{sT0}, {8*1280-1024}")
    a(f"buffer_load_dwordx4 v{vsrc}, {S(rWd)}, s{sT0} offen lds\nbuffer_load_dwordx4 v{vsrc}, {S(rWd)}, s{sT1} offen offset:1024 lds", tag=tag)
def wd_rdaddr(a, vrd, t, sbase):
    a(f"v_bfe_u32 v{vrd}, v{vL}, 2, 2\nv_lshlrev_b32 v{vrd}, 7, v{vrd}\nv_lshrrev_b32 v{t}, 4, v{vL}\nv_lshl_add_u32 v{vrd}, v{t}, 5, v{vrd}")
    a(f"v_and_b32 v{t}, 3, v{vL}\nv_lshlrev_b32 v{t}, 3, v{t}\nv_add3_u32 v{vrd}, v{vrd}, v{t}, s{sbase}")
def wd_dest(a, vdst, t, sdst):
    a(f"s_lshl_b32 s{sT0}, s{sJ1}, 2\nv_lshrrev_b32 v{t}, 4, v{vL}\nv_add_u32 v{t}, s{sT0}, v{t}")
    a(f"v_mul_u32_u24 v{vdst}, 13, v{t}\nv_lshrrev_b32 v{vdst}, 6, v{vdst}\nv_mul_u32_u24 v{vdst}, {N8S-5120}, v{vdst}\nv_lshl_add_u32 v{vdst}, v{t}, 10, v{vdst}")
    a(f"v_and_b32 v{t}, 0xf0, v{vA}\nv_add_u32 v{vdst}, v{vdst}, v{t}")
    a(f"s_lshr_b32 s{sT0}, s{sJ0}, 1\ns_mul_i32 s{sT0}, s{sT0}, 5120\ns_and_b32 s{sT1}, s{sJ0}, 1\ns_lshl_b32 s{sT1}, s{sT1}, 9\ns_add_u32 s{sT0}, s{sT0}, s{sT1}")
    a(f"s_cmp_ge_u32 s{sJ0}, 108\ns_cselect_b32 s{sdst}, {OOB}, s{sT0}")
def wd_finish(vrd, ldsoff, vdst, sdst, tag, adst):
    return ([('WAITVM', tag)] + [(f"ds_read_b64_tr_b16 {A(adst+2*i,2)}, v{vrd} offset:{ldsoff+512*i}", 'rp') for i in range(4)],
            [('WAITLG', 'rp')] + [(f"buffer_store_dwordx4 {A(adst+4*i)}, v{vdst}, {S(rM)}, s{sdst} offen offset:{256*i} sc1", 'early') for i in range(2)])
def c_issue(a, t, adst, sd0, sd1):
    a(f"v_and_b32 v{t}, 15, v{vL}\nv_mul_u32_u24 v{t}, 1280, v{t}\nv_and_b32 v{t+1}, 48, v{vL}\nv_add_u32 v{t}, v{t}, v{t+1}")
    a(div10(sT0, sT1, sU))
    a(f"s_cmp_ge_u32 s{sT0}, 40\ns_cselect_b32 s{rC}, s{sCim}, s{sCre}\ns_cselect_b32 s{rC+1}, s{sCim+1}, s{sCre+1}\ns_cselect_b32 s{sT2}, 40, 0\ns_cselect_b32 s{sd0}, 5120, 0\ns_add_u32 s{sd0}, s{sd0}, {54*5120}")
    a(f"s_sub_u32 s{sT0}, s{sT0}, s{sT2}\ns_mul_i32 s{sT2}, s{sT0}, {16*1280}\ns_lshl_b32 s{sT3}, s{sT1}, 7\ns_add_u32 s{sT2}, s{sT2}, s{sT3}")
    a(f"buffer_load_dwordx4 {A(adst)}, v{t}, {S(rC)}, s{sT2} offen\nbuffer_load_dwordx4 {A(adst+4)}, v{t}, {S(rC)}, s{sT2} offen offset:64", tag='cj')
    a(f"s_mul_i32 s{sT1}, s{sT1}, {4*5120}\ns_add_u32 s{sd0}, s{sd0}, s{sT1}\ns_mul_i32 s{sT2}, s{sT0}, 205\ns_lshr_b32 s{sT2}, s{sT2}, 10\ns_mul_i32 s{sT2}, s{sT2}, {N8S-5120}")
    a(f"s_add_u32 s{sd0}, s{sd0}, s{sT2}\ns_lshl_b32 s{sT2}, s{sT0}, 10\ns_add_u32 s{sd0}, s{sd0}, s{sT2}\ns_cmp_ge_u32 s{sT0}, 40\ns_cselect_b32 s{sd0}, {OOB}, s{sd0}\ns_add_u32 s{sd1}, s{sd0}, 10240")
def c_finish(adst, sd0, sd1):
    return [('WAITVM', 'cj'), (f"buffer_store_dwordx4 {A(adst)}, v{vA}, {S(rM)}, s{sd0} offen sc1", 'early'), (f"buffer_store_dwordx4 {A(adst+4)}, v{vA}, {S(rM)}, s{sd1} offen sc1", 'early')]

NR, RING = 5, 80
vBase, vEA, vLA, vLW, vFl, vPo, vBR = 200, 220, 225, 230, 231, 232, 234
rO, rD = rA, rB
sFl = 28
POLL = f"buffer_load_dword v{vPo}, v{vFl}, {S(rM)}, s{sFl} offen sc1"
VB2 = 160
def b2_dest(p):
    if p < 12: return ('a', 20*p)
    if p < 20: return ('l', p-12)
    if p < 22: return ('v', VB2 + 20*(p-20))
    return ('a', 20*(p-22+8))
def b2_items(p):
    k, d = b2_dest(p)
    pre = f"s_add_u32 s{sJ0}, s{sBo+(p&3)}, {(p&~3)*4*5120}"
    if p >= 20: pre += f"\ns_cmp_ge_u32 s{sJ0}, s{sBlim}\ns_cselect_b32 s{sJ0}, {OOB}, s{sJ0}"
    L = []
    for q in range(5):
        so = sJ0
        t = ""
        if q == 0: t = pre + "\n"
        if q == 4: t = f"s_add_u32 s{sJ0}, s{sJ0}, 4096\n"
        off = f" offset:{q*1024}" if 0 < q < 4 else ""
        if k == 'l':
            if q in (0, 4): t += f"s_add_u32 m0, s{sReg}, {d*5120 + q*1024}\n"
            t += f"buffer_load_dwordx4 v{vA}, {S(rM)}, s{so} offen{off} {LSC} lds"
        else:
            r = A(d+4*q) if k == 'a' else V(d+4*q)
            t += f"buffer_load_dwordx4 {r}, v{vA}, {S(rM)}, s{so} offen{off} {LSC}"
        L.append((t, f'b{p}'))
    return L
class B2Q:
    def __init__(self): self.q = [x for p in range(22) for x in b2_items(p)]; self.i = 0
    def take(self, n, maxpos):
        out = []
        while n > 0 and self.i < min(len(self.q), 5*maxpos):
            out.append(self.q[self.i]); self.i += 1; n -= 1
        return out
    def emit(self, a, n, maxpos):
        for t, tag in self.take(n, maxpos): a(t, tag=tag)

def p2_scalars():
    if MAP2 == 0:
        t = f"s_and_b32 s{sT0}, s2, 7\ns_lshl_b32 s{sT0}, s{sT0}, 2\ns_bfe_u32 s{sT1}, s2, 0x20003\ns_add_u32 s{sRT}, s{sT0}, s{sT1}\ns_lshr_b32 s{sN8}, s2, 5\n"
    else:
        t = f"s_and_b32 s{sT0}, s2, 6\ns_lshl_b32 s{sT0}, s{sT0}, 2\ns_bfe_u32 s{sT1}, s2, 0x30003\ns_add_u32 s{sRT}, s{sT0}, s{sT1}\ns_and_b32 s{sT0}, s2, 1\ns_lshl_b32 s{sT0}, s{sT0}, 2\ns_lshr_b32 s{sN8}, s2, 6\ns_add_u32 s{sN8}, s{sN8}, s{sT0}\n"
    t += f"""s_mul_i32 s{sReg}, s{sW}, 40960
s_add_u32 s{sT0}, s{sRT}, 1
s_mul_i32 s{sAlim}, s{sT0}, {94*4096}
s_add_u32 s{sT0}, s{sN8}, 1
s_mul_i32 s{sBlim}, s{sT0}, {N8S}"""
    L = [(t, None)]
    for j in range(4):
        L.append((f"""s_add_u32 s{sT0}, s{sRT}, s{sN8}
s_and_b32 s{sT0}, s{sT0}, {Q2-1}
s_xor_b32 s{sT0}, s{sT0}, {j}
s_lshl_b32 s{sT0}, s{sT0}, 2
s_add_u32 s{sT0}, s{sT0}, s{sW}
s_sub_u32 s{sT0}, s{sT0}, 94
s_lshl_b32 s{sT1}, s{sT0}, 12
s_add_u32 s{sAo+j}, s{sAlim}, s{sT1}
s_mul_i32 s{sT1}, s{sT0}, 5120
s_add_u32 s{sBo+j}, s{sBlim}, s{sT1}""", None))
    return L

SLOW = []
def spin(a, name, load, check):
    a(f"L_chk_{name}:\n{check}\ns_cbranch_vccnz L_slow_{name}\nL_go_{name}:")
    SLOW.append(f"L_slow_{name}:\ns_add_u32 s{sSpin}, s{sSpin}, 1\ns_cmp_gt_u32 s{sSpin}, {SPINMAX}\ns_cbranch_scc1 L_go_{name}\ns_sleep {SLP}\n{load}\ns_waitcnt vmcnt(0)\ns_branch L_chk_{name}")

NONCE_LOAD = f"buffer_load_dword v{vT+4}, off, {S(rF)}, 0 sc1"
def nonce_check(a, role):
    a.wait(vm='non')
    spin(a, 'non_' + role, NONCE_LOAD, f"v_cmp_eq_u32 vcc, 0, v{vT+4}")
    a(f"v_readfirstlane_b32 s{sNon}, v{vT+4}")
def flag1_store():
    return [(f"s_lshl_b32 s{sT0}, s2, 4\ns_add_u32 s{sT0}, s{sT0}, {FLAG1}\ns_cmp_eq_u32 s{sW}, 0\ns_cselect_b32 s{sT0}, s{sT0}, {OOB}\nv_mov_b32 v{vT+2}, s{sNon}\ns_mov_b64 exec, 1\n"
             f"buffer_store_dword v{vT+2}, off, {S(rM)}, s{sT0} sc1\ns_mov_b64 exec, -1", 'flag')]
F1_LOAD = f"s_lshl_b32 s{sT0}, s{sW}, 10\ns_add_u32 s{sT0}, s{sT0}, {FLAG1}\nbuffer_load_dword v{vT+4}, v{vA}, {S(rM)}, s{sT0} offen sc1"
def flag1_check(a, role):
    a.wait(vm='f1')
    spin(a, 'f1_' + role, F1_LOAD, f"v_cmp_ne_u32 vcc, s{sNon}, v{vT+4}")

vGS, vSS = 244, 254
SGB = [160, 164, 168, 172, 176, 200, 204, 224]
vSP = [228, 228, 230, 230, 234]
def epi_load_text(role):
    if role == 'ssm':
        return f"buffer_load_dwordx2 {P(224)}, v{vT}, {S(rM)}, s{sU} offen sc1"
    t = "\n".join(f"buffer_load_dwordx2 {P(vGS+2*j)}, v{vT}, {S(rM)}, s{sU} offen offset:{j*256} sc1" for j in range(5))
    if role == 'glu': t += f"\nbuffer_load_dwordx2 {P(vSS)}, v{vT+1}, {S(rM)}, s{sJ1} offen sc1"
    return t
def epi_loads(role):
    L = [(f"s_mul_i32 s{sU}, s{sRB}, {160*8}\ns_add_u32 s{sU}, s{sU}, {STATS}", None)]
    if role == 'ssm':
        L += [(f"s_lshl_b32 s{sT0}, s{sW}, 6\nv_add_u32 v{vT+1}, s{sT0}, v{vL}", None), (f"v_min_u32 v{vT+1}, 159, v{vT+1}", None), (f"v_lshlrev_b32 v{vT}, 3, v{vT+1}", None)]
    else:
        L += [(f"v_lshrrev_b32 v{vT+1}, 1, v{vA}", None), (f"v_and_b32 v{vT}, 0xf8, v{vT+1}", None), (f"s_lshl_b32 s{sJ1}, s{sPair}, 9\ns_add_u32 s{sJ1}, s{sJ1}, {SUMS}", None)]
    L += [(x, 'epi') for x in epi_load_text(role).split("\n")]
    return L
def epi_check(a, role):
    a.wait(vm='epi')
    if role == 'ssm':
        chk = f"v_cmp_ne_u32 vcc, s{sNon}, v225"
    else:
        n = 6 if role == 'glu' else 5
        chk = f"v_xor_b32 v{vT+2}, s{sNon}, v{vGS+1}\n" + "".join(f"v_xor_b32 v{vT+3}, s{sNon}, v{vGS+2*j+1}\nv_or_b32 v{vT+2}, v{vT+2}, v{vT+3}\n" for j in range(1, n)) + f"v_cmp_ne_u32 vcc, 0, v{vT+2}"
    spin(a, 'epi_' + role, epi_load_text(role), chk)
vAd = 232
def glu_prep():
    L = [(f"s_lshl_b32 s{sT0}, s{sW}, 10\ns_add_u32 s{sT0}, s{sT0}, {SPARE}\nv_lshrrev_b32 v{vT}, 2, v{vA}\nv_add_u32 v{vT}, s{sT0}, v{vT}\nv_lshrrev_b32 v{vT+1}, 5, v{vL}\nv_lshl_add_u32 v{vT+2}, v{vT+1}, 4, s{sT0}", None),
         (f"ds_write_b32 v{vT}, v{vSS}", 'sw')]
    for j in range(5):
        g, sp = vGS + 2*j, vSP[j] + (j & 1)
        L += [(f"v_and_b32 v{sp}, 0xffff0000, v{g}", None), (f"v_lshlrev_b32 v{g}, 16, v{g}", None), (f"v_rcp_f32 v{g+1}, v{sp}", None)]
    L += [(f"v_and_b32 v{vT+3}, 0xf0, v{vA}", None), (f"v_lshl_add_u32 v{vT+3}, v{vT+1}, 9, v{vT+3}", None), (f"v_bfe_u32 v{vT+4}, v{vL}, 4, 1", None), (f"v_lshl_add_u32 v{vAd}, v{vT+4}, 10, v{vT+3}", None)]
    L += [(f"v_mul_f32 v{vGS+2*j+1}, {f2u(-LOG2E)}, v{vGS+2*j+1}", None) for j in range(5)]
    L += [(f"s_lshl_b32 s{sT2}, s{sPair}, 12\ns_cmp_ge_u32 s{sPair}, 54\ns_cselect_b32 s21, {OOB}, s{sT2}", None)]
    for j in range(5):
        L += [(f"s_mul_i32 s{sT0}, s{sRB}, 5\ns_add_u32 s{sT0}, s{sT0}, {j}\ns_lshr_b32 s{sT1}, s{sT0}, 1\ns_mul_i32 s{sT1}, s{sT1}, {94*4096-4096}\ns_lshl_b32 s{sT0}, s{sT0}, 11\ns_add_u32 s{sT1}, s{sT1}, s{sT0}\ns_add_u32 s{16+j}, s{sT1}, s21", None)]
    R = [('WAITLG', 'sw')] + [(f"ds_read_b128 {V(SGB[4*m+q])}, v{vT+2} offset:{m*128+q*32}", 'sr') for m in range(2) for q in range(4)]
    return L, R
vRA = 226
def ssm_prep():
    t, sg, ad, r, nm = vT+1, vT+2, vT+3, 225, 224
    L = [f"v_and_b32 v{r}, 0xffff0000, v{nm}", f"v_lshlrev_b32 v{nm}, 16, v{nm}", f"v_rcp_f32 v{r}, v{r}",
         f"v_mul_u32_u24 v{sg}, 1639, v{t}", f"v_lshrrev_b32 v{sg}, 16, v{sg}",
         f"v_add_u32 v{ad}, 1, v{sg}", f"v_lshrrev_b32 v{ad}, 1, v{ad}", f"v_mul_u32_u24 v{ad}, 40, v{ad}", f"v_sub_u32 v{ad}, v{t}, v{ad}",
         f"v_lshlrev_b32 v{ad}, 4, v{ad}", f"v_and_b32 v{sg}, 1, v{sg}", f"v_lshl_add_u32 v{ad}, v{sg}, 2, v{ad}", f"v_add_u32 v{ad}, {SPARE}, v{ad}", f"v_mul_f32 v{nm}, v{nm}, v{r}"]
    L = [(x, None) for x in L] + [(f"ds_write2_b32 v{ad}, v{r}, v{nm} offset0:0 offset1:2", 'sw')]
    L += [(f"v_lshrrev_b32 v{vRA}, 5, v{vL}", None), (f"v_mul_u32_u24 v{vRA}, 640, v{vRA}", None), (f"v_add_u32 v{vRA}, {SPARE}, v{vRA}", None)]
    return L

def emit_item(a, x, tag, role):
    if x == 'WAITVM': a.wait(vm=tag)
    elif x == 'WAITLG': a.wait(lg=tag)
    elif x == 'NONCE': nonce_check(a, role)
    elif x == 'F1': flag1_check(a, role)
    elif x == 'EPI': epi_check(a, role)
    else: a(x, tag=tag)

def mainloop(a, role, b2):
    NT = 4 if role == 'glu12' else 5
    NG = 2*NT
    dq = [(t, f'c{c}', c) for c in range(10) for t, g in dma_chunk('glu' if (role == 'glu12' and c < 2) else role, c, wfirst=(c == 2))][13+N1:]
    for r in reads(role, 0): a(r, tag='r0')
    side = {k: [] for k in range(40)}
    f1, f2 = wd_finish(vT, 0, vT+1, sWo2+0 if False else sJ0, 'w1', 0)
    if NOREP in (0, 3): side[RPK] += f1; side[RPK+1] += f2
    if NOREP == 0: side[RPK+1] += c_finish(8, sJ1, sU)
    side[1] += [(NONCE_LOAD, 'non')]
    side[FB-1] += [('NONCE', None)]
    side[FB] += [('WAITVM', 'early'), ('s_barrier', None)] + flag1_store()
    ps = p2_scalars()
    for i, x in enumerate(ps): side[FB+1+min(i, FC-FB-2)] += [x]
    if role != 'glu12':
        side[FL] += [(F1_LOAD, 'f1')]
        side[FC] += [('F1', None), ('s_barrier', None)]
    else:
        side[33] += [(F1_LOAD, 'f1')]
    side[EPL] += epi_loads(role)
    if role == 'glu':
        p1, p2 = glu_prep()
        if EPC == 37: side[37] += [('EPI', None)] + p1[:14]; side[38] += p1[14:]; side[39] += p2
        else: side[37] += p1[-6:]; side[38] += [('EPI', None)] + p1[:11]; side[39] += p2 + p1[11:-6]
    if role == 'ssm':
        for i, x in enumerate(lam_setup()): side[FC+2+i//5] += [x]
        p1 = ssm_prep()
        side[37] += [('EPI', None)] + p1[:8]; side[38] += p1[8:]
    dcred = 1.0; mcred = 0.0
    vSel, vSa = accg(4), accg(4) + 4
    if role == 'glu12':
        a(f"v_lshrrev_b32 v{vSel}, 2, v{vL}\nv_lshrrev_b32 v{vSel+1}, 4, v{vL}\nv_xor_b32 v{vSel}, v{vSel}, v{vSel+1}\nv_and_b32 v{vSel}, 1, v{vSel}\nv_add_u32 v{vSel}, -1, v{vSel}\nv_and_b32 v{vSel}, 0x3f803f80, v{vSel}")
        a(f"v_mov_b32 v{vSel+1}, v{vSel}\nv_mov_b32 v{vSel+2}, v{vSel}\nv_mov_b32 v{vSel+3}, v{vSel}")
    for ks in range(40):
        c, s = ks // 4, ks % 4
        b = ks & 1
        maxc = (ks + 1)//4 + 2
        dm = []
        dcred = min(dcred + DQ, DQ + 1)
        while dq and dcred >= 1 and dq[0][2] <= maxc:
            if ks < RPK + 2 and dq[0][2] == 2 and f"{S(rX)}" in dq[0][0]: break
            dm.append(dq.pop(0)); dcred -= 1
        if s == 2: assert not dq or dq[0][2] > c + 1, ("chunk not issued in time", ks)
        extra = list(side[ks])
        bl = []
        if ks > FC and role != 'glu12':
            mcred += MQ - len(dm)
            bl = b2.take(int(mcred), 12); mcred -= len(bl)
        so = [(x, None) for x in s_ops(ks)] if role == 'ssm' else []
        a.wait(lg=f'r{ks}')
        if ks == 4: stamp(a, 19)
        if ks == 13: stamp(a, 14)
        if ks == 26: stamp(a, 15)
        gaps = [[] for _ in range(NG)]
        rd = [(x, f'r{ks+1}') for x in reads(role, ks+1)] if ks < 39 else []
        if s == 3 and ks < 39: gaps[0].append(('BAR', f'c{c+1}'))
        for i, x in enumerate(rd): gaps[(i*(NG-4))//len(rd)].append(x)
        mem = [(x[0], x[1]) for x in dm] + bl
        for lst in (mem, extra):
            for i, x in enumerate(lst): gaps[1 + (i*(NG-1))//len(lst)].append(x)
        load = [sum(x.count('\n') + 1 for x, _ in g) for g in gaps]
        tot = sum(load) + len(so)
        k = 0
        for i in range(NG):
            want = max(0, round(tot*(i+1)/NG) - sum(load[:i+1]) - k) if i < NG-1 else len(so) - k
            gaps[i] += so[k:k+want]; k += min(want, len(so) - k)
        for i in range(NG):
            j, m = i // 2, i % 2
            acc = V(accg(j) + 16*m, 16)
            xf = V(XF + b*20 + j*4); wf = V(WF + b*8 + m*4)
            o = f"{wf}, {xf}" if role != 'ssm' else f"{xf}, {wf}"
            a(f"v_mfma_f32_32x32x16_bf16 {acc}, {o}, {'0' if ks == 0 else acc}")
            if role == 'glu12' and i >= NG-2:
                gaps[i].append((f"v_mfma_f32_16x16x32_bf16 {V(vSa+4*m)}, {V(vSel)}, {wf}, {'0' if ks == 0 else V(vSa+4*m)}", None))
            for (x, tag) in gaps[i]:
                if x == 'BAR':
                    a.wait(vm=tag)
                    a("s_barrier")
                else:
                    emit_item(a, x, tag, role)
        if ks == EPL - 1: assert not dq, "DMA address registers are reused"
    assert not dq
    if role == 'glu12':
        a(f"v_cmp_gt_u32 vcc, 32, v{vL}\nv_mov_b32 v{vSS+1}, s{sNon}\nv_cndmask_b32 v{vSS}, v{vSa+4}, v{vSa}, vcc")
        a(f"buffer_store_dwordx2 {P(vSS)}, v{vT+1}, {S(rM)}, s{sJ1} offen sc1", tag='spub')
        stamp(a, 3)
        p1, p2 = glu_prep()
        for x, tag in [('F1', None), ('EPI', None)] + p1 + p2: emit_item(a, x, tag, role)
    a("s_waitcnt lgkmcnt(0)\ns_barrier")

def flag2_store(a, slot_expr):
    a(slot_expr)
    a(f"s_lshl_b32 s{sT1}, s{sRB}, 2\ns_add_u32 s{sT1}, s{sT1}, s{sW}\ns_lshl_b32 s{sT1}, s{sT1}, 5\ns_add_u32 s{sT0}, s{sT0}, s{sT1}\ns_lshl_b32 s{sT0}, s{sT0}, 5\ns_add_u32 s{sT0}, s{sT0}, {FLAG2}")
    a(f"v_mov_b32 v{vT}, s{sNon}\ns_mov_b64 exec, 1")
    a.wait(vm='hst')
    a(f"buffer_store_dword v{vT}, off, {S(rM)}, s{sT0} sc1\ns_mov_b64 exec, -1", tag='flag')

def epilogue_glu(a, b2, NT=5):
    vO = [180, 184, 188, 192]
    for j in range(NT):
        rc = P(vGS + 2*j); sp = P(vSP[j]); e = j & 1
        for half in range(2):
            ps = range(half*4, half*4+4)
            o = vO[(2*j+half) % 4]
            g = lambda p: P(accg(j)+2*p)
            u = lambda p: P(accu(j)+2*p)
            sg = lambda m, p: P(SGB[4*m + p//2] + 2*(p & 1))
            ex = b2.take(B2E, min(20, PBG))
            n3 = (len(ex) + 1)//2
            for p in ps: a(f"v_pk_fma_f32 {g(p)}, {sg(0,p)}, {rc}, {g(p)} op_sel_hi:[1,0,1]")
            for p in ps: a(f"v_pk_mul_f32 {g(p)}, {g(p)}, {rc} op_sel:[0,1] op_sel_hi:[1,1]")
            for p in ps: a(f"v_exp_f32 v{accg(j)+2*p}, v{accg(j)+2*p}\nv_exp_f32 v{accg(j)+2*p+1}, v{accg(j)+2*p+1}")
            for t, tag in ex[:n3]: a(t, tag=tag)
            for p in ps: a(f"v_pk_fma_f32 {u(p)}, {sg(1,p)}, {rc}, {u(p)} op_sel_hi:[1,0,1]")
            for p in ps: a(f"v_pk_fma_f32 {g(p)}, {g(p)}, {sp}, {sp} op_sel:[0,{e},{e}] op_sel_hi:[1,{e},{e}]")
            for p in ps: a(f"v_rcp_f32 v{accg(j)+2*p}, v{accg(j)+2*p}\nv_rcp_f32 v{accg(j)+2*p+1}, v{accg(j)+2*p+1}")
            for t, tag in ex[n3:]: a(t, tag=tag)
            for p in ps: a(f"v_pk_mul_f32 {u(p)}, {u(p)}, {g(p)}")
            for p in ps: a(f"v_cvt_pk_bf16_f32 v{o+p-4*half}, v{accu(j)+2*p}, v{accu(j)+2*p+1}")
            a(f"buffer_store_dwordx4 {V(o)}, v{vAd}, {S(rH)}, s{16+j} offen offset:{half*256} sc1", tag='hst')
    stamp(a, 5)
    p2_flagaddr(a)
    b2.emit(a, B2W, PBG)
    flag2_store(a, f"s_mov_b32 s{sT0}, s{sG}")
    stamp(a, 6)

def epilogue_ssm(a, b2):
    lam, cc, l40, l80, l160, l320 = [vLAM + 2*i for i in range(6)]
    vG, vRT, vE, vX = XF+2, XF+12, XF+28, 212
    TB = 7*5120
    re = lambda i: accg(i // 8) + 2*(i % 8)
    im = lambda i: accu(i // 8) + 2*(i % 8)
    NRT = 8
    for i in range(6): a(f"ds_read_b128 {V(vRT+4*i)}, v{vRA} offset:{16*i}", tag=f't{i}')
    a(f"v_permlane32_swap_b32 v{vS}, v{vS+1}\nv_add_f32 v{vS}, v{vS}, v{vS+1}\nv_mov_b32 v{vS+1}, v{vS}\nv_permlane32_swap_b32 v{vS}, v{vS+1}")
    gr, gi, ar, ai = vG, vG+2, vG+4, vG+6
    def ufix(i):
        rt = vRT + 4*(i % NRT)
        if i % 2 == 0: a.wait(lg=f't{i+1}')
        a(f"v_pk_mul_f32 {P(re(i))}, {P(re(i))}, {P(rt)}\nv_pk_mul_f32 {P(im(i))}, {P(im(i))}, {P(rt)}")
        a(f"v_pk_fma_f32 {P(re(i))}, {P(rt+2)}, {P(vS)}, {P(re(i))} op_sel_hi:[1,0,1]")
        a(f"v_pk_fma_f32 {P(im(i))}, {P(rt+2)}, {P(vS)}, {P(im(i))} op_sel:[0,1,0] op_sel_hi:[1,1,1]")
        if i + 6 < 40: a(f"ds_read_b128 {V(vRT+4*((i+6)%NRT))}, v{vRA} offset:{16*(i+6)}", tag=f't{i+6}')
    def step(pr, pi, ur, ui, dr, di):
        a(f"v_pk_fma_f32 {P(dr)}, {P(pr)}, {P(lam)}, {P(ur)} op_sel_hi:[1,0,1]")
        a(f"v_pk_fma_f32 {P(di)}, {P(pi)}, {P(lam)}, {P(ui)} op_sel_hi:[1,0,1]")
        a(f"v_pk_fma_f32 {P(dr)}, {P(pi)}, {P(lam)}, {P(dr)} op_sel:[0,1,0] op_sel_hi:[1,1,1] neg_lo:[0,1,0] neg_hi:[0,1,0]")
        a(f"v_pk_fma_f32 {P(di)}, {P(pr)}, {P(lam)}, {P(di)} op_sel:[0,1,0] op_sel_hi:[1,1,1]")
    ufix(0)
    cur = (re(0), im(0))
    done = 0
    for i in range(1, 40):
        ufix(i)
        nxt = (gr, gi) if cur != (gr, gi) else (ar, ai)
        step(cur[0], cur[1], re(i), im(i), nxt[0], nxt[1])
        cur = nxt
        want = min(B2S, (B2S*i)//30)
        b2.emit(a, want - done, PBS); done = want
    e0, e1, eh, eo, ef = vX, vX+2, vX+6, vX+8, vX+12
    a(f"v_mov_b32 v{e0}, v{cur[0]}\nv_mov_b32 v{e0+1}, v{cur[1]}\nv_mov_b32 v{e1}, v{cur[0]+1}\nv_mov_b32 v{e1+1}, v{cur[1]+1}")
    cmul_add(a, eh, e0, l40, e1)
    a(f"v_mov_b32 v{eo}, v{eh}\nv_mov_b32 v{eo+1}, v{eh+1}\nv_mov_b32 v{ef+2}, s{sNon}\nv_mov_b32 v{ef+3}, 0")
    a(f"v_permlane32_swap_b32 v{eh}, v{eo}\nv_permlane32_swap_b32 v{eh+1}, v{eo+1}")
    a(f"s_mul_i32 s{sT0}, s{sPair}, 13\ns_add_u32 s{sT1}, s{sT0}, s{sRB}\ns_lshl_b32 s{sT1}, s{sT1}, 9\ns_add_u32 s{sT1}, s{sT1}, {EOFF}")
    cmul_add(a, ef, eh, l80, eo)
    a(f"s_mov_b32 exec_hi, 0\nbuffer_store_dwordx4 {V(ef)}, v{vA}, {S(rM)}, s{sT1} offen sc1\ns_mov_b64 exec, -1", tag='epub')
    stamp(a, 3)
    vA6, vK6, vPA = vRT, vRT+6, vX+10
    a(f"s_lshl_b32 s{sU}, s{sT0}, 9\ns_add_u32 s{sU}, s{sU}, {EOFF}")
    a(f"v_lshrrev_b32 v{vPA}, 5, v{vL}\nv_sub_u32 v{vPA}, s{sRB}, v{vPA}\nv_mov_b32 v{vPA+1}, {OOB}\nv_and_b32 v{vT}, 0x1f0, v{vA}\nv_mov_b32 v{vT+2}, s{sNon}")
    for m in range(6):
        a(f"v_add_u32 v{vT+1}, {-(1+2*m)}, v{vPA}\nv_cmp_le_i32 vcc, 0, v{vT+1}\nv_lshl_add_u32 v{vT+1}, v{vT+1}, 9, v{vT}")
        a(f"v_cndmask_b32 v{vA6+m}, v{vPA+1}, v{vT+1}, vcc\nv_cndmask_b32 v{vK6+m}, 0, v{vT+2}, vcc")
    polls = "\n".join(f"buffer_load_dwordx4 {V(vE+4*m)}, v{vA6+m}, {S(rM)}, s{sU} offen sc1" for m in range(6))
    for i in range(40):
        t = gr if i & 1 else gi
        if i < B2C: b2.emit(a, 1, PBS)
        if i == 24: a(polls, tag='ep')
        a(f"v_pk_mul_f32 {P(t)}, {P(im(i))}, {P(cc)} op_sel:[0,1] op_sel_hi:[1,1]")
        a(f"v_pk_mul_f32 {P(im(i))}, {P(im(i))}, {P(cc)} op_sel_hi:[1,0]")
        a(f"v_pk_fma_f32 {P(im(i))}, {P(re(i))}, {P(cc)}, {P(im(i))} op_sel:[0,1,0] op_sel_hi:[1,1,1]")
        a(f"v_pk_fma_f32 {P(re(i))}, {P(re(i))}, {P(cc)}, {P(t)} op_sel_hi:[1,0,1] neg_lo:[0,0,1] neg_hi:[0,0,1]")
    a("s_barrier")
    vTW, vTR = vX+16, vX+17
    HA = [184, 185, 186, 187, 224, 225, 226, 227, 216, 217]
    a(f"s_add_u32 s{sT0}, s{sReg}, {TB}")
    a(f"v_and_b32 v{vTW}, 31, v{vL}\nv_mul_u32_u24 v{vTW}, 80, v{vTW}\nv_and_b32 v{vTR}, 32, v{vL}\nv_add3_u32 v{vTW}, v{vTW}, v{vTR}, s{sT0}")
    a(f"v_lshrrev_b32 v{vTR}, 4, v{vL}\nv_lshlrev_b32 v{vTR}, 3, v{vTR}\nv_bfe_u32 v{vT}, v{vL}, 2, 2\nv_add_u32 v{vTR}, v{vTR}, v{vT}\nv_mul_u32_u24 v{vTR}, 80, v{vTR}")
    a(f"v_and_b32 v{vT}, 3, v{vL}\nv_lshlrev_b32 v{vT}, 3, v{vT}\nv_add3_u32 v{vTR}, v{vTR}, v{vT}, s{sT0}")
    a(f"s_mul_i32 s{sT0}, s{sRB}, 20\nv_bfe_u32 v{vT}, v{vL}, 3, 1\nv_mul_u32_u24 v{vT}, 5, v{vT}\nv_add_u32 v{vT}, s{sT0}, v{vT}\nv_and_b32 v{vT+1}, 0x370, v{vA}")
    for hh in range(2):
        for b in range(5):
            d = HA[5*hh+b]
            a(f"v_add_u32 v{vT+2}, {10*hh+b}, v{vT}\nv_lshrrev_b32 v{vT+3}, 3, v{vT+2}\nv_mul_u32_u24 v{vT+3}, {94*4096-4096}, v{vT+3}\nv_lshrrev_b32 v{d}, 1, v{vT+2}\nv_mul_u32_u24 v{d}, {1024-256}, v{d}")
            a(f"v_add3_u32 v{d}, v{d}, v{vT+3}, v{vT+1}\nv_lshl_add_u32 v{d}, v{vT+2}, 7, v{d}")
    a(f"s_lshl_b32 s18, s{sPair}, 1\ns_add_u32 s18, s18, 54\ns_lshl_b32 s18, s18, 12\ns_add_u32 s19, s18, 4096")
    p2_flagaddr(a)
    a.wait(vm='ep')
    chk = f"v_xor_b32 v{vT}, v{vE+2}, v{vK6}\n" + "".join(f"v_xor_b32 v{vT+1}, v{vE+4*m+2}, v{vK6+m}\nv_or_b32 v{vT}, v{vT}, v{vT+1}\n" for m in range(1, 6)) + f"v_cmp_ne_u32 vcc, 0, v{vT}"
    spin(a, 'e', polls, chk)
    stamp(a, 4)
    cur = vE + 20
    for m in range(4, -1, -1):
        cmul_add(a, vE+4*m, cur, l320, vE+4*m); cur = vE + 4*m
    g0, g1 = ar, ai
    a(f"v_mov_b32 v{g1}, v{cur}\nv_mov_b32 v{g1+1}, v{cur+1}\nv_mov_b32 v{eo}, 0\nv_mov_b32 v{eo+1}, 0\nv_cmp_gt_u32 vcc, 32, v{vL}")
    a(f"v_permlane32_swap_b32 v{cur}, v{g1}\nv_permlane32_swap_b32 v{cur+1}, v{g1+1}")
    cmul_add(a, g0, g1, l160, cur)
    cmul_add(a, eh, g0, l80, eh)
    a(f"v_cndmask_b32 v{g0}, v{eh}, v{g0}, vcc\nv_cndmask_b32 v{g0+1}, v{eh+1}, v{g0+1}, vcc")
    cmul_add(a, e0, g0, l40, e0)
    cmul_add(a, e1, g0, cc, eo)
    cmul_add(a, eh, e0, cc, eo)
    a(f"v_mov_b32 v{gr}, v{e1}\nv_mov_b32 v{gr+1}, v{eh}\nv_mov_b32 v{gi}, v{e1+1}\nv_mov_b32 v{gi+1}, v{eh+1}")
    vPK = 188
    cur = (gr, gi)
    pend = []
    nb = 0
    for i in range(40):
        step(cur[0], cur[1], re(i), im(i), re(i), im(i))
        cur = (re(i), im(i))
        blk = i // 8
        if pend and i % 8 in (2, 3, 4, 5):
            x, tg = pend.pop(0)
            a.wait(lg=tg); a(x, tag='hst')
        if (i*B2P)//40 > nb: b2.emit(a, 1, PBS); nb += 1
        if i == 30: a(POLL, tag='po')
        if i & 1:
            pk = vPK + (i % 8)//2
            for e in range(2):
                a(f"v_cvt_pk_bf16_f32 v{pk+4*e}, v{re(i-1)+e}, v{re(i)+e}")
                a(f"v_cvt_pk_bf16_f32 v{pk+8+4*e}, -v{im(i-1)+e}, -v{im(i)+e}")
            if i % 8 == 7:
                for comp in range(2):
                    for e in range(2):
                        a(f"ds_write_b128 v{vTW}, {V(vPK+comp*8+e*4)} offset:{comp*32*80 + e*16}", tag='tw')
                for comp in range(2):
                    for hh in range(2):
                        d = 32*blk + 16*comp + 4*hh
                        off = comp*32*80 + hh*32
                        a(f"ds_read_b64_tr_b16 v[{d}:{d+1}], v{vTR} offset:{off}\nds_read_b64_tr_b16 v[{d+2}:{d+3}], v{vTR} offset:{off+4*80}", tag=f'f{blk}{comp}{hh}')
                        pend.append((f"buffer_store_dwordx4 {V(d)}, v{HA[5*hh+blk]}, {S(rH)}, s{18+comp} offen sc1", f'f{blk}{comp}{hh}'))
    for x, tg in pend:
        a.wait(lg=tg); a(x, tag='hst')
    stamp(a, 5)
    b2.emit(a, 999, PBS)

def stats_loop(a):
    vsrc, vdst, x, sm, q, o = 10, 11, 100, 140, 142, 144
    sIn, sOutO, sCnt = sXo, sWo, sWo2
    a(f"v_lshrrev_b32 v{vdst}, 4, v{vL}\nv_mul_u32_u24 v{vsrc}, 1280, v{vdst}\nv_and_b32 v12, 0xf0, v{vA}\nv_add_u32 v{vsrc}, v{vsrc}, v12\nv_lshlrev_b32 v{vdst}, 3, v{vdst}")
    a(f"s_mul_i32 s{sIn}, s{sPair}, {4*1280}\ns_lshl_b32 s{sOutO}, s{sPair}, 5\ns_add_u32 s{sOutO}, s{sOutO}, {STATS}\ns_mov_b32 s{sCnt}, 0")
    a(f"s_mov_b32 s16, 0x00010001\ns_mov_b32 s17, 0x00010001\nv_mov_b32 v{o+1}, s{sNon}")
    def issue(r):
        for i in range(5):
            a(f"buffer_load_dwordx4 {V(20+20*r+4*i)}, v{vsrc}, {S(rX)}, s{sIn} offen offset:{i*256}")
        a(f"s_add_u32 s{sIn}, s{sIn}, {144*1280}")
    def red16(v):
        for sh in (8, 4, 2, 1):
            a(f"v_add_f32_dpp v{v}, v{v}, v{v} row_ror:{sh} row_mask:0xf bank_mask:0xf")
    issue(0); issue(1)
    a("L_stat:")
    for r in range(3):
        issue((r+2) % 3)
        a("s_waitcnt vmcnt(10)")
        vin = 20 + 20*r
        for i in range(20):
            a(f"v_lshlrev_b32 v{x+2*i}, 16, v{vin+i}\nv_and_b32 v{x+2*i+1}, 0xffff0000, v{vin+i}")
        a(f"v_pk_add_f32 {P(sm)}, {P(x)}, {P(x+2)}")
        for i in range(2, 20): a(f"v_pk_add_f32 {P(sm)}, {P(sm)}, {P(x+2*i)}")
        a(f"v_add_f32 v{sm}, v{sm}, v{sm+1}")
        red16(sm)
        a(f"v_mul_f32 v{sm}, {f2u(-1.0/640)}, v{sm}")
        for i in range(20): a(f"v_pk_add_f32 {P(x+2*i)}, {P(x+2*i)}, {P(sm)} op_sel_hi:[1,0]")
        a(f"v_pk_mul_f32 {P(q)}, {P(x)}, {P(x)}")
        for i in range(1, 20): a(f"v_pk_fma_f32 {P(q)}, {P(x+2*i)}, {P(x+2*i)}, {P(q)}")
        a(f"v_add_f32 v{q}, v{q}, v{q+1}")
        red16(q)
        a(f"v_mul_f32 v{q}, {f2u(1.0/640)}, v{q}")
        bf16_round(a, q, q)
        a(f"v_add_f32 v{q}, {f2u(1e-5)}, v{q}")
        bf16_round(a, q, q)
        a(f"v_sqrt_f32 v{q}, v{q}\ns_mov_b64 exec, s[16:17]")
        a(f"v_cvt_pk_bf16_f32 v{o}, v{sm}, v{q}")
        a(f"buffer_store_dwordx2 {P(o)}, v{vdst}, {S(rM)}, s{sOutO} offen sc1\ns_mov_b64 exec, -1\ns_add_u32 s{sOutO}, s{sOutO}, {144*8}")
    a(f"s_add_u32 s{sCnt}, s{sCnt}, 1\ns_cmp_lt_u32 s{sCnt}, 5\ns_cbranch_scc1 L_stat")

def after_kernarg(a):
    a("s_waitcnt lgkmcnt(0)")
    if PROBE != -2: a("s_mov_b32 s0, s80\ns_mov_b32 s1, s80")
    srd(a, rX, sX, 2048*1280)

def common_srds(a):
    srd(a, rF, sDbg, 256)
    srd(a, rH, sWs, H_SIZE)
    a(f"s_add_u32 s{rM}, s{sWs}, {MISC}\ns_addc_u32 s{rM+1}, s{sWs+1}, 0\ns_mov_b32 s{rM+2}, {MISC_SIZE}\ns_mov_b32 s{rM+3}, 0x20000")
    srd(a, rWd, sWd, 1728*1280)
    srd(a, rC, sCre, 640*1280)
    if STAMP:
        a(f"s_lshl_b32 s82, s2, 2\ns_add_u32 s82, s82, s{sW}\ns_lshl_b32 s82, s82, 8\ns_add_u32 s82, s82, {STAMPS}")
        a(f"v_accvgpr_write_b32 a250, s98\nv_accvgpr_write_b32 a251, s96")
        a(f"buffer_store_dwordx2 a[250:251], off, {S(rM)}, s82 offset:{18*8}", tag='stamp')
        a(f"s_getreg_b32 s80, hwreg(HW_REG_XCC_ID)\ns_getreg_b32 s81, hwreg(HW_REG_HW_ID)\nv_accvgpr_write_b32 a248, s80\nv_accvgpr_write_b32 a249, s81")
        a(f"buffer_store_dwordx2 a[248:249], off, {S(rM)}, s82 offset:{20*8}", tag='stamp')

def start_loads(a, role, rdaddr):
    c0 = dma_chunk(role, 0)
    for t, g in c0[:N0]: a(t, tag='c0')
    common_srds(a)
    stamp(a, 0)
    a(f"s_lshl_b32 s{sU}, s{sTile}, 2\ns_add_u32 s{sU}, s{sU}, s{sW}\ns_add_u32 s{sReg}, s{sXm}, {2*20480}")
    a(f"v_mul_u32_u24 v14, 1280, v2\nv_lshl_add_u32 v14, v3, 4, v14")
    wd_rdaddr(a, vT, 15, sReg)
    a(f"v_bfe_u32 v5, v{vL}, 3, 2\nv_mul_u32_u24 v5, 5120, v5\nv_lshl_add_u32 v5, v3, 7, v5")
    a(f"v_bfe_u32 v6, v{vL}, 1, 3\nv_xor_b32 v6, v6, v7")
    for s in range(4):
        a(f"v_xor_b32 v8, {2*s}, v6\nv_lshl_add_u32 v{vXR+s}, v8, 4, v5")
    rdaddr()
    for t, g in c0[N0:]: a(t, tag='c0')
    stamp(a, 1)
    if role == 'ssm':
        a(f"v_add_u32 v13, s{sKind}, v12\nv_lshlrev_b32 v13, 1, v13")
        for i, p in enumerate((sLre, sLim, sLdt)):
            a(f"global_load_ushort v{vLAM+i}, v13, s[{p}:{p+1}]", tag='lam')
    if RPK:
        assert N1 in (4, 5, 9, 13)
        for t, g in dma_chunk(role, 1)[:N1]: a(t, tag='c1')
    if NOREP != 1:
        wd_issue(a, 14, f"s_mov_b32 m0, s{sReg}", 'w1')
        wd_dest(a, vT+1, 15, sJ0)
        if NOREP != 3: c_issue(a, 16, 8, sJ1, sU)
    if not RPK:
        for t, g in dma_chunk(role, 1)[:N1]: a(t, tag='c1')
    stamp(a, 12)
    a.wait(vm='c0')
    a("s_barrier")
    stamp(a, 7)

def p2_flagaddr(a):
    j, rb, t = vT, vT+1, vT+2
    a(f"s_lshl_b32 s{sT0}, s{sRT}, 1\nv_lshrrev_b32 v{rb}, 5, v{vL}\nv_add_u32 v{rb}, s{sT0}, v{rb}\nv_mul_u32_u24 v{rb}, 205, v{rb}\nv_lshrrev_b32 v{rb}, 10, v{rb}")
    a(f"v_and_b32 v{j}, 31, v{vL}\ns_lshr_b32 s{sT1}, s{sW}, 1\ns_xor_b32 s{sT1}, s{sT1}, 1\ns_lshl_b32 s{sT2}, s{sW}, 5")
    a(f"v_and_b32 v{t}, 15, v{j}\nv_lshlrev_b32 v{t}, 1, v{t}\nv_add_u32 v{t}, s{sT1}, v{t}")
    a(f"v_and_b32 v{vFl}, 3, v{t}\nv_lshlrev_b32 v{vFl}, 5, v{vFl}\nv_lshrrev_b32 v{t}, 2, v{t}\nv_add3_u32 v{vFl}, v{vFl}, v{t}, 16")
    a(f"v_cmp_gt_u32 vcc, 16, v{j}\nv_add_u32 v{j}, s{sT2}, v{j}\ns_mov_b32 s{sFl}, {FLAG2}\nv_cndmask_b32 v{vFl}, v{vFl}, v{j}, vcc\nv_lshl_add_u32 v{vFl}, v{rb}, 7, v{vFl}\nv_lshlrev_b32 v{vFl}, 5, v{vFl}")
    a(f"s_mov_b32 s10, 0x3fff\ns_mov_b32 s11, 0x3fff\ns_mov_b32 s22, 0x3ff0000\ns_mov_b32 s23, 0x3ff0000")

def base_items():
    tid = 235
    side = {p: [] for p in range(24)}
    I = lambda t: [(x, None) for x in t.split("\n")]
    side[0] += I(f"s_mov_b32 s{rD}, s{sD}\ns_mov_b32 s{rD+1}, s{sD+1}\ns_mov_b32 s{rD+2}, 1280\ns_mov_b32 s{rD+3}, 0x20000\ns_mov_b32 s{rO}, s{sOut}\ns_mov_b32 s{rO+1}, s{sOut+1}\ns_mov_b32 s{rO+2}, {2048*2560}\ns_mov_b32 s{rO+3}, 0x20000")
    side[0] += I(f"s_lshl_b32 s{sT0}, s{sW}, 6\nv_add_u32 v{tid}, s{sT0}, v{vL}\ns_mul_i32 s{sT2}, s{sW}, 21504\ns_lshl_b32 s{sT0}, s{sRT}, 6\ns_mul_i32 s{sT1}, s{sN8}, 20\ns_mov_b32 s{sT3}, {STATS}")
    side[0] += I(f"v_and_b32 v{vLW}, 15, v{vL}\nv_mul_u32_u24 v{vLW}, 336, v{vLW}\nv_and_b32 v{vT}, 48, v{vL}\nv_add3_u32 v{vLW}, v{vLW}, v{vT}, s{sT2}\nv_add_u32 v{vBR}, s{sReg}, v{vA}")
    for i in range(5):
        f, r, c = vT, vT+1, vT+2
        g = 244 + 6*(i & 1)
        L = I(f"v_add_u32 v{f}, {256*i}, v{tid}\nv_mul_u32_u24 v{r}, 3277, v{f}\nv_lshrrev_b32 v{r}, 16, v{r}\nv_mul_u32_u24 v{c}, 20, v{r}\nv_sub_u32 v{c}, v{f}, v{c}\n"
              f"v_mul_u32_u24 v{f}, 336, v{r}\nv_lshl_add_u32 v{vLA+i}, v{c}, 4, v{f}\n"
              f"v_add_u32 v{r}, s{sT0}, v{r}\nv_add_u32 v{c}, s{sT1}, v{c}\nv_mul_u32_u24 v{f}, 160, v{r}\nv_add_u32 v{f}, v{f}, v{c}\nv_lshlrev_b32 v{vEA+i}, 4, v{f}\n"
              f"v_lshlrev_b32 v{f}, 3, v{f}\nv_lshlrev_b32 v{c}, 3, v{c}\nv_lshlrev_b32 v{r}, 3, v{r}")
        L += [(f"buffer_load_dwordx2 {P(g)}, v{f}, {S(rX)}, 0 offen", f'e{i}'), (f"buffer_load_dwordx2 {P(g+2)}, v{c}, {S(rD)}, 0 offen", f'e{i}'), (f"buffer_load_dword v{g+4}, v{r}, {S(rM)}, s{sT3} offen sc1", f'e{i}')]
        side[3*i+1] += L
        o, d, t = vBase + 4*i, vT, vT+4
        C = [('WAITVM', f'e{i}')] + I(f"v_and_b32 v{g+5}, 0xffff0000, v{g+4}\nv_lshlrev_b32 v{g+4}, 16, v{g+4}\nv_rcp_f32 v{g+5}, v{g+5}")
        for k in range(2):
            C += I(f"v_lshlrev_b32 v{o+2*k}, 16, v{g+k}\nv_and_b32 v{o+2*k+1}, 0xffff0000, v{g+k}\nv_lshlrev_b32 v{d+2*k}, 16, v{g+2+k}\nv_and_b32 v{d+2*k+1}, 0xffff0000, v{g+2+k}")
        for k in range(4):
            C += I(f"v_mul_f32 v{d+k}, v{d+k}, v{g+5}\nv_add_f32 v{t}, v{o+k}, v{g+4}\nv_fmac_f32 v{o+k}, v{t}, v{d+k}")
        side[3*i+5] += C[:12]; side[3*i+6] += C[12:]
    return side

def phase2(a, var, PB):
    a(f"L_p2_{var}:")
    poll = POLL
    if var == 'g': a(poll, tag='po')
    a.wait(vm='po')
    stamp(a, 16)
    def chk(m): return f"v_cmp_ne_u32 vcc, s{sNon}, v{vPo}\ns_and_b64 vcc, vcc, s[{m}:{m+1}]"
    spin(a, 'g' + var, poll, chk(10))
    stamp(a, 8)
    def aloads(p):
        st = p % NR
        t = f"s_add_u32 s{sJ1}, s{sAo+(p&3)}, {(p&~3)*4*4096}\n"
        if p >= 20: t += f"s_cmp_ge_u32 s{sJ1}, s{sAlim}\ns_cselect_b32 s{sJ1}, {OOB}, s{sJ1}\n"
        L = [f"buffer_load_dwordx4 {V(RING+16*st+4*q)}, v{vA}, {S(rH)}, s{sJ1} offen offset:{q*1024} {LSC}" for q in range(4)]
        L[0] = t + L[0]
        return [(x, f'a{p}') for x in L]
    for p in range(NR-1):
        for x, tag in aloads(p): a(x, tag=tag)
    if var == 's':
        flag2_store(a, f"s_add_u32 s{sT0}, s{sG}, 16")
        stamp(a, 6)
    bside = base_items()
    GL = 13 if Q2 == 1 else 12
    anext = NR - 1
    late = [x for q in range(PB, 22) for x in b2_items(q)]
    nlate = max(1, (len(late) + 9)//10)
    def bfr(p, nt):
        k, d = b2_dest(p)
        if k == 'l': k, d = 'a', 20*d
        return A(d+4*nt) if k == 'a' else V(d+4*nt)
    def mf(p, mt, nt):
        acc = V((mt*5+nt)*4)
        a(f"v_mfma_f32_16x16x32_bf16 {acc}, {bfr(p, nt)}, {V(RING+16*(p%NR)+4*mt)}, {'0' if p == 0 else acc}")
    for p in range(24 - NPL):
        fill = []
        if p == SCK - 2: fill += [(poll, 'po')]
        if p == SCK: fill += [('SSMCHK', None)]
        na = 0
        while anext <= min(p + NR - 1, 23) and (anext < GL or p >= SCK) and na < 2:
            fill += aloads(anext); anext += 1; na += 1
        if p < 10: fill += late[p*nlate:(p+1)*nlate]
        if p in (10, 11): fill += b2_items(p + 12)
        if 10 <= p < 18:
            fill += [('WAITVM', f'b{p+2}')] + [(f"ds_read_b128 {A(20*(p-10)+4*q)}, v{vBR} offset:{(p-10)*5120+q*1024}", f'l{p+2}') for q in range(5)]
        if p == 19: fill += [('s_barrier', None)]
        a.wait(vm=[f'a{p}', f'b{p}'], lg=f'l{p}')
        slots = [[] for _ in range(20)]
        for lst in (fill, bside[p]):
            for i, x in enumerate(lst): slots[(i*20)//len(lst)].append(x)
        for n in range(20):
            mf(p, n // 5, n % 5)
            for x, tag in slots[n]:
                if x == 'SSMCHK':
                    a.wait(vm='po'); spin(a, 's' + var, poll, chk(22))
                    stamp(a, 17)
                elif x == 'WAITVM': a.wait(vm=tag)
                else: a(x, tag=tag)
    assert NPL <= NR - 1 and anext == 24 and not any(bside[p] for p in range(24-NPL, 24))
    wr = lambda mt, nt: a(f"ds_write_b128 v{vLW}, {V((mt*5+nt)*4)} offset:{mt*16*336 + nt*64}", tag='w')
    for mt in range(4):
        n = 0
        for p in range(24 - NPL, 24):
            if mt == 0: a.wait(vm=[f'a{p}', f'b{p}'])
            for nt in range(5):
                mf(p, mt, nt)
                if mt > 0 and n % NPL == NPL - 1: wr(mt-1, n // NPL)
                n += 1
    stamp(a, 9)
    for nt in range(5): wr(3, nt)
    a("s_waitcnt lgkmcnt(0)\ns_barrier")
    for i in range(5):
        for w in range(4):
            a(f"ds_read_b128 {V(RING+16*i+4*w)}, v{vLA+i} offset:{w*21504}", tag=f'q{i}')
    for i in range(5):
        a.wait(lg=f'q{i}')
        for w in range(4):
            for h in range(2):
                o = vBase + 4*i + 2*h
                a(f"v_pk_add_f32 {P(o)}, {P(o)}, {P(RING+16*i+4*w+2*h)}")
        a(f"buffer_store_dwordx4 {V(vBase+4*i)}, v{vEA+i}, {S(rO)}, 0 offen {OST}")
    stamp(a, 10)
    if PROBE != -2:
        a("s_sub_u32 s1, s1, s0\ns_lshl_b32 s1, s1, 2")
        if PWG >= 0: a(f"s_cmp_eq_u32 s2, {PWG}\ns_cselect_b32 s1, s1, 0")
        a(f"s_add_u32 s1, s1, 6000\nL_probe{var}:\ns_sleep 1\ns_memrealtime s[80:81]\ns_waitcnt lgkmcnt(0)\ns_sub_u32 s80, s80, s0\ns_cmp_lt_u32 s80, s1\ns_cbranch_scc1 L_probe{var}")
    if STAMP:
        a("s_waitcnt vmcnt(0)"); stamp(a, 11)
    a("s_endpgm")

def kernel():
    a = Asm()
    a(f"s_cmp_ge_u32 s2, 256\ns_cbranch_scc1 L_end")
    if PROBE != -2: a("s_memrealtime s[80:81]\ns_memtime s[82:83]")
    if STAMP: a("s_memtime s[98:99]\ns_memrealtime s[96:97]")
    a(f"s_load_dwordx16 s[8:23], s[0:1], 0\ns_load_dwordx16 s[24:39], s[0:1], 64")
    a(f"s_getpc_b64 s[{rP}:{rP+1}]\nL_pf:\ns_mov_b32 s{rP+2}, L_end-L_pf\ns_mov_b32 s{rP+3}, 0x20000")
    a(f"s_lshr_b32 s{sT1}, s2, 3\ns_mul_i32 s{sT0}, s{sT1}, {PFL*128}\nv_lshlrev_b32 v1, 7, v0\nv_cmp_gt_u32 vcc, {PFL}, v0\nv_mov_b32 v2, {OOB}\nv_add_u32 v1, s{sT0}, v1\nv_cndmask_b32 v1, v2, v1, vcc")
    a(f"buffer_load_dword a{aDUM}, v1, {S(rP)}, 0 offen", tag='pf')
    a(f"v_and_b32 v{vL}, 63, v0\nv_lshrrev_b32 v1, 6, v0\nv_lshlrev_b32 v{vA}, 4, v{vL}\nv_readfirstlane_b32 s{sW}, v1")
    a(f"""s_mov_b32 s{sSpin}, 0
s_and_b32 s{sT0}, s2, 7
s_mul_i32 s{sTile}, s{sT0}, 31
s_add_u32 s{sTile}, s{sTile}, s{sT1}
s_mul_i32 s{sG}, s{sTile}, 9363
s_lshr_b32 s{sG}, s{sG}, 16
s_mul_i32 s{sRB}, s{sG}, 7
s_sub_u32 s{sRB}, s{sTile}, s{sRB}
s_sub_u32 s{sT3}, s{sTile}, 133
s_mul_i32 s{sCls}, s{sT3}, 10923
s_lshr_b32 s{sCls}, s{sCls}, 16
s_mul_i32 s{sXo}, s{sCls}, 6
s_sub_u32 s{sXo}, s{sT3}, s{sXo}
s_add_u32 s{sXo}, s{sXo}, 7
s_sub_u32 s{sCls}, 18, s{sCls}
s_cmp_ge_u32 s{sTile}, 133
s_cselect_b32 s{sG}, s{sCls}, s{sG}
s_cselect_b32 s{sRB}, s{sXo}, s{sRB}
s_add_u32 s{sCls}, s{sRB}, s{sG}""")
    if Q1 <= 2: a(f"s_and_b32 s{sCls}, s{sCls}, {Q1-1}")
    else: a(f"s_mul_i32 s{sXo}, s{sCls}, {65536//Q1+1}\ns_lshr_b32 s{sXo}, s{sXo}, 16\ns_mul_i32 s{sXo}, s{sXo}, {Q1}\ns_sub_u32 s{sCls}, s{sCls}, s{sXo}")
    a(f"""s_and_b32 s{sKind}, s{sG}, 3
s_cmp_eq_u32 s{sKind}, 2
s_cselect_b32 s{sKind}, 1, 0
s_cmp_eq_u32 s{sTile}, 247
s_cselect_b32 s{sKind}, 2, s{sKind}
s_cselect_b32 s{sG}, 8, s{sG}
s_cmp_eq_u32 s{sT1}, 31
s_cselect_b32 s{sKind}, 2, s{sKind}
s_cselect_b32 s{sG}, s{sT0}, s{sG}""")
    a(f"v_lshrrev_b32 v7, 5, v{vL}\nv_lshrrev_b32 v2, 3, v{vL}\nv_and_b32 v3, 7, v{vL}")
    st0 = a.state()
    a(f"s_cmp_eq_u32 s{sKind}, 2\ns_cbranch_scc1 L_spare")
    a(f"s_mul_i32 s{sXm}, s{sW}, 5120")
    a(f"s_lshl_b32 s{sT0}, s{sW}, 2\nv_lshrrev_b32 v4, 1, v2\nv_add_u32 v4, s{sT0}, v4\nv_and_b32 v4, 7, v4\nv_xor_b32 v4, v4, v3\nv_lshlrev_b32 v4, 4, v4")
    a(f"s_mul_i32 s{sT1}, s{sRB}, 160")
    a(f"s_cmp_eq_u32 s{sKind}, 1\ns_cbranch_scc1 L_ssm")
    a(f"s_add_u32 s{sT0}, s{sG}, 2\ns_lshr_b32 s{sT0}, s{sT0}, 2\ns_sub_u32 s{sG}, s{sG}, s{sT0}")
    a(f"s_lshl_b32 s{sT0}, s{sW}, 3\ns_add_u32 s{sT1}, s{sT1}, s{sT0}\nv_add_u32 v8, s{sT1}, v2\nv_mul_u32_u24 v8, 1280, v8\nv_add_u32 v{vXD}, v8, v4")
    for j in range(1, 5):
        a(f"v_add_u32 v{vXD+j}, {j*32*1280 - (j*1024 if j < 4 else 0)}, v{vXD}")
    a(f"s_lshr_b32 s{sT0}, s{sW}, 1\ns_lshl_b32 s{sT2}, s{sG}, 1\ns_add_u32 s{sT2}, s{sT2}, s{sT0}\ns_lshl_b32 s{sKind}, s{sT2}, 7\ns_cmp_ge_u32 s{sT2}, 27\ns_cselect_b32 s{sKind}, {OOB}, s{sKind}")
    a(f"v_bfe_u32 v8, v{vL}, 2, 3\nv_mul_u32_u24 v8, 3456, v8\nv_lshl_add_u32 v8, v7, 6, v8\nv_and_b32 v10, 0x30, v{vA}\nv_add3_u32 v{vWD}, v8, v10, s{sKind}")
    for j in range(1, 4):
        a(f"v_add_u32 v{vWD+j}, {j*(8*3456-1024)}, v{vWD}")
    a(f"s_mul_i32 s{sKind}, s{sT0}, 49152\ns_add_u32 s{sKind}, s{sKind}, {WB}\ns_and_b32 s{sT2}, s{sW}, 1\ns_lshl_b32 s{sT3}, s{sT2}, 13\ns_add_u32 s{sWm}, s{sT3}, s{sKind}")
    after_kernarg(a)
    a(f"s_bitcmp1_b32 s{sW}, 0\ns_cselect_b32 s{rA}, s{sWu}, s{sWg}\ns_cselect_b32 s{rA+1}, s{sWu+1}, s{sWg+1}\ns_mov_b32 s{rA+2}, {640*3456}\ns_mov_b32 s{rA+3}, 0x20000")
    def rd_glu():
        a(f"s_lshl_b32 s{sPair}, s{sG}, 2\ns_add_u32 s{sPair}, s{sPair}, s{sW}\ns_and_b32 s{sT2}, s{sW}, 1\ns_lshl_b32 s{sT2}, s{sT2}, 9\ns_add_u32 s{sT2}, s{sT2}, s{sKind}")
        a(f"v_bfe_u32 v8, v{vL}, 2, 2\nv_lshlrev_b32 v8, 6, v8\nv_lshl_add_u32 v8, v7, 10, v8\nv_and_b32 v10, 1, v{vL}\nv_lshl_add_u32 v8, v10, 5, v8")
        a(f"v_bfe_u32 v10, v{vL}, 4, 1\nv_lshl_add_u32 v8, v10, 4, v8\nv_bfe_u32 v10, v{vL}, 1, 1\nv_lshl_add_u32 v8, v10, 3, v8\nv_add_u32 v{vWR}, s{sT2}, v8")
    start_loads(a, 'glu', rd_glu)
    stg = a.state()
    a(f"s_cmp_eq_u32 s{sRB}, 12\ns_cbranch_scc1 L_glu12\ns_branch L_glu")
    a.set_state(st0)
    a("L_ssm:")
    a(f"s_lshr_b32 s{sG}, s{sG}, 2\ns_lshl_b32 s{sPair}, s{sG}, 2\ns_add_u32 s{sPair}, s{sPair}, s{sW}")
    a(f"s_lshl_b32 s{sT0}, s{sW}, 1\ns_add_u32 s{sT1}, s{sT1}, s{sT0}\nv_mul_u32_u24 v8, 80, v7\nv_and_b32 v9, 1, v2\nv_mul_u32_u24 v9, 40, v9\nv_bfe_u32 v10, v2, 1, 1")
    a(f"v_add3_u32 v8, v8, v9, v10\nv_add_u32 v8, s{sT1}, v8\nv_mul_u32_u24 v8, 1280, v8\nv_add_u32 v{vXD}, v8, v4")
    for j in range(1, 5):
        a(f"v_add_u32 v{vXD+j}, {j*8*1280 - (j*1024 if j < 4 else 0)}, v{vXD}")
    a(f"s_lshl_b32 s{sKind}, s{sPair}, 5\nv_add_u32 v8, s{sKind}, v2\nv_mul_u32_u24 v8, 1280, v8\nv_lshrrev_b32 v9, 1, v2\nv_xor_b32 v9, v9, v3")
    a(f"v_lshl_add_u32 v{vWD}, v9, 4, v8\nv_xor_b32 v9, 4, v9\nv_lshl_add_u32 v{vWD+1}, v9, 4, v8\nv_add_u32 v{vWD+1}, {8*1280-1024}, v{vWD+1}")
    a(f"v_add_u32 v{vWD+2}, {2*(8*1280-1024)}, v{vWD}\nv_add_u32 v{vWD+3}, {2*(8*1280-1024)}, v{vWD+1}")
    a(f"s_mul_i32 s{sWm}, s{sW}, 24576\ns_add_u32 s{sWm}, s{sWm}, {WB}\nv_and_b32 v12, 31, v{vL}")
    after_kernarg(a)
    srd(a, rA, sBre, 640*1280)
    srd(a, rB, sBim, 640*1280)
    def rd_ssm():
        a(f"v_lshlrev_b32 v9, 7, v12\nv_add_u32 v9, s{sWm}, v9")
        for s in range(4):
            a(f"v_xor_b32 v10, {2*s}, v6\nv_lshl_add_u32 v{vWR+s}, v10, 4, v9")
    start_loads(a, 'ssm', rd_ssm)
    b2 = B2Q()
    mainloop(a, 'ssm', b2)
    stamp(a, 2)
    epilogue_ssm(a, b2)
    phase2(a, 's', PBS)
    a.set_state(st0)
    a("L_spare:")
    a("s_memrealtime s[74:75]")
    after_kernarg(a)
    common_srds(a)
    a(f"s_or_b32 s{sT0}, s{sG}, s{sW}\ns_cbranch_scc1 L_nonon\ns_or_b32 s{sT2}, s74, 1\nv_mov_b32 v12, s{sT2}\ns_mov_b64 exec, 1")
    st = a.state()
    a(f"buffer_store_dword v12, off, {S(rF)}, 0 sc1\ns_mov_b64 exec, -1\nL_nonon:")
    a.set_state(st)
    stamp(a, 0)
    a(f"s_lshl_b32 s{sPair}, s{sG}, 2\ns_add_u32 s{sPair}, s{sPair}, s{sW}\ns_lshl_b32 s{sReg}, s{sW}, 13")
    a(f"v_mul_u32_u24 v14, 1280, v2\nv_lshl_add_u32 v14, v3, 4, v14")
    for i in range(3):
        a(f"s_add_u32 s{sU}, s{sPair}, {988+36*i}")
        wd_issue(a, 14, f"s_add_u32 m0, s{sReg}, {i*2048}", f'w{i}')
        wd_dest(a, 16+i, 15, 16+i)
    wd_rdaddr(a, 19, 15, sReg)
    for i in range(3):
        f1, f2 = wd_finish(19, i*2048, 16+i, 16+i, f'w{i}', 8*i)
        for x, tag in f1 + f2: emit_item(a, x, tag, 'spare')
    a(NONCE_LOAD, tag='non')
    nonce_check(a, 'spare')
    a("s_waitcnt vmcnt(0)\ns_barrier")
    for x, tag in flag1_store(): a(x, tag=tag)
    stamp(a, 12)
    stats_loop(a)
    stamp(a, 1)
    for x, tag in p2_scalars(): a(x)
    a(F1_LOAD, tag='f1')
    flag1_check(a, 'spare')
    a("s_barrier")
    B2Q().emit(a, 999, PBG)
    p2_flagaddr(a)
    a("s_branch L_p2_g")
    a.set_state(stg)
    a("L_glu12:")
    b2 = B2Q()
    mainloop(a, 'glu12', b2)
    stamp(a, 2)
    epilogue_glu(a, b2, 4)
    b2.emit(a, 999, PBG)
    a("s_branch L_p2_g")
    a.set_state(stg)
    a("L_glu:")
    b2 = B2Q()
    mainloop(a, 'glu', b2)
    stamp(a, 2)
    epilogue_glu(a, b2)
    b2.emit(a, 999, PBG)
    a.set_state(([], [], False))
    phase2(a, 'g', PBG)
    for t in SLOW: a(t)
    a("L_end:")
    return a

def wrap(name, a):
    return f"""
.text
.globl {name}
.p2align 8
.type {name},@function
{name}:
{a.text()}    s_endpgm
.section .rodata,"a"
.p2align 6
.amdhsa_kernel {name}
  .amdhsa_next_free_vgpr 512
  .amdhsa_next_free_sgpr 102
  .amdhsa_accum_offset 256
  .amdhsa_group_segment_fixed_size 0
  .amdhsa_kernarg_size 128
  .amdhsa_user_sgpr_count 2
  .amdhsa_user_sgpr_kernarg_segment_ptr 1
  .amdhsa_system_sgpr_workgroup_id_x 1
.end_amdhsa_kernel
"""

if __name__ == "__main__":
    out = [x for x in sys.argv[1:] if not x.startswith('--')][0]
    hdr = open('cdna_kernels/' + NAME + '.s.ref').read().split('; Override launch')[0]
    s = hdr
    if '--list' in sys.argv:
        s += f"; @launch kernel={NAME}_kernel grid=(256,1,1) block=(256,1,1) lds={LDS}\n"
    else:
        s += f"; @launch grid=(256,1,1) block=(256,1,1) lds={LDS}\n"
    s += '.amdgcn_target "amdgcn-amd-amdhsa--gfx950"\n'
    k = kernel()
    s += wrap(NAME + "_kernel", k)
    open(out, 'w').write(s)
    print("pads", k.npad, "instrs", len(k.ins))
```

```python
import sys, math, struct
from emit import Asm

NAME = "parallel_sum__ssm_conv_s5__glu_gated_glu__prompt"
def opt(name, default):
    for x in sys.argv:
        if x.startswith(f'--{name}='):
            return type(default)(x.split('=', 1)[1])
    return default
STAMP = '--stamp' in sys.argv
N0 = opt('n0', 9)
N1 = opt('n1', 8)
DX = opt('dx', 0.4)
FB = opt('fb', 9)
FL = opt('fl', 14)
FC = opt('fc', 16)
FS = opt('fs', 2)
MQ = opt('mq', 4.4)
MQS = opt('mqs', 3.8)
RK = opt('rk', 4)
RS = opt('rs', 2.0)
SCK = opt('sck', 9)
B2S = opt('b2s', 16)
B2C = opt('b2c', 20)
B2P = opt('b2p', 0)
B2E = opt('b2e', 2)
B2W = opt('b2w', 10)
PBS = opt('pbs', 19)
PBG = opt('pbg', 22)
PBT = opt('pbt', 22)
EPO = opt('epo', 20)
GA = opt('ga', 12)
CLB = opt('clb', 1)
MAP2 = opt('map2', 1)
NPL = opt('npl', 4)
EPL = opt('epl', 36)
NS = opt('ns', 2)
QL = opt('ql', 14)
SMG = opt('smg', 1)
NOBASE = opt('nobase', 0)
NRING = opt('nr', 5)
PG = opt('pg', '12-20/2-9/0-1/10/1/1.5')
PS = opt('ps', '0-11/12-16//17/6/2.5')
NA0 = opt('na0', 4)
PBAR = opt('pbar', 1)
BS0 = opt('bs0', 1)
BSD = opt('bsd', 3)
EARLY = opt('early', 0)
PROBE = opt('probe', -2)
PWG = opt('pwg', -1)
PCYC = opt('pcyc', 0)
OST = opt('ost', 'nt')
PFL = opt('pfl', 22)
ALIGN = opt('align', 1)
SLP = opt('slp', 2)
LSC = 'sc1'
LOG2E = 1.4426950408889634
def f2u(x): return "0x%08x" % struct.unpack('<I', struct.pack('<f', x))[0]

H_SIZE = 32*94*4096
MISC = 0x1000000
STATS = 0x400000
FLAG1 = 0x410000
FLAG2 = 0x420000
SUMS = 0x440000
PART = 0x3b0000
EOFF = 0x460000
STAMPS = 0x490000
MISC_SIZE = 0x500000
OOB = 0x8000000
SPINMAX = 100000
WB, WBD, SPARE, LDS = 61440, 122880, 159744, 163840
N8S = 94*5120

sX, sLre, sLim, sBre, sBim, sCre, sCim, sLdt, sD, sWg, sWu, sWd, sOut, sDbg, sWs = 8,10,12,14,16,18,20,22,24,28,30,32,34,36,38
rX, rA, rB, rH, rM, rF, rP, rR = 40, 44, 48, 52, 56, 60, 84, 88
(sW, sRB, sG, sFo, sDo, sAo, sBo, sXm, sWm, sT0, sT1, sT2, sT3, sKind, sPair, sSpin) = range(64, 80)
sNon = 83
sRT, sN8, sReg, sLast = 4, 5, 6, 7
sU, sJ0, sJ1 = 27, 100, 101
sRx, sRw = 3, 26
sRs, sRd = 92, 93
def srd(a, r, base, size):
    a(f"s_mov_b32 s{r}, s{base}\ns_mov_b32 s{r+1}, s{base+1}\ns_mov_b32 s{r+2}, {size}\ns_mov_b32 s{r+3}, 0x20000")
def S(r, n=4): return f"s[{r}:{r+n-1}]"
def V(r, n=4): return f"v[{r}:{r+n-1}]"
def A(r, n=4): return f"a[{r}:{r+n-1}]"
def P(r): return f"v[{r}:{r+1}]"

def stamp(a, idx):
    if PROBE == idx and not PCYC: a("s_memrealtime s[80:81]\ns_waitcnt lgkmcnt(0)\ns_mov_b32 s1, s80")
    if PROBE == idx and PCYC: a("s_memtime s[80:81]\ns_waitcnt lgkmcnt(0)\ns_sub_u32 s1, s80, s82\ns_lshr_b32 s1, s1, 4\ns_add_u32 s1, s1, s0")
    if not STAMP: return
    a(f"s_memtime s[80:81]\ns_memrealtime s[0:1]\ns_waitcnt lgkmcnt(0)\nv_accvgpr_write_b32 a252, s80\nv_accvgpr_write_b32 a253, s0")
    a(f"buffer_store_dwordx2 a[252:253], off, {S(rM)}, s82 offset:{idx*8}", tag='stamp')

def bf16_round(a, d, s):
    a(f"v_cvt_pk_bf16_f32 v{d}, v{s}, v{s}\nv_lshlrev_b32 v{d}, 16, v{d}")

XF, WF, vXR, vWR, vXD, vWD, vL, vS, vA, vT, vLAM = 160, 200, 216, 220, 224, 229, 233, 234, 238, 239, 244
vSel, vSa, vQR, vQF, vQ = 128, 132, 140, 144, 152
vRp = 247
def accg(j): return 32*j
def accu(j): return 32*j + 16
aDUM = 255
def ntile(role): return 4 if role in ('g12', 'ssm') else 5

def grp(m0, off, loads):
    return [f"s_add_u32 m0, {m0}\n{off}\n" + loads[0]] + loads[1:]
def koff(role, c, unit, extra, sdyn, first):
    if role == 'ssm':
        if first and c > 0: return f"s_add_u32 s{sRx}, s{sRx}, 128\ns_cmp_eq_u32 s{sRx}, 1280\ns_cselect_b32 s{sRx}, 0, s{sRx}\ns_mov_b32 s{sDo}, s{sRx}"
        return f"s_mov_b32 s{sDo}, s{sRx}"
    if role == 'glu' and c < 2: return f"s_add_u32 s{sDo}, s{sdyn}, {c*unit + extra}"
    if role == 'g12': c = (c + NS) % 10
    return f"s_mov_b32 s{sDo}, {c*unit + extra}"
def dma_x(role, c, half=0):
    base = (c % 3)*20480 + half*61440
    off = koff(role, c, 128, half*160*1280, sRx, True)
    x = grp(f"s{sXm}, {base}", off, [f"buffer_load_dwordx4 v{vXD+j}, {S(rX)}, s{sDo} offen offset:{j*1024} lds" for j in range(4)])
    if ntile(role) == 5:
        x = grp(f"s{sXm}, {base+4096}", off, [f"buffer_load_dwordx4 v{vXD+4}, {S(rX)}, s{sDo} offen lds"]) + x
    return x
def dma_w(role, c):
    ld = lambda r: [f"buffer_load_dwordx4 v{vWD+j}, {S(r)}, s{sDo} offen offset:{j*1024} lds" for j in range(4)]
    o = lambda e: koff(role, c, 64*3456, e, sRw, False)
    if role == 'gld': return grp(f"s{sWm}, {(c & 1)*16384}", o(0), ld(rA))
    if role == 'ssm': return grp(f"s{sWm}, {(c % 3)*8192}", o(0), ld(rA)) + grp(f"s{sWm}, {(c % 3)*8192+4096}", o(0), ld(rB))
    return grp(f"s{sWm}, {(c % 3)*16384}", o(0), ld(rA)) + grp(f"s{sWm}, {(c % 3)*16384+4096}", o(32*3456), ld(rA))
def dma_queue(role):
    q = []
    for c in range(10):
        r = 'glu' if (role == 'g12' and c < 2) else role
        e2, e1 = max(4*(c-2)-1, 0), (4*(c-1)-1 if c >= 2 else 0)
        stg = RK + 1 if (c == 2 and ntile(role) == 5) else e2
        x0 = dma_x(r, c)
        x0 = [(t, e2) for t in x0[:-4]] + [(t, stg) for t in x0[-4:]]
        if role == 'gld': L = [(t, e2) for t in dma_x(r, c, 1)] + [(t, e1) for t in dma_w(r, c)] + x0
        elif c == 2 and ntile(role) == 5: L = [(t, e2) for t in dma_w(r, c)] + x0
        else: L = x0 + [(t, e2) for t in dma_w(r, c)]
        q += [(t, f'c{c}', c, e) for t, e in L]
    return q

def reads(role, ks):
    c, s = ks // 4, ks % 4
    slot, b = c % 3, ks & 1
    L = []
    for m in range(2):
        d = WF + b*8 + m*4
        if role == 'ssm':
            L.append(f"ds_read_b128 {V(d)}, v{vWR+s} offset:{slot*8192 + m*4096}")
        else:
            off = (c & 1 if role == 'gld' else slot)*16384 + m*8192 + s*2048
            L.append(f"ds_read_b64_tr_b16 v[{d}:{d+1}], v{vWR} offset:{off}")
            L.append(f"ds_read_b64_tr_b16 v[{d+2}:{d+3}], v{vWR} offset:{off+256}")
    for j in range(ntile(role)):
        L.append(f"ds_read_b128 {V(XF + b*20 + j*4)}, v{vXR+s} offset:{slot*20480 + j*1024}")
    return L

vSt = 236
def s_ops(ks):
    b = ks & 1
    L = []
    for i in range(4):
        for m in range(2):
            w = WF + b*8 + m*4 + i
            if ks == 0 and i == 0:
                L += [f"v_lshlrev_b32 v{vS+m}, 16, v{w}", f"v_and_b32 v{vSt+1}, 0xffff0000, v{w}", f"v_add_f32 v{vS+m}, v{vS+m}, v{vSt+1}"]
            else:
                L += [f"v_lshlrev_b32 v{vSt}, 16, v{w}", f"v_and_b32 v{vSt+1}, 0xffff0000, v{w}",
                      f"v_add_f32 v{vS+m}, v{vS+m}, v{vSt}", f"v_add_f32 v{vS+m}, v{vS+m}, v{vSt+1}"]
    return L
def q_read(k): return f"ds_read_b128 {V(vQF + 4*(k & 1))}, v{vQR + k % 4} offset:{((k//4) % 3)*20480}"
def q_ops(k):
    L = []
    t = vQ + 2
    for i in range(4):
        w = vQF + 4*(k & 1) + i
        L += [f"v_lshlrev_b32 v{t}, 16, v{w}", f"v_and_b32 v{t+1}, 0xffff0000, v{w}", f"v_add_f32 v{vQ}, v{vQ}, v{t}", f"v_fmac_f32 v{vQ+1}, v{t}, v{t}",
              f"v_add_f32 v{vQ}, v{vQ}, v{t+1}", f"v_fmac_f32 v{vQ+1}, v{t+1}, v{t+1}"]
    return L
vRA, vQT, vQS = 158, 156, 157
def q_addr():
    t = vT
    L = [f"v_bfe_u32 v{t}, v{vL}, 3, 2", f"v_bfe_u32 v{t+1}, v{vL}, 1, 1", f"v_lshl_add_u32 v{t}, v{t}, 1, v{t+1}", f"s_lshl_b32 s{sT0}, s{sW}, 3\nv_add_u32 v{t}, s{sT0}, v{t}",
         f"v_bfe_u32 v{t+1}, v{vL}, 2, 1", f"v_and_b32 v{t+2}, 1, v{vL}",
         f"v_lshl_add_u32 v{vQT}, v{t+1}, 5, v{t}", f"v_lshlrev_b32 v{vQT}, 4, v{vQT}", f"v_lshl_add_u32 v{vQT}, v{t+2}, 2, v{vQT}", f"v_add_u32 v{vQT}, {SPARE}, v{vQT}",
         f"v_lshl_add_u32 v{vQS}, v{t+1}, 1, v{t+2}", f"v_lshl_add_u32 v{vQS}, v{vQS}, 5, v{t}", f"v_lshlrev_b32 v{vQS}, 3, v{vQS}",
         f"v_and_b32 v{vRA}, 32, v{vL}", f"v_lshlrev_b32 v{vRA}, 4, v{vRA}", f"v_add_u32 v{vRA}, {SPARE}, v{vRA}",
         f"s_mul_i32 s{sT0}, s{sRB}, 52\ns_lshr_b32 s{sT0}, s{sT0}, 8\ns_mul_i32 s{sT0}, s{sT0}, 5\ns_sub_u32 s{sT0}, s{sRB}, s{sT0}\ns_lshl_b32 s{sU}, s{sRB}, 10\ns_add_u32 s{sU}, s{sU}, {STATS}\n"
         f"s_cmp_eq_u32 s{sT0}, s{sG}\ns_cselect_b32 s{sU}, s{sU}, {OOB}"]
    return [(x, None) for x in L]
def q_final():
    m, q, o = vQ, vQ+1, vQ+2
    L = [f"v_add_f32 v{m}, v{vQR}, v{vQR+2}", f"v_add_f32 v{q}, v{vQR+4}, v{vQR+6}", f"v_add_f32 v{m}, v{m}, v{vQR+8}", f"v_add_f32 v{m}, v{m}, v{q}", f"v_mul_f32 v{m}, {f2u(1.0/640)}, v{m}", f"v_mov_b32 v{q}, v{m}", f"v_mov_b32 v{o+1}, s{sNon}",
         f"v_permlane32_swap_b32 v{m}, v{q}", f"v_fma_f32 v{q}, -v{m}, v{m}, v{q}", f"v_max_f32 v{q}, 0, v{q}",
         f"v_cvt_pk_bf16_f32 v{q}, v{q}, v{q}", f"v_lshlrev_b32 v{q}, 16, v{q}", f"v_add_f32 v{q}, {f2u(1e-5)}, v{q}",
         f"v_cvt_pk_bf16_f32 v{q}, v{q}, v{q}", f"v_lshlrev_b32 v{q}, 16, v{q}", f"v_sqrt_f32 v{q}, v{q}", f"v_cvt_pk_bf16_f32 v{o}, -v{m}, v{q}"]
    L = [(x, None) for x in L]
    L += [(f"s_mov_b32 exec_hi, 0\nbuffer_store_dwordx2 {P(o)}, v{vQS}, {S(rM)}, s{sU} offen sc1\ns_mov_b64 exec, -1", 'qpub')]
    L += [(x, None) for x in (f"v_and_b32 v{q}, 0xffff0000, v{o}", f"v_lshlrev_b32 v{m}, 16, v{o}", f"v_rcp_f32 v{q}, v{q}", f"v_mul_f32 v{m}, v{m}, v{q}")]
    L += [(f"ds_write2_b32 v{vQT}, v{q}, v{m} offset0:0 offset1:2", 'sw')]
    return L

def q_part():
    return [(f"v_lshrrev_b32 v159, 1, v{vA}", None), (f"v_permlane32_swap_b32 v{vQ}, v{vQ+1}", None),
            (f"s_lshl_b32 s{sJ1}, s{sRB}, 2\ns_add_u32 s{sJ1}, s{sJ1}, s{sW}\ns_mul_i32 s{sJ1}, s{sJ1}, 2560\ns_add_u32 s{sJ1}, s{sJ1}, {PART}", None),
            (f"v_add_f32 v{vQ}, v{vQ}, v{vQ+1}", None), (f"v_mov_b32 v{vQ+1}, s{sNon}", None),
            (f"s_lshl_b32 s{sT0}, s{sG}, 9\ns_add_u32 s{sT0}, s{sT0}, s{sJ1}\nbuffer_store_dwordx2 {P(vQ)}, v159, {S(rM)}, s{sT0} offen sc1", 'qp')]
Q_LOAD = "\n".join(f"buffer_load_dwordx2 {P(vQR+2*g)}, v159, {S(rM)}, s{sJ1} offen offset:{512*g} sc1" for g in range(5))
def q_check(a):
    a.wait(vm='ql')
    spin(a, 'q', Q_LOAD, f"v_xor_b32 v{vQ}, s{sNon}, v{vQR+1}\n" + "".join(f"v_xor_b32 v{vQ+1}, s{sNon}, v{vQR+2*g+1}\nv_or_b32 v{vQ}, v{vQ}, v{vQ+1}\n" for g in range(1, 5)) + f"v_cmp_ne_u32 vcc, 0, v{vQ}")

def lam_setup():
    lr, li, dt, zr, zi, t = vLAM+10, vLAM+11, vT, vT+1, vT+2, vT+3
    u0 = dt
    L = [f"v_lshlrev_b32 v{lr}, 16, v{vLAM}", f"v_lshlrev_b32 v{li}, 16, v{vLAM+1}", f"v_lshlrev_b32 v{dt}, 16, v{vLAM+2}",
         f"v_mul_f32 v{dt}, {f2u(LOG2E)}, v{dt}", f"v_exp_f32 v{dt}, v{dt}", f"v_cvt_pk_bf16_f32 v{dt}, v{dt}, v{dt}", f"v_lshlrev_b32 v{dt}, 16, v{dt}",
         f"v_mul_f32 v{zr}, v{dt}, v{lr}", f"v_mul_f32 v{zi}, v{dt}, v{li}", f"v_mul_f32 v{zr}, {f2u(LOG2E)}, v{zr}", f"v_mul_f32 v{zi}, 0.15915494, v{zi}"]
    def pw(d, n):
        return [f"v_mul_f32 v{t}, {f2u(float(n))}, v{zr}", f"v_mul_f32 v{u0}, {f2u(float(n))}, v{zi}", f"v_exp_f32 v{t}, v{t}", f"v_fract_f32 v{u0}, v{u0}",
                f"v_cos_f32 v{d}, v{u0}", f"v_sin_f32 v{d+1}, v{u0}", f"v_mul_f32 v{d}, v{d}, v{t}", f"v_mul_f32 v{d+1}, v{d+1}, v{t}"]
    L += pw(vLAM, 1)
    c = vLAM + 2
    L += [f"v_mul_f32 v{t}, v{lr}, v{lr}", f"v_fmac_f32 v{t}, v{li}, v{li}", f"v_rcp_f32 v{t}, v{t}", f"v_add_f32 v{u0}, -1.0, v{vLAM}",
          f"v_mul_f32 v{c}, v{u0}, v{lr}", f"v_fmac_f32 v{c}, v{vLAM+1}, v{li}", f"v_mul_f32 v{c+1}, v{vLAM+1}, v{lr}", f"v_fma_f32 v{c+1}, -v{u0}, v{li}, v{c+1}",
          f"v_add_f32 v{t}, v{t}, v{t}", f"v_mul_f32 v{c}, v{c}, v{t}", f"v_mul_f32 v{c+1}, v{c+1}, v{t}"]
    for idx, n in ((4, 32), (6, 64), (8, 128), (10, 256)): L += pw(vLAM+idx, n)
    return [('WAITVM', 'lam')] + [(x, None) for x in L]

def cmul_add(a, d, x, l, add):
    a(f"v_pk_fma_f32 {P(d)}, {P(x)}, {P(l)}, {P(add)} op_sel:[0,0,0] op_sel_hi:[1,0,1]")
    a(f"v_pk_fma_f32 {P(d)}, {P(x)}, {P(l)}, {P(d)} op_sel:[1,1,0] op_sel_hi:[0,1,1] neg_lo:[1,0,0]")

def div10(d, r, src):
    return f"s_mul_i32 s{d}, s{src}, 6554\ns_lshr_b32 s{d}, s{d}, 16\ns_mul_i32 s{r}, s{d}, 10\ns_sub_u32 s{r}, s{src}, s{r}"

def stage_m0(role, i):
    if ntile(role) == 5: return f"s{sXm}, {2*20480 + i*1024}"
    return f"s{sXm}, {i*20480 + 4096}" if i < 3 else f"s{sReg}, 0"
def repack_setup(a, role):
    a(div10(sJ0, sJ1, sU))
    a(f"v_mul_u32_u24 v14, 1280, v2\ns_lshl_b32 s{sT3}, s{sJ1}, 7\ns_lshl_b32 s{sReg}, s{sW}, 10\ns_add_u32 s{sReg}, s{sReg}, {SPARE}")
    if role == 'glu':
        srd(a, rR, sWd, 1728*1280)
        rd, dst, t = vRp+1, vRp+2, 15
        a(f"v_lshl_add_u32 v{vRp}, v3, 4, v14\ns_mul_i32 s{sRs}, s{sJ0}, {32*1280}\ns_add_u32 s{sRs}, s{sRs}, s{sT3}")
        a(f"v_bfe_u32 v{rd}, v{vL}, 2, 2\nv_lshlrev_b32 v{rd}, 7, v{rd}\nv_lshrrev_b32 v{t}, 4, v{vL}\nv_lshl_add_u32 v{rd}, v{t}, 5, v{rd}")
        a(f"v_and_b32 v16, 3, v{vL}\nv_lshlrev_b32 v16, 3, v16\nv_add3_u32 v{rd}, v{rd}, v16, s{sXm}")
        a(f"s_lshl_b32 s{sT0}, s{sJ1}, 2\nv_add_u32 v{t}, s{sT0}, v{t}")
        a(f"v_mul_u32_u24 v{dst}, 13, v{t}\nv_lshrrev_b32 v{dst}, 6, v{dst}\nv_mul_u32_u24 v{dst}, {N8S-5120}, v{dst}\nv_lshl_add_u32 v{dst}, v{t}, 10, v{dst}")
        a(f"v_and_b32 v{t}, 0xf0, v{vA}\nv_add_u32 v{dst}, v{dst}, v{t}")
        a(f"s_mul_i32 s{sRd}, s{sJ0}, 5120\ns_cmp_ge_u32 s{sJ0}, 54\ns_cselect_b32 s{sRd}, {OOB}, s{sRd}")
    else:
        a(f"s_cmp_ge_u32 s{sJ0}, 20\ns_cselect_b32 s{rR}, s{sCim}, s{sCre}\ns_cselect_b32 s{rR+1}, s{sCim+1}, s{sCre+1}\ns_cselect_b32 s{sT2}, 20, 0\ns_cselect_b32 s{sT1}, 5120, 0")
        a(f"s_mov_b32 s{rR+2}, {640*1280}\ns_mov_b32 s{rR+3}, 0x20000\ns_sub_u32 s{sJ0}, s{sJ0}, s{sT2}\ns_mul_i32 s{sRs}, s{sJ0}, {32*1280}\ns_add_u32 s{sRs}, s{sRs}, s{sT3}")
        a(f"v_lshrrev_b32 v15, 1, v2\nv_xor_b32 v15, v15, v3\nv_lshl_add_u32 v{vRp}, v15, 4, v14\nv_xor_b32 v{vRp+1}, 64, v{vRp}")
        a(f"v_bfe_u32 v14, v{vL}, 1, 3\nv_lshrrev_b32 v15, 4, v{vL}\nv_xor_b32 v14, v14, v15\nv_lshlrev_b32 v14, 4, v14\nv_lshl_add_u32 v14, v3, 7, v14\nv_bfe_u32 v15, v{vL}, 3, 1")
        if ntile(role) == 5:
            a(f"v_lshl_add_u32 v14, v15, 10, v14\ns_add_u32 s{sT0}, s{sXm}, {2*20480}\nv_add_u32 v{vRp+2}, s{sT0}, v14\nv_add_u32 v{vRp+4}, 2048, v{vRp+2}")
        else:
            a(f"v_mul_u32_u24 v16, 20480, v15\ns_add_u32 s{sT0}, s{sXm}, 4096\nv_add3_u32 v{vRp+2}, v14, v16, s{sT0}")
            a(f"s_add_u32 s{sT0}, s{sT0}, 40960\ns_sub_u32 s{sT2}, s{sReg}, s{sT0}\nv_mul_u32_u24 v16, s{sT2}, v15\nv_add3_u32 v{vRp+4}, v14, v16, s{sT0}")
        a(f"v_xor_b32 v{vRp+3}, 64, v{vRp+2}\nv_xor_b32 v{vRp+5}, 64, v{vRp+4}")
        a(f"s_mul_i32 s{sT0}, s{sJ1}, {4*5120}\ns_add_u32 s{sT1}, s{sT1}, s{sT0}\ns_add_u32 s{sT1}, s{sT1}, {54*5120}")
        for u in range(2):
            a(f"s_lshl_b32 s{sT0}, s{sJ0}, 1\ns_add_u32 s{sT0}, s{sT0}, {u}\ns_mul_i32 s{sT2}, s{sT0}, 13\ns_lshr_b32 s{sT2}, s{sT2}, 6\ns_mul_i32 s{sT2}, s{sT2}, {N8S-5120}")
            a(f"s_lshl_b32 s{sT0}, s{sT0}, 10\ns_add_u32 s{sT2}, s{sT2}, s{sT0}\ns_add_u32 s{sRd+2*u}, s{sT2}, s{sT1}\ns_add_u32 s{sRd+2*u+1}, s{sRd+2*u}, 10240")
def repack_dma(role):
    return [f"s_add_u32 m0, {stage_m0(role, i)}\ns_add_u32 s{sDo}, s{sRs}, {i*8*1280}\nbuffer_load_dwordx4 v{vRp + (0 if role == 'glu' else i & 1)}, {S(rR)}, s{sDo} offen lds" for i in range(4)]
def repack_fin(role):
    if role == 'glu':
        rd = [f"ds_read_b64_tr_b16 {A(2*i,2)}, v{vRp+1} offset:{2*20480+512*i}" for i in range(8)]
        st = [f"buffer_store_dwordx4 {A(4*i)}, v{vRp+2}, {S(rM)}, s{sRd} offen offset:{256*i} sc1" for i in range(4)]
    else:
        rd = [f"ds_read_b128 {A(4*i)}, v{vRp+2+i}" for i in range(4)]
        st = [f"buffer_store_dwordx4 {A(4*i)}, v{vA}, {S(rM)}, s{sRd+i} offen sc1" for i in range(4)]
    return [('WAITVM', 'rpk')] + [(x, 'rp') for x in rd], [(x, 'early') for x in st]

NR, RING = 5, 80
vBase, vEA, vLA, vLW, vFl, vPo, vBR = 200, 220, 225, 230, 231, 232, 234
rO, rD = rA, rB
sFl = 28
POLL = f"buffer_load_dword v{vPo}, v{vFl}, {S(rM)}, s{sFl} offen sc1"
VB2 = 160
def rng(t):
    out = []
    for x in t.split(','):
        if not x: continue
        a, _, b = x.partition('-')
        out += list(range(int(a), int(b or a) + 1))
    return out
class Plan:
    def __init__(self, text):
        f = text.split('/')
        self.ag, self.ll, self.vv, self.sh = map(rng, f[:4])
        self.lp0, self.lr = int(f[4]), float(f[5])
        assert len(self.ag) <= 12 and len(self.ll) <= 8 and len(self.vv) <= 2
        self.dest = {}
        for i, p in enumerate(self.ag): self.dest[p] = ('a', 20*i)
        for i, p in enumerate(self.ll): self.dest[p] = ('l', i)
        for i, p in enumerate(self.vv): self.dest[p] = ('v', VB2 + 20*i)
        self.free = [('a', 20*i) for i in range(len(self.ag), 12)] + [('v', VB2 + 20*i) for i in range(len(self.vv), 2)]
        self.late = [p for p in range(24) if p not in self.dest and p not in self.sh]
PLAN = {'g': Plan(PG), 's': Plan(PS)}
def b2_items(p, dest):
    k, d = dest
    pre = f"s_add_u32 s{sJ0}, s{sBo}, {p*4*5120}"
    if p == 23: pre += f"\ns_add_u32 s{sJ0}, s{sJ0}, s{sLast}"
    L = []
    for q in range(5):
        t = ""
        if q == 0: t = pre + "\n"
        if q == 4: t = f"s_add_u32 s{sJ0}, s{sJ0}, 4096\n"
        off = f" offset:{q*1024}" if 0 < q < 4 else ""
        if k == 'l':
            if q in (0, 4): t = f"s_add_u32 m0, s{sReg}, {d*5120 + q*1024}\n" + t
            t += f"buffer_load_dwordx4 v{vA}, {S(rM)}, s{sJ0} offen{off} {LSC} lds"
        else:
            r = A(d+4*q) if k == 'a' else V(d+4*q)
            t += f"buffer_load_dwordx4 {r}, v{vA}, {S(rM)}, s{sJ0} offen{off} {LSC}"
        L.append((t, f'b{p}'))
    return L
class B2Q:
    def __init__(self, var):
        self.pl = PLAN[var]
        self.todo = [p for p in self.pl.ag + self.pl.ll + self.pl.vv if p not in self.pl.sh]; self.cur = []
    def take(self, n, kinds):
        out = []
        while n > 0:
            if not self.cur:
                ok = lambda d: d[0] in kinds or (d[0] == 'l' and 'L' in kinds and d[1] < 7)
                c = [p for p in self.todo if ok(self.pl.dest[p])]
                if kinds != 'a': c.sort()
                if not c: break
                self.todo.remove(c[0]); self.cur = b2_items(c[0], self.pl.dest[c[0]])
            out.append(self.cur.pop(0)); n -= 1
        return out
    def emit(self, a, n, kinds):
        for t, tag in self.take(n, kinds): a(t, tag=tag)
KE, KF = 'al', 'alv'

def p2_scalars():
    if MAP2 == 0:
        t = f"s_and_b32 s{sT0}, s2, 7\ns_lshl_b32 s{sT0}, s{sT0}, 2\ns_lshr_b32 s{sT1}, s2, 6\ns_add_u32 s{sRT}, s{sT0}, s{sT1}\ns_bfe_u32 s{sN8}, s2, 0x30003"
    else:
        t = f"s_and_b32 s{sT0}, s2, 6\ns_lshl_b32 s{sT0}, s{sT0}, 2\ns_lshr_b32 s{sT1}, s2, 5\ns_add_u32 s{sRT}, s{sT0}, s{sT1}\ns_and_b32 s{sT0}, s2, 1\ns_lshl_b32 s{sT0}, s{sT0}, 2\ns_bfe_u32 s{sN8}, s2, 0x20003\ns_add_u32 s{sN8}, s{sN8}, s{sT0}"
    return [(t, None),
            (f"s_mul_i32 s{sReg}, s{sW}, 40960\ns_mul_i32 s{sAo}, s{sRT}, 94\ns_add_u32 s{sAo}, s{sAo}, s{sW}\ns_lshl_b32 s{sAo}, s{sAo}, 12", None),
            (f"s_mul_i32 s{sBo}, s{sN8}, 94\ns_add_u32 s{sBo}, s{sBo}, s{sW}\ns_mul_i32 s{sBo}, s{sBo}, 5120\ns_cmp_ge_u32 s{sW}, 2\ns_cselect_b32 s{sLast}, {OOB}, 0", None)]

SLOW = []
def spin(a, name, load, check):
    a(f"L_chk_{name}:\n{check}\ns_cbranch_vccnz L_slow_{name}\nL_go_{name}:")
    SLOW.append(f"L_slow_{name}:\ns_add_u32 s{sSpin}, s{sSpin}, 1\ns_cmp_gt_u32 s{sSpin}, {SPINMAX}\ns_cbranch_scc1 L_go_{name}\ns_sleep {SLP}\n{load}\ns_waitcnt vmcnt(0)\ns_branch L_chk_{name}")

NONCE_LOAD = f"buffer_load_dword v{vT+4}, off, {S(rF)}, 0 sc1"
def nonce_check(a, role):
    a.wait(vm='non')
    spin(a, 'non_' + role, NONCE_LOAD, f"v_cmp_eq_u32 vcc, 0, v{vT+4}")
    a(f"v_readfirstlane_b32 s{sNon}, v{vT+4}")
def flag1_store():
    return [(f"s_lshl_b32 s{sT0}, s2, 4\ns_add_u32 s{sT0}, s{sT0}, {FLAG1}\ns_cmp_eq_u32 s{sW}, 0\ns_cselect_b32 s{sT0}, s{sT0}, {OOB}\nv_mov_b32 v{vT+2}, s{sNon}\ns_mov_b64 exec, 1\n"
             f"buffer_store_dword v{vT+2}, off, {S(rM)}, s{sT0} sc1\ns_mov_b64 exec, -1", 'flag')]
F1_LOAD = f"s_lshl_b32 s{sT0}, s{sW}, 10\ns_add_u32 s{sT0}, s{sT0}, {FLAG1}\nbuffer_load_dword v{vT+4}, v{vA}, {S(rM)}, s{sT0} offen sc1"
def flag1_check(a, role):
    a.wait(vm='f1')
    spin(a, 'f1_' + role, F1_LOAD, f"v_cmp_ne_u32 vcc, s{sNon}, v{vT+4}")

vGS, vSS = 244, 254
SGB = [160, 164, 168, 172, 176, 200, 204, 224]
vSP = [228, 228, 230, 230, 234]
def epi_load_text(role):
    t = "\n".join(f"buffer_load_dwordx2 {P(vGS+2*j)}, v{vT}, {S(rM)}, s{sU} offen offset:{j*256} sc1" for j in range(ntile(role)))
    if role != 'g12': t += f"\nbuffer_load_dwordx2 {P(vSS)}, v{vT+1}, {S(rM)}, s{sJ1} offen sc1"
    return t
def epi_addr():
    return [(f"s_mul_i32 s{sU}, s{sRB}, {160*8}\ns_add_u32 s{sU}, s{sU}, {STATS}", None),
            (f"v_lshrrev_b32 v{vT+1}, 1, v{vA}", None), (f"v_and_b32 v{vT}, 0xf8, v{vT+1}", None), (f"s_lshl_b32 s{sJ1}, s{sPair}, 9\ns_add_u32 s{sJ1}, s{sJ1}, {SUMS}", None)]
def epi_check(a, role):
    a.wait(vm='epi')
    n = 4 if role == 'g12' else 6
    chk = f"v_xor_b32 v{vT+2}, s{sNon}, v{vGS+1}\n" + "".join(f"v_xor_b32 v{vT+3}, s{sNon}, v{vGS+2*j+1}\nv_or_b32 v{vT+2}, v{vT+2}, v{vT+3}\n" for j in range(1, n)) + f"v_cmp_ne_u32 vcc, 0, v{vT+2}"
    spin(a, 'epi_' + role, epi_load_text(role), chk)
vAd = 232
def glu_prep():
    L = [(f"s_lshl_b32 s{sT0}, s{sW}, 10\ns_add_u32 s{sT0}, s{sT0}, {SPARE}\nv_lshrrev_b32 v{vT}, 2, v{vA}\nv_add_u32 v{vT}, s{sT0}, v{vT}\nv_lshrrev_b32 v{vT+1}, 5, v{vL}\nv_lshl_add_u32 v{vT+2}, v{vT+1}, 4, s{sT0}", None),
         (f"ds_write_b32 v{vT}, v{vSS}", 'sw')]
    for j in range(5):
        g, sp = vGS + 2*j, vSP[j] + (j & 1)
        L += [(f"v_and_b32 v{sp}, 0xffff0000, v{g}", None), (f"v_lshlrev_b32 v{g}, 16, v{g}", None), (f"v_rcp_f32 v{g+1}, v{sp}", None)]
    L += [(f"v_and_b32 v{vT+3}, 0xf0, v{vA}", None), (f"v_lshl_add_u32 v{vT+3}, v{vT+1}, 9, v{vT+3}", None), (f"v_bfe_u32 v{vT+4}, v{vL}, 4, 1", None), (f"v_lshl_add_u32 v{vAd}, v{vT+4}, 10, v{vT+3}", None)]
    L += [(f"v_mul_f32 v{vGS+2*j+1}, {f2u(-LOG2E)}, v{vGS+2*j+1}", None) for j in range(5)]
    L += [(f"s_lshl_b32 s{sT2}, s{sPair}, 12\ns_cmp_ge_u32 s{sPair}, 54\ns_cselect_b32 s21, {OOB}, s{sT2}", None)]
    for j in range(5):
        L += [(f"s_mul_i32 s{sT0}, s{sRB}, 5\ns_add_u32 s{sT0}, s{sT0}, {j}\ns_lshr_b32 s{sT1}, s{sT0}, 1\ns_mul_i32 s{sT1}, s{sT1}, {94*4096-4096}\ns_lshl_b32 s{sT0}, s{sT0}, 11\ns_add_u32 s{sT1}, s{sT1}, s{sT0}\ns_add_u32 s{16+j}, s{sT1}, s21", None)]
    R = [('WAITLG', 'sw')] + [(f"ds_read_b128 {V(SGB[4*m+q])}, v{vT+2} offset:{m*128+q*32}", 'sr') for m in range(2) for q in range(4)]
    return L, R
def emit_item(a, x, tag, role):
    if x == 'WAITVM': a.wait(vm=tag)
    elif x == 'WAITLG': a.wait(lg=tag)
    elif x == 'NONCE': nonce_check(a, role)
    elif x == 'F1': flag1_check(a, role)
    elif x == 'EPI': epi_check(a, role)
    elif x == 'QCHK': q_check(a)
    else: a(x, tag=tag)

def mainloop(a, role, b2):
    NT = ntile(role)
    NG = 2*NT
    dq = dma_queue(role)
    nper = sum(x[2] == 5 for x in dq)
    n0 = sum(x[2] == 0 for x in dq)
    DQ = nper/4 + DX
    dq = dq[n0+N1:]
    for r in reads(role, 0): a(r, tag='r0')
    side = {k: [] for k in range(40)}
    i1 = sum(x[2] == 1 for x in dq)
    dq = dq[:i1] + [(t, 'rpk', 2, 0) for t in repack_dma(role)] + dq[i1:]
    f1, f2 = repack_fin(role)
    side[RK] += f1
    for i, x in enumerate(f2): side[RK+1+int(i/RS)] += [x]
    side[FB-4] += [(NONCE_LOAD, 'non')]
    side[FB-1] += [('NONCE', None)]
    side[FB] += [('WAITVM', 'early'), ('s_barrier', None)] + flag1_store()
    for i, x in enumerate(p2_scalars()): side[FB+1+i] += [x]
    fs = FS if role == 'ssm' else 0
    if role != 'g12':
        side[FL+fs] += [(F1_LOAD, 'f1')]
        side[FC+fs] += [('F1', None), ('s_barrier', None)]
    else:
        side[FL+4] += [(F1_LOAD, 'f1')]
        side[FC+4] += [('F1', None), ('s_barrier', None)]
        side[38-4*NS] += epi_addr()
        side[EPL] += [(x, 'epi') for x in epi_load_text(role).split("\n")]
    if role in ('glu', 'gld'):
        side[EPL] += epi_addr() + [(x, 'epi') for x in epi_load_text(role).split("\n")]
        side[4*NS] += [(f"v_permlane32_swap_b32 v{vS}, v{vS+1}", None), (f"v_add_f32 v{vSt}, v{vS}, v{vS+1}", None)]
        p1, p2 = glu_prep()
        side[37] += p1[-6:]; side[38] += [('EPI', None), (f"v_add_f32 v{vSS}, v{vSS}, v{vSt}", None)] + p1[:11]; side[39] += p2 + p1[11:-6]
    if role == 'ssm':
        for i, x in enumerate(lam_setup()): side[FC+fs+2+i//5] += [x]
        side[FB-1] += q_part()
        qa = q_addr()
        side[FB+1] += qa[:9]; side[FB+2] += qa[9:]
        side[QL] += [(x, 'ql') for x in Q_LOAD.split("\n")]
        side[QL+3] += [('QCHK', None)]
        side[QL+4] += q_final()
        a(q_read(0), tag='r0'); a(q_read(1), tag='r0')
        a(f"v_mov_b32 v{vQ}, 0\nv_mov_b32 v{vQ+1}, 0")
    if NT == 4:
        a(f"v_lshrrev_b32 v{vSel}, 2, v{vL}\nv_lshrrev_b32 v{vSel+1}, 4, v{vL}\nv_xor_b32 v{vSel}, v{vSel}, v{vSel+1}\nv_and_b32 v{vSel}, 1, v{vSel}\nv_add_u32 v{vSel}, -1, v{vSel}\nv_and_b32 v{vSel}, 0x3f803f80, v{vSel}")
        a(f"v_mov_b32 v{vSel+1}, v{vSel}\nv_mov_b32 v{vSel+2}, v{vSel}\nv_mov_b32 v{vSel+3}, v{vSel}")
    dcred = 1.5; mcred = 0.0
    for ks in range(40):
        c, s = ks // 4, ks % 4
        b = ks & 1
        dm = []
        dcred = min(dcred + DQ, DQ + 1.5)
        while dq and dq[0][3] <= ks and (dcred >= 1 or (s == 2 and dq[0][2] <= c + 1)):
            dm.append(dq.pop(0)); dcred -= 1
        if s == 2: assert not dq or dq[0][2] > c + 1, ("chunk not issued in time", ks)
        if ks == RK - 1: assert not any(x[1] == 'rpk' for x in dq)
        extra = list(side[ks])
        bl = []
        if ks > (FC + fs if role != 'g12' else 40 - 4*NS):
            mcred += (MQS if NT == 4 else MQ) - len(dm)
            bl = b2.take(int(mcred), 'a'); mcred -= len(bl)
        so = []; qrd = []
        if role == 'ssm' and ks < 8:
            so = q_ops(ks)
            if 1 <= ks < 7: qrd = [q_read(ks+1)]
        if role in ('glu', 'gld') and ks < 4*NS: so = s_ops(ks)
        so = [(x, None) for x in so]
        a.wait(lg=[f'r{ks}', 'rp'])
        if role == 'g12' and ks == 40 - 4*NS:
            a(f"v_cmp_gt_u32 vcc, 32, v{vL}\nv_mov_b32 v{vSS+1}, s{sNon}\nv_cndmask_b32 v{vSS}, v{vSa+4}, v{vSa}, vcc")
            a(f"buffer_store_dwordx2 {P(vSS)}, v{vT+1}, {S(rM)}, s{sJ1} offen sc1", tag='spub')
            stamp(a, 3)
        if ks == 4: stamp(a, 19)
        if ks == 13: stamp(a, 14)
        if ks == 26: stamp(a, 15)
        gaps = [[] for _ in range(NG)]
        rd = [(x, f'r{ks+1}') for x in (reads(role, ks+1) if ks < 39 else []) + qrd]
        if s == 3 and ks < 39: gaps[0].append(('BAR', f'c{c+1}'))
        for i, x in enumerate(rd): gaps[(i*(NG-4))//len(rd)].append(x)
        mem = [(x[0], x[1]) for x in dm] + bl
        for lst in (mem, extra):
            for i, x in enumerate(lst): gaps[1 + (i*(NG-1))//len(lst)].append(x)
        load = [sum(x.count('\n') + 1 for x, _ in g) for g in gaps]
        tot = sum(load) + len(so)
        k = 0
        for i in range(NG):
            want = max(0, round(tot*(i+1)/NG) - sum(load[:i+1]) - k) if i < NG-1 else len(so) - k
            gaps[i] += so[k:k+want]; k += min(want, len(so) - k)
        for i in range(NG):
            j, m = i // 2, i % 2
            acc = V(accg(j) + 16*m, 16)
            xf = V(XF + b*20 + j*4); wf = V(WF + b*8 + m*4)
            o = f"{wf}, {xf}" if role != 'ssm' else f"{xf}, {wf}"
            a(f"v_mfma_f32_32x32x16_bf16 {acc}, {o}, {'0' if ks == 0 else acc}")
            if NT == 4 and i in ((2, 5) if SMG == 0 else (6, 7)):
                g = gaps[i]
                g.insert(max(len(g)-2, 0) if SMG == 0 else len(g), (f"v_mfma_f32_16x16x32_bf16 {V(vSa+4*m)}, {V(vSel)}, {wf}, {'0' if ks == 0 else V(vSa+4*m)}", None))
            for (x, tag) in gaps[i]:
                if x == 'BAR':
                    a.wait(vm=tag)
                    a("s_barrier")
                else:
                    emit_item(a, x, tag, role)
        if ks == 35: assert not dq, "DMA address registers are reused"
    if role == 'g12':
        epi_check(a, role)
        a(f"v_cmp_gt_u32 vcc, 32, v{vL}\ns_nop 1\nv_cndmask_b32 v{vSS}, v{vSa+4}, v{vSa}, vcc")
        p1, p2 = glu_prep()
        for x, tag in p1 + p2: emit_item(a, x, tag, role)
    a("s_waitcnt lgkmcnt(0)\ns_barrier")

def flag2_store(a):
    a(f"v_mov_b32 v{vT}, s{sNon}\ns_mov_b64 exec, 1")
    a.wait(vm='hst')
    a(f"buffer_store_dword v{vT}, off, {S(rM)}, s{sFo} sc1\ns_mov_b64 exec, -1", tag='flag')

def epilogue_glu(a, b2, NT=5):
    vO = [180, 184, 188, 192]
    for j in range(NT):
        rc = P(vGS + 2*j); sp = P(vSP[j]); e = j & 1
        for half in range(2):
            ps = range(half*4, half*4+4)
            o = vO[(2*j+half) % 4]
            g = lambda p: P(accg(j)+2*p)
            u = lambda p: P(accu(j)+2*p)
            sg = lambda m, p: P(SGB[4*m + p//2] + 2*(p & 1))
            ex = b2.take(B2E, KE)
            n3 = (len(ex) + 1)//2
            for p in ps: a(f"v_pk_fma_f32 {g(p)}, {sg(0,p)}, {rc}, {g(p)} op_sel_hi:[1,0,1]")
            for p in ps: a(f"v_pk_mul_f32 {g(p)}, {g(p)}, {rc} op_sel:[0,1] op_sel_hi:[1,1]")
            for p in ps: a(f"v_exp_f32 v{accg(j)+2*p}, v{accg(j)+2*p}\nv_exp_f32 v{accg(j)+2*p+1}, v{accg(j)+2*p+1}")
            for t, tag in ex[:n3]: a(t, tag=tag)
            for p in ps: a(f"v_pk_fma_f32 {u(p)}, {sg(1,p)}, {rc}, {u(p)} op_sel_hi:[1,0,1]")
            for p in ps: a(f"v_pk_fma_f32 {g(p)}, {g(p)}, {sp}, {sp} op_sel:[0,{e},{e}] op_sel_hi:[1,{e},{e}]")
            for p in ps: a(f"v_rcp_f32 v{accg(j)+2*p}, v{accg(j)+2*p}\nv_rcp_f32 v{accg(j)+2*p+1}, v{accg(j)+2*p+1}")
            for t, tag in ex[n3:]: a(t, tag=tag)
            for p in ps: a(f"v_pk_mul_f32 {u(p)}, {u(p)}, {g(p)}")
            for p in ps: a(f"v_cvt_pk_bf16_f32 v{o+p-4*half}, v{accu(j)+2*p}, v{accu(j)+2*p+1}")
            a(f"buffer_store_dwordx4 {V(o)}, v{vAd}, {S(rH)}, s{16+j} offen offset:{half*256} sc1", tag='hst')
    stamp(a, 5)
    p2_flagaddr(a)
    b2.emit(a, B2W, KF)
    flag2_store(a)
    stamp(a, 6)

def epilogue_ssm(a, b2):
    lam, cc, l32, l64, l128, l256 = [vLAM + 2*i for i in range(6)]
    vG, vRT, vE, vX = XF+2, XF+12, 128, 212
    TB = 7*5120
    re = lambda i: accg(i // 8) + 2*(i % 8)
    im = lambda i: accu(i // 8) + 2*(i % 8)
    NRT = 8
    for i in range(6): a(f"ds_read_b128 {V(vRT+4*i)}, v{vRA} offset:{16*i}", tag=f't{i}')
    a(f"v_mov_b32 v{vS}, v{vSa}\nv_mov_b32 v{vS+1}, v{vSa+4}")
    a(f"s_lshl_b32 s{sU}, s{sPair}, 13\ns_add_u32 s{sU}, s{sU}, {EOFF}\ns_lshl_b32 s{sT1}, s{sRB}, 9\ns_add_u32 s{sJ1}, s{sT1}, s{sU}")
    gr, gi, ar, ai = vG, vG+2, vG+4, vG+6
    def ufix(i):
        rt = vRT + 4*(i % NRT)
        if i % 2 == 0: a.wait(lg=f't{i+1}')
        a(f"v_pk_mul_f32 {P(re(i))}, {P(re(i))}, {P(rt)}\nv_pk_mul_f32 {P(im(i))}, {P(im(i))}, {P(rt)}")
        a(f"v_pk_fma_f32 {P(re(i))}, {P(rt+2)}, {P(vS)}, {P(re(i))} op_sel_hi:[1,0,1]")
        a(f"v_pk_fma_f32 {P(im(i))}, {P(rt+2)}, {P(vS)}, {P(im(i))} op_sel:[0,1,0] op_sel_hi:[1,1,1]")
        if i + 6 < 32: a(f"ds_read_b128 {V(vRT+4*((i+6)%NRT))}, v{vRA} offset:{16*(i+6)}", tag=f't{i+6}')
    def step(pr, pi, ur, ui, dr, di):
        a(f"v_pk_fma_f32 {P(dr)}, {P(pr)}, {P(lam)}, {P(ur)} op_sel_hi:[1,0,1]")
        a(f"v_pk_fma_f32 {P(di)}, {P(pi)}, {P(lam)}, {P(ui)} op_sel_hi:[1,0,1]")
        a(f"v_pk_fma_f32 {P(dr)}, {P(pi)}, {P(lam)}, {P(dr)} op_sel:[0,1,0] op_sel_hi:[1,1,1] neg_lo:[0,1,0] neg_hi:[0,1,0]")
        a(f"v_pk_fma_f32 {P(di)}, {P(pr)}, {P(lam)}, {P(di)} op_sel:[0,1,0] op_sel_hi:[1,1,1]")
    ufix(0)
    cur = (re(0), im(0))
    done = 0
    for i in range(1, 32):
        ufix(i)
        nxt = (gr, gi) if cur != (gr, gi) else (ar, ai)
        step(cur[0], cur[1], re(i), im(i), nxt[0], nxt[1])
        cur = nxt
        want = min(B2S, (B2S*i)//26)
        b2.emit(a, want - done, 'aL'); done = want
    e0, e1, eh, eo, ef = vX, vX+2, vX+6, vX+8, vX+12
    a(f"v_mov_b32 v{e0}, v{cur[0]}\nv_mov_b32 v{e0+1}, v{cur[1]}\nv_mov_b32 v{e1}, v{cur[0]+1}\nv_mov_b32 v{e1+1}, v{cur[1]+1}")
    cmul_add(a, eh, e0, l32, e1)
    a(f"v_mov_b32 v{eo}, v{eh}\nv_mov_b32 v{eo+1}, v{eh+1}\nv_mov_b32 v{ef+2}, s{sNon}\nv_mov_b32 v{ef+3}, 0")
    a(f"v_permlane32_swap_b32 v{eh}, v{eo}\nv_permlane32_swap_b32 v{eh+1}, v{eo+1}")
    cmul_add(a, ef, eh, l64, eo)
    a(f"s_mov_b32 exec_hi, 0\nbuffer_store_dwordx4 {V(ef)}, v{vA}, {S(rM)}, s{sJ1} offen sc1\ns_mov_b64 exec, -1", tag='epub')
    stamp(a, 3)
    vA6, vK6, vPA = vRT, vRT+8, vX+10
    a(f"v_lshrrev_b32 v{vPA}, 5, v{vL}\nv_sub_u32 v{vPA}, s{sRB}, v{vPA}\nv_mov_b32 v{vPA+1}, {OOB}\nv_and_b32 v{vT}, 0x1f0, v{vA}\nv_mov_b32 v{vT+2}, s{sNon}")
    for m in range(8):
        a(f"v_add_u32 v{vT+1}, {-(1+2*m)}, v{vPA}\nv_cmp_le_i32 vcc, 0, v{vT+1}\nv_lshl_add_u32 v{vT+1}, v{vT+1}, 9, v{vT}")
        a(f"v_cndmask_b32 v{vA6+m}, v{vPA+1}, v{vT+1}, vcc\nv_cndmask_b32 v{vK6+m}, 0, v{vT+2}, vcc")
    polls = "\n".join(f"buffer_load_dwordx4 {V(vE+4*m)}, v{vA6+m}, {S(rM)}, s{sU} offen sc1" for m in range(8))
    for i in range(32):
        t = gr if i & 1 else gi
        if i < B2C: b2.emit(a, 1, 'aL')
        if i == EPO: a(polls, tag='ep')
        a(f"v_pk_mul_f32 {P(t)}, {P(im(i))}, {P(cc)} op_sel:[0,1] op_sel_hi:[1,1]")
        a(f"v_pk_mul_f32 {P(im(i))}, {P(im(i))}, {P(cc)} op_sel_hi:[1,0]")
        a(f"v_pk_fma_f32 {P(im(i))}, {P(re(i))}, {P(cc)}, {P(im(i))} op_sel:[0,1,0] op_sel_hi:[1,1,1]")
        a(f"v_pk_fma_f32 {P(re(i))}, {P(re(i))}, {P(cc)}, {P(t)} op_sel_hi:[1,0,1] neg_lo:[0,0,1] neg_hi:[0,0,1]")
    a("s_barrier")
    vTW, vTR = vX+16, vX+17
    vHA = 216
    a(f"s_add_u32 s{sT0}, s{sReg}, {TB}")
    a(f"v_and_b32 v{vTW}, 31, v{vL}\nv_mul_u32_u24 v{vTW}, 80, v{vTW}\nv_and_b32 v{vTR}, 32, v{vL}\nv_add3_u32 v{vTW}, v{vTW}, v{vTR}, s{sT0}")
    a(f"v_lshrrev_b32 v{vTR}, 4, v{vL}\nv_lshlrev_b32 v{vTR}, 3, v{vTR}\nv_bfe_u32 v{vT}, v{vL}, 2, 2\nv_add_u32 v{vTR}, v{vTR}, v{vT}\nv_mul_u32_u24 v{vTR}, 80, v{vTR}")
    a(f"v_and_b32 v{vT}, 3, v{vL}\nv_lshlrev_b32 v{vT}, 3, v{vT}\nv_add3_u32 v{vTR}, v{vTR}, v{vT}, s{sT0}")
    a(f"v_bfe_u32 v{vT}, v{vL}, 3, 1\nv_and_b32 v{vHA}, 0x370, v{vA}\nv_lshl_add_u32 v{vHA}, v{vT}, 11, v{vHA}")
    a(f"s_mul_i32 s16, s{sRB}, 188\ns_lshl_b32 s{sT0}, s{sPair}, 1\ns_add_u32 s16, s16, s{sT0}\ns_add_u32 s16, s16, 54\ns_lshl_b32 s16, s16, 12")
    a(f"s_add_u32 s17, s16, 4096\ns_add_u32 s18, s16, {94*4096}\ns_add_u32 s19, s16, {95*4096}")
    p2_flagaddr(a)
    a.wait(vm='ep')
    chk = f"v_xor_b32 v{vT}, v{vE+2}, v{vK6}\n" + "".join(f"v_xor_b32 v{vT+1}, v{vE+4*m+2}, v{vK6+m}\nv_or_b32 v{vT}, v{vT}, v{vT+1}\n" for m in range(1, 8)) + f"v_cmp_ne_u32 vcc, 0, v{vT}"
    spin(a, 'e', polls, chk)
    stamp(a, 4)
    cur = vE + 28
    for m in range(6, -1, -1):
        cmul_add(a, vE+4*m, cur, l256, vE+4*m); cur = vE + 4*m
    g0, g1 = ar, ai
    a(f"v_mov_b32 v{g1}, v{cur}\nv_mov_b32 v{g1+1}, v{cur+1}\nv_mov_b32 v{eo}, 0\nv_mov_b32 v{eo+1}, 0\nv_cmp_gt_u32 vcc, 32, v{vL}")
    a(f"v_permlane32_swap_b32 v{cur}, v{g1}\nv_permlane32_swap_b32 v{cur+1}, v{g1+1}")
    cmul_add(a, g0, g1, l128, cur)
    cmul_add(a, eh, g0, l64, eh)
    a(f"v_cndmask_b32 v{g0}, v{eh}, v{g0}, vcc\nv_cndmask_b32 v{g0+1}, v{eh+1}, v{g0+1}, vcc")
    cmul_add(a, e0, g0, l32, e0)
    cmul_add(a, e1, g0, cc, eo)
    cmul_add(a, eh, e0, cc, eo)
    a(f"v_mov_b32 v{gr}, v{e1}\nv_mov_b32 v{gr+1}, v{eh}\nv_mov_b32 v{gi}, v{e1+1}\nv_mov_b32 v{gi+1}, v{eh+1}")
    vPK = 188
    cur = (gr, gi)
    pend = []
    nb = 0
    for i in range(32):
        step(cur[0], cur[1], re(i), im(i), re(i), im(i))
        cur = (re(i), im(i))
        blk = i // 8
        if pend and i % 8 in (2, 3, 4, 5):
            x, tg = pend.pop(0)
            a.wait(lg=tg); a(x, tag='hst')
        if (i*B2P)//32 > nb: b2.emit(a, 1, 'aL'); nb += 1
        if i & 1:
            pk = vPK + (i % 8)//2
            for e in range(2):
                a(f"v_cvt_pk_bf16_f32 v{pk+4*e}, v{re(i-1)+e}, v{re(i)+e}")
                a(f"v_cvt_pk_bf16_f32 v{pk+8+4*e}, -v{im(i-1)+e}, -v{im(i)+e}")
            if i % 8 == 7:
                for comp in range(2):
                    for e in range(2):
                        a(f"ds_write_b128 v{vTW}, {V(vPK+comp*8+e*4)} offset:{comp*32*80 + e*16}", tag='tw')
                for comp in range(2):
                    for hh in range(2):
                        d = 32*blk + 16*comp + 4*hh
                        off = comp*32*80 + hh*32
                        a(f"ds_read_b64_tr_b16 v[{d}:{d+1}], v{vTR} offset:{off}\nds_read_b64_tr_b16 v[{d+2}:{d+3}], v{vTR} offset:{off+4*80}", tag=f'f{blk}{comp}{hh}')
                        pend.append((f"buffer_store_dwordx4 {V(d)}, v{vHA}, {S(rH)}, s{16+2*hh+comp} offen offset:{(blk>>1)*1024+(blk&1)*128} sc1", f'f{blk}{comp}{hh}'))
    for x, tg in pend:
        a.wait(lg=tg); a(x, tag='hst')
    stamp(a, 5)
    b2.emit(a, B2W, KF)
    flag2_store(a)
    stamp(a, 6)
    b2.emit(a, 999, KF)

def after_kernarg(a):
    a("s_waitcnt lgkmcnt(0)")
    if PROBE != -2: a("s_mov_b32 s0, s80\ns_mov_b32 s1, s80")
    srd(a, rX, sX, 2048*1280)

def common_srds(a):
    srd(a, rF, sDbg, 256)
    srd(a, rH, sWs, H_SIZE)
    a(f"s_add_u32 s{rM}, s{sWs}, {MISC}\ns_addc_u32 s{rM+1}, s{sWs+1}, 0\ns_mov_b32 s{rM+2}, {MISC_SIZE}\ns_mov_b32 s{rM+3}, 0x20000")
    if STAMP:
        a(f"s_lshl_b32 s82, s2, 2\ns_add_u32 s82, s82, s{sW}\ns_lshl_b32 s82, s82, 8\ns_add_u32 s82, s82, {STAMPS}")
        a(f"v_accvgpr_write_b32 a250, s98\nv_accvgpr_write_b32 a251, s96")
        a(f"buffer_store_dwordx2 a[250:251], off, {S(rM)}, s82 offset:{18*8}", tag='stamp')
        a(f"s_getreg_b32 s80, hwreg(HW_REG_XCC_ID)\ns_getreg_b32 s81, hwreg(HW_REG_HW_ID)\nv_accvgpr_write_b32 a248, s80\nv_accvgpr_write_b32 a249, s81")
        a(f"buffer_store_dwordx2 a[248:249], off, {S(rM)}, s82 offset:{20*8}", tag='stamp')

def start_loads(a, role, rest):
    q = dma_queue(role)
    n0 = sum(x[2] == 0 for x in q)
    k0 = N0
    while not q[k0][0].startswith('s_add_u32 m0'): k0 -= 1
    for x in q[:k0]: a(x[0], tag=x[1])
    common_srds(a)
    stamp(a, 0)
    a(f"v_bfe_u32 v5, v{vL}, 3, 2\nv_mul_u32_u24 v5, 5120, v5\nv_lshl_add_u32 v5, v3, 7, v5")
    if role == 'gld': a(f"s_lshr_b32 s{sT0}, s{sW}, 1\ns_mul_i32 s{sT0}, s{sT0}, 61440\nv_add_u32 v5, s{sT0}, v5")
    a(f"v_bfe_u32 v6, v{vL}, 1, 3\nv_xor_b32 v6, v6, v7")
    for s in range(4):
        a(f"v_xor_b32 v8, {2*s}, v6\nv_lshl_add_u32 v{vXR+s}, v8, 4, v5")
    for x in q[k0:n0]: a(x[0], tag=x[1])
    stamp(a, 1)
    rest()
    for x in q[n0:n0+N1]: a(x[0], tag=x[1])
    stamp(a, 12)
    a.wait(vm='c0')
    a("s_barrier")
    stamp(a, 7)

def p2_flagaddr(a):
    j, rb, t = vT, vT+1, vT+2
    a(f"s_lshl_b32 s{sT0}, s{sRT}, 1\nv_lshrrev_b32 v{rb}, 5, v{vL}\nv_add_u32 v{rb}, s{sT0}, v{rb}\nv_mul_u32_u24 v{rb}, 205, v{rb}\nv_lshrrev_b32 v{rb}, 10, v{rb}")
    a(f"v_and_b32 v{j}, 15, v{vL}\ns_lshl_b32 s{sT2}, s{sW}, 4\nv_lshl_add_u32 v{rb}, v{rb}, 6, v{j}\nv_add_u32 v{rb}, s{sT2}, v{rb}")
    a(f"s_lshr_b32 s{sT1}, s{sW}, 1\ns_xor_b32 s{sT1}, s{sT1}, 1\ns_lshr_b32 s{sT0}, s{sRT}, 1\ns_lshl_b32 s{sT0}, s{sT0}, 5\ns_add_u32 s{sT1}, s{sT1}, s{sT0}\ns_add_u32 s{sT1}, s{sT1}, 1024")
    a(f"v_lshl_add_u32 v{t}, v{j}, 1, s{sT1}\nv_and_b32 v{j}, 16, v{vL}\nv_cmp_eq_u32 vcc, 0, v{j}\ns_mov_b32 s{sFl}, {FLAG2}\ns_cmp_ge_u32 s{sW}, 2")
    a(f"v_cndmask_b32 v{vFl}, v{t}, v{rb}, vcc\nv_lshlrev_b32 v{vFl}, 5, v{vFl}")
    a(f"s_cselect_b32 s{sT0}, 1, 0\ns_lshr_b32 s10, 0x3fff, s{sT0}\ns_mov_b32 s11, s10\ns_mov_b32 s22, 0x3ff0000\ns_mov_b32 s23, 0")

def base_items():
    tid = 235
    side = {p: [] for p in range(24)}
    I = lambda t: [(x, None) for x in t.split("\n")]
    side[0] += I(f"s_mov_b32 s{rD}, s{sD}\ns_mov_b32 s{rD+1}, s{sD+1}\ns_mov_b32 s{rD+2}, 1280\ns_mov_b32 s{rD+3}, 0x20000\ns_mov_b32 s{rO}, s{sOut}\ns_mov_b32 s{rO+1}, s{sOut+1}\ns_mov_b32 s{rO+2}, {2048*2560}\ns_mov_b32 s{rO+3}, 0x20000")
    side[0] += I(f"s_lshl_b32 s{sT0}, s{sW}, 6\nv_add_u32 v{tid}, s{sT0}, v{vL}\ns_mul_i32 s{sT2}, s{sW}, 21504\ns_lshl_b32 s{sT0}, s{sRT}, 6\ns_mul_i32 s{sT1}, s{sN8}, 20\ns_mov_b32 s{sT3}, {STATS}")
    side[0] += I(f"v_and_b32 v{vLW}, 15, v{vL}\nv_mul_u32_u24 v{vLW}, 336, v{vLW}\nv_and_b32 v{vT}, 48, v{vL}\nv_add3_u32 v{vLW}, v{vLW}, v{vT}, s{sT2}")
    for i in range(5):
        f, r, c = vT, vT+1, vT+2
        g = 244 + 6*(i & 1)
        L = I(f"v_add_u32 v{f}, {256*i}, v{tid}\nv_mul_u32_u24 v{r}, 3277, v{f}\nv_lshrrev_b32 v{r}, 16, v{r}\nv_mul_u32_u24 v{c}, 20, v{r}\nv_sub_u32 v{c}, v{f}, v{c}\n"
              f"v_mul_u32_u24 v{f}, 336, v{r}\nv_lshl_add_u32 v{vLA+i}, v{c}, 4, v{f}\n"
              f"v_add_u32 v{r}, s{sT0}, v{r}\nv_add_u32 v{c}, s{sT1}, v{c}\nv_mul_u32_u24 v{f}, 160, v{r}\nv_add_u32 v{f}, v{f}, v{c}\nv_lshlrev_b32 v{vEA+i}, 4, v{f}\n"
              f"v_lshlrev_b32 v{f}, 3, v{f}\nv_lshlrev_b32 v{c}, 3, v{c}\nv_lshlrev_b32 v{r}, 3, v{r}")
        L += [(f"buffer_load_dwordx2 {P(g)}, v{f}, {S(rX)}, 0 offen", f'e{i}'), (f"buffer_load_dwordx2 {P(g+2)}, v{c}, {S(rD)}, 0 offen", f'e{i}'), (f"buffer_load_dword v{g+4}, v{r}, {S(rM)}, s{sT3} offen sc1", f'e{i}')]
        side[BS0+BSD*i] += L
        o, d, t = vBase + 4*i, vT, vT+4
        C = [('WAITVM', f'e{i}')] + I(f"v_and_b32 v{g+5}, 0xffff0000, v{g+4}\nv_lshlrev_b32 v{g+4}, 16, v{g+4}\nv_rcp_f32 v{g+5}, v{g+5}")
        for k in range(2):
            C += I(f"v_lshlrev_b32 v{o+2*k}, 16, v{g+k}\nv_and_b32 v{o+2*k+1}, 0xffff0000, v{g+k}\nv_lshlrev_b32 v{d+2*k}, 16, v{g+2+k}\nv_and_b32 v{d+2*k+1}, 0xffff0000, v{g+2+k}")
        for k in range(4):
            C += I(f"v_mul_f32 v{d+k}, v{d+k}, v{g+5}\nv_add_f32 v{t}, v{o+k}, v{g+4}\nv_fmac_f32 v{o+k}, v{t}, v{d+k}")

        if BSD == 3: side[BS0+3*i+4] += C[:12]; side[BS0+3*i+5] += C[12:]
        else: side[BS0+2*i+3] += C
    return side

def phase2(a, var):
    a(f"L_p2_{var}:")
    pl = PLAN[var]
    free = list(pl.free)
    reg = {p: d for p, d in pl.dest.items() if d[0] != 'l'}
    poll = POLL
    a(poll, tag='po')
    for p in pl.sh:
        if p not in pl.dest: reg[p] = free.pop(0)
        for x, tag in b2_items(p, pl.dest.get(p) or reg[p]): a(x, tag=tag)
    a(f"v_add_u32 v{vBR}, s{sReg}, v{vA}")
    a.wait(vm='po')
    stamp(a, 16)
    def chk(m): return f"v_cmp_ne_u32 vcc, s{sNon}, v{vPo}\ns_and_b64 vcc, vcc, s[{m}:{m+1}]"
    spin(a, 'g' + var, poll, chk(10))
    stamp(a, 8)
    def aloads(p):
        st = p % NR
        t = f"s_add_u32 s{sJ1}, s{sAo}, {p*4*4096}\n"
        if p == 23: t += f"s_add_u32 s{sJ1}, s{sJ1}, s{sLast}\n"
        L = [f"buffer_load_dwordx4 {V(RING+16*st+4*q)}, v{vA}, {S(rH)}, s{sJ1} offen offset:{q*1024} {LSC}" for q in range(4)]
        L[0] = t + L[0]
        return [(x, f'a{p}') for x in L]
    for p in range(NA0):
        for x, tag in aloads(p): a(x, tag=tag)
    bside = base_items()
    for x, tag in bside[0]: a(x)
    bside[0] = []
    GL = 13
    anext = NA0
    def bfr(p, nt):
        k, d = reg[p]
        return A(d+4*nt) if k == 'a' else V(d+4*nt)
    def stage(p):
        reg[p] = free.pop(0)
        return [('WAITVM', f'b{p}')] + [(f"ds_read_b128 {bfr(p, q)}, v{vBR} offset:{pl.dest[p][1]*5120+q*1024}", f'l{p}') for q in range(5)]
    if 0 not in reg:
        for x, tag in stage(0)[1:]: a(x, tag=tag)
    def mf(p, mt, nt):
        acc = V((mt*5+nt)*4)
        a(f"v_mfma_f32_16x16x32_bf16 {acc}, {bfr(p, nt)}, {V(RING+16*(p%NR)+4*mt)}, {'0' if p == 0 else acc}")
    late = list(pl.late); lcur = []; lcred = 0.0; issued_at = {}
    pbar = max(pl.ll) if pl.ll else 1
    assert pbar < 24 - NPL
    for p in range(24 - NPL):
        fill = []
        if p > 0: free.append(reg[p-1])
        if p + 1 not in reg and p + 1 in pl.dest: fill += stage(p+1)
        if p == SCK - 2: fill += [(poll, 'po')]
        if p == SCK: fill += [('SSMCHK', None)]
        na = 0
        while anext <= min(p + NR - 1, 23) and (anext < GL or p >= SCK) and na < 2:
            fill += aloads(anext); anext += 1; na += 1
        if p >= pl.lp0:
            lcred += pl.lr
            while lcred >= 1 and (lcur or (late and free)):
                if not lcur:
                    q = late.pop(0); reg[q] = free.pop(0); lcur = b2_items(q, reg[q])
                x = lcur.pop(0); fill.append(x); lcred -= 1
                assert int(x[1][1:]) >= p + 2, ("late B2 step issued too late", var, x[1], p)
            lcred = min(lcred, pl.lr)
        if p == max(pbar, PBAR): fill += [('s_barrier', None)]
        a.wait(vm=[f'a{p}', f'b{p}'], lg=f'l{p}')
        if p in (0, 4, 8, 16): stamp(a, {0: 21, 4: 22, 8: 23, 16: 24}[p])
        slots = [[] for _ in range(20)]
        for lst in (fill, bside[p]):
            for i, x in enumerate(lst): slots[(i*20)//len(lst)].append(x)
        for n in range(20):
            mf(p, n // 5, n % 5)
            for x, tag in slots[n]:
                if x == 'SSMCHK':
                    a.wait(vm='po'); spin(a, 's' + var, poll, chk(22))
                    stamp(a, 17)
                elif x == 'WAITVM': a.wait(vm=tag)
                else: a(x, tag=tag)
    assert not late and not lcur
    assert NPL <= NR - 1 and anext == 24 and not any(bside[p] for p in range(24-NPL, 24))
    wr = lambda mt, nt: a(f"ds_write_b128 v{vLW}, {V((mt*5+nt)*4)} offset:{mt*16*336 + nt*64}", tag='w')
    for mt in range(4):
        n = 0
        for p in range(24 - NPL, 24):
            if mt == 0: a.wait(vm=[f'a{p}', f'b{p}'])
            for nt in range(5):
                mf(p, mt, nt)
                if mt > 0 and n % NPL == NPL - 1: wr(mt-1, n // NPL)
                n += 1
    stamp(a, 9)
    for nt in range(5): wr(3, nt)
    a("s_waitcnt lgkmcnt(0)\ns_barrier")
    for i in range(5):
        for w in range(4):
            a(f"ds_read_b128 {V(RING+16*i+4*w)}, v{vLA+i} offset:{w*21504}", tag=f'q{i}')
    for i in range(5):
        a.wait(lg=f'q{i}')
        for w in range(4):
            for h in range(2):
                o = vBase + 4*i + 2*h
                a(f"v_pk_add_f32 {P(o)}, {P(o)}, {P(RING+16*i+4*w+2*h)}")
        a(f"buffer_store_dwordx4 {V(vBase+4*i)}, v{vEA+i}, {S(rO)}, 0 offen {OST}")
    stamp(a, 10)
    if PROBE != -2:
        a("s_sub_u32 s1, s1, s0\ns_lshl_b32 s1, s1, 2")
        if PWG >= 0: a(f"s_cmp_eq_u32 s2, {PWG}\ns_cselect_b32 s1, s1, 0")
        a(f"s_add_u32 s1, s1, 6000\nL_probe{var}:\ns_sleep 1\ns_memrealtime s[80:81]\ns_waitcnt lgkmcnt(0)\ns_sub_u32 s80, s80, s0\ns_cmp_lt_u32 s80, s1\ns_cbranch_scc1 L_probe{var}")
    if STAMP:
        a("s_waitcnt vmcnt(0)"); stamp(a, 11)
    a("s_endpgm")

def kernel():
    a = Asm()
    a(f"s_cmp_ge_u32 s2, 256\ns_cbranch_scc1 L_end")
    if PROBE != -2: a("s_memrealtime s[80:81]\ns_memtime s[82:83]")
    if STAMP: a("s_memtime s[98:99]\ns_memrealtime s[96:97]")
    a(f"s_load_dwordx16 s[8:23], s[0:1], 0\ns_load_dwordx16 s[24:39], s[0:1], 64")
    a(f"s_getpc_b64 s[{rP}:{rP+1}]\nL_pf:\ns_mov_b32 s{rP+2}, L_end-L_pf\ns_mov_b32 s{rP+3}, 0x20000")
    a(f"s_lshr_b32 s{sT1}, s2, 3\ns_mul_i32 s{sT0}, s{sT1}, {PFL*128}\nv_lshlrev_b32 v1, 7, v0\nv_cmp_gt_u32 vcc, {PFL}, v0\nv_mov_b32 v2, {OOB}\nv_add_u32 v1, s{sT0}, v1\nv_cndmask_b32 v1, v2, v1, vcc")
    a(f"buffer_load_dword a{aDUM}, v1, {S(rP)}, 0 offen", tag='pf')
    a(f"v_and_b32 v{vL}, 63, v0\nv_lshrrev_b32 v1, 6, v0\nv_lshlrev_b32 v{vA}, 4, v{vL}\nv_readfirstlane_b32 s{sW}, v1")
    a(f"v_lshrrev_b32 v7, 5, v{vL}\nv_lshrrev_b32 v2, 3, v{vL}\nv_and_b32 v3, 7, v{vL}\ns_mov_b32 s{sSpin}, 0\ns_mul_i32 s{sXm}, s{sW}, 5120")
    a(f"s_lshl_b32 s{sT0}, s{sW}, 2\nv_lshrrev_b32 v4, 1, v2\nv_add_u32 v4, s{sT0}, v4\nv_and_b32 v4, 7, v4\nv_xor_b32 v4, v4, v3\nv_lshlrev_b32 v4, 4, v4")
    a(f"s_and_b32 s{sT0}, s2, 3\ns_bfe_u32 s{sT2}, s2, 0x10002")
    st0 = a.state()
    a(f"s_cmp_ge_u32 s{sT1}, 10\ns_cbranch_scc1 L_glup")
    a("s_memrealtime s[98:99]" if not STAMP else "s_mov_b32 s97, 0")
    a(f"s_mul_i32 s{sT0}, s{sT0}, 10\ns_add_u32 s{sT0}, s{sT0}, s{sT1}\ns_lshr_b32 s{sG}, s{sT0}, 3\ns_and_b32 s{sRB}, s{sT0}, 7\ns_lshl_b32 s{sT2}, s{sT2}, 3\ns_add_u32 s{sRB}, s{sRB}, s{sT2}")
    a(f"s_lshl_b32 s{sPair}, s{sG}, 2\ns_add_u32 s{sPair}, s{sPair}, s{sW}\ns_lshl_b32 s{sT1}, s{sRB}, 7\ns_lshl_b32 s{sT0}, s{sW}, 1\ns_add_u32 s{sT1}, s{sT1}, s{sT0}")
    a(f"v_and_b32 v9, 1, v2\nv_lshl_add_u32 v8, v7, 1, v9\nv_bfe_u32 v10, v2, 1, 1\nv_lshl_add_u32 v8, v8, 5, v10\nv_add_u32 v8, s{sT1}, v8\nv_mul_u32_u24 v8, 1280, v8\nv_add_u32 v{vXD}, v8, v4")
    for j in range(1, 4):
        a(f"v_add_u32 v{vXD+j}, {j*(8*1280-1024)}, v{vXD}")
    a(f"s_lshl_b32 s{sKind}, s{sPair}, 5\nv_add_u32 v8, s{sKind}, v2\nv_mul_u32_u24 v8, 1280, v8\nv_lshrrev_b32 v9, 1, v2\nv_xor_b32 v9, v9, v3")
    a(f"v_lshl_add_u32 v{vWD}, v9, 4, v8\nv_xor_b32 v{vWD+1}, 64, v{vWD}\nv_add_u32 v{vWD+1}, {8*1280-1024}, v{vWD+1}")
    a(f"v_add_u32 v{vWD+2}, {2*(8*1280-1024)}, v{vWD}\nv_add_u32 v{vWD+3}, {2*(8*1280-1024)}, v{vWD+1}")
    a(f"s_mul_i32 s{sWm}, s{sW}, 24576\ns_add_u32 s{sWm}, s{sWm}, {WB}\ns_lshl_b32 s{sRx}, s{sG}, 8")
    after_kernarg(a)
    srd(a, rA, sBre, 640*1280)
    srd(a, rB, sBim, 640*1280)
    def rest_ssm():
        a(f"s_or_b32 s{sT0}, s2, s{sW}\ns_cselect_b32 s{sT0}, 0x1000, 0\ns_or_b32 s{sT2}, s{96 if STAMP else 98}, 1\nv_mov_b32 v12, s{sT2}\nv_mov_b32 v13, s{sT0}\ns_mov_b64 exec, 1")
        a(f"buffer_store_dword v12, v13, {S(rF)}, 0 offen sc1\ns_mov_b64 exec, -1")
        a(f"v_and_b32 v12, 31, v{vL}\nv_add_u32 v13, s{sKind}, v12\nv_lshlrev_b32 v13, 1, v13")
        for i, p in enumerate((sLre, sLim, sLdt)):
            a(f"global_load_ushort v{vLAM+i}, v13, s[{p}:{p+1}]", tag='lam')
        a(f"v_lshl_add_u32 v9, v12, 7, s{sWm}\ns_lshl_b32 s{sT0}, s{sW}, 10")
        for s in range(4):
            a(f"v_xor_b32 v10, {2*s}, v6\nv_lshl_add_u32 v{vWR+s}, v10, 4, v9\nv_add_u32 v{vQR+s}, s{sT0}, v{vXR+s}")
        a(f"s_lshl_b32 s{sFo}, s{sRB}, 5\ns_add_u32 s{sFo}, s{sFo}, s{sPair}\ns_lshl_b32 s{sFo}, s{sFo}, 5\ns_add_u32 s{sFo}, s{sFo}, {FLAG2+0x8000}")
        a(f"s_mul_i32 s{sU}, s{sRB}, 20\ns_add_u32 s{sU}, s{sU}, s{sPair}")
        repack_setup(a, 'ssm')
    start_loads(a, 'ssm', rest_ssm)
    sts = a.state()
    a("s_branch L_ssm")
    a.set_state(st0)
    a("L_glup:")
    t, b, t7, t6 = sT0, sT2, sT1, sT3
    a(f"""s_mul_i32 s{t}, s{t}, 22
s_add_u32 s{t}, s{t}, s{sT1}
s_sub_u32 s{t}, s{t}, 10
s_mul_i32 s{t7}, s{b}, 42
s_sub_u32 s{t7}, s{t}, s{t7}
s_mul_i32 s{t6}, s{b}, 49
s_add_u32 s{t6}, s{t6}, s{t}
s_sub_u32 s{t6}, s{t6}, 49
s_mul_i32 s{sG}, s{t7}, 9363
s_lshr_b32 s{sG}, s{sG}, 16
s_mul_i32 s{sRB}, s{sG}, 7
s_sub_u32 s{sRB}, s{t7}, s{sRB}
s_sub_u32 s{sRB}, s{sRB}, s{b}
s_mul_i32 s{sKind}, s{b}, 7
s_add_u32 s{sG}, s{sG}, s{sKind}
s_mul_i32 s{sPair}, s{t6}, 10923
s_lshr_b32 s{sPair}, s{sPair}, 16
s_mul_i32 s{sDo}, s{sPair}, 6
s_sub_u32 s{sDo}, s{t6}, s{sDo}
s_add_u32 s{sPair}, s{sPair}, 7
s_sub_u32 s{sPair}, s{sPair}, s{sKind}
s_cmp_lt_u32 s{t7}, 49
s_cselect_b32 s{sG}, s{sG}, s{sPair}
s_cselect_b32 s{sRB}, s{sRB}, s{sDo}
s_add_u32 s{sRB}, s{sRB}, s{sKind}
s_lshl_b32 s{sKind}, s{b}, 2
s_add_u32 s{sKind}, s{sKind}, s{t}
s_sub_u32 s{sKind}, s{sKind}, 85
s_lshl_b32 s{sDo}, s{sKind}, 1
s_cmp_eq_u32 s{sG}, 13
s_cselect_b32 s{sRB}, s{sDo}, s{sRB}
s_cselect_b32 s{sKind}, s{sKind}, 6""")
    a(f"s_mul_i32 s{sT1}, s{sRB}, 160\ns_lshl_b32 s{sT0}, s{sW}, 3\ns_add_u32 s{sT1}, s{sT1}, s{sT0}\nv_add_u32 v8, s{sT1}, v2\nv_mul_u32_u24 v8, 1280, v8\nv_add_u32 v{vXD}, v8, v4")
    for j in range(1, 5):
        a(f"v_add_u32 v{vXD+j}, {j*32*1280 - (j*1024 if j < 4 else 0)}, v{vXD}")
    a(f"v_bfe_u32 v8, v{vL}, 2, 3\nv_mul_u32_u24 v8, 3456, v8\nv_lshl_add_u32 v8, v7, 6, v8\nv_and_b32 v10, 0x30, v{vA}")
    a(f"s_lshr_b32 s{sT0}, s{sW}, 1\ns_and_b32 s{sT2}, s{sW}, 1\ns_lshl_b32 s{sT3}, s{sT2}, 13")
    def wsrd():
        for j in range(1, 4):
            a(f"v_add_u32 v{vWD+j}, {j*(8*3456-1024)}, v{vWD}")
        after_kernarg(a)
        a(f"s_bitcmp1_b32 s{sW}, 0\ns_cselect_b32 s{rA}, s{sWu}, s{sWg}\ns_cselect_b32 s{rA+1}, s{sWu+1}, s{sWg+1}\ns_mov_b32 s{rA+2}, {640*3456}\ns_mov_b32 s{rA+3}, 0x20000")
    def wread(sb):
        a(f"s_and_b32 s{sT2}, s{sW}, 1\ns_lshl_b32 s{sT2}, s{sT2}, 9\ns_add_u32 s{sT2}, s{sT2}, {sb}")
        a(f"v_bfe_u32 v8, v{vL}, 2, 2\nv_lshlrev_b32 v8, 6, v8\nv_lshl_add_u32 v8, v7, 10, v8\nv_and_b32 v10, 1, v{vL}\nv_lshl_add_u32 v8, v10, 5, v8")
        a(f"v_bfe_u32 v10, v{vL}, 4, 1\nv_lshl_add_u32 v8, v10, 4, v8\nv_bfe_u32 v10, v{vL}, 1, 1\nv_lshl_add_u32 v8, v10, 3, v8\nv_add_u32 v{vWR}, s{sT2}, v8")
    def flagoff(sw):
        a(f"s_lshl_b32 s{sFo}, s{sRB}, 2\ns_add_u32 s{sFo}, s{sFo}, s{sw}\ns_lshl_b32 s{sFo}, s{sFo}, 4\ns_add_u32 s{sFo}, s{sFo}, s{sG}\ns_lshl_b32 s{sFo}, s{sFo}, 5\ns_add_u32 s{sFo}, s{sFo}, {FLAG2}")
    st1 = a.state()
    a(f"s_cmp_lt_u32 s{sKind}, 6\ns_cbranch_scc1 L_gldp")
    a(f"s_lshl_b32 s{sT1}, s{sG}, 1\ns_add_u32 s{sT1}, s{sT1}, s{sT0}\ns_lshl_b32 s{sKind}, s{sT1}, 7\ns_cmp_ge_u32 s{sT1}, 27\ns_cselect_b32 s{sKind}, {OOB}, s{sKind}\nv_add3_u32 v{vWD}, v8, v10, s{sKind}")
    a(f"s_mul_i32 s{sKind}, s{sT0}, 49152\ns_add_u32 s{sKind}, s{sKind}, {WB}\ns_add_u32 s{sWm}, s{sT3}, s{sKind}")
    wsrd()
    a(f"s_cmp_eq_u32 s{sRB}, 12\ns_cselect_b32 s{sRx}, {NS*128}, 0\ns_cselect_b32 s{sRw}, {NS*64*3456}, 0")
    def rest_glu():
        a(f"s_lshl_b32 s{sPair}, s{sG}, 2\ns_add_u32 s{sPair}, s{sPair}, s{sW}")
        wread(f"s{sKind}")
        flagoff(sW)
        a(f"s_cmp_eq_u32 s{sRB}, 12\ns_cbranch_scc1 L_rp12")
        a(f"s_mul_i32 s{sU}, s{sRB}, 52\ns_add_u32 s{sU}, s{sU}, s{sPair}")
        repack_setup(a, 'glu')
        a("L_rpdone:")
    start_loads(a, 'glu', rest_glu)
    stg = a.state()
    a(f"s_cmp_eq_u32 s{sRB}, 12\ns_cbranch_scc1 L_g12\ns_branch L_glu")
    a("L_rp12:")
    a(f"s_add_u32 s{sU}, s{sPair}, 320")
    repack_setup(a, 'g12')
    a("s_branch L_rpdone")
    a.set_state(st1)
    a("L_gldp:")
    a(f"s_mul_i32 s{sT1}, s{sT0}, {32*3456}\ns_add_u32 s{sT1}, s{sT1}, {26*128}\nv_add3_u32 v{vWD}, v8, v10, s{sT1}")
    a(f"s_lshl_b32 s{sT1}, s{sT0}, 12\ns_add_u32 s{sWm}, s{sT3}, s{sT1}\ns_add_u32 s{sWm}, s{sWm}, {WBD}\ns_add_u32 s{sRB}, s{sRB}, s{sT0}\ns_add_u32 s{sPair}, s{sT2}, 52")
    wsrd()
    def rest_gld():
        wread(f"{WBD}")
        a(f"s_and_b32 s{sT0}, s{sW}, 1")
        flagoff(sT0)
        a(f"s_lshl_b32 s{sU}, s{sKind}, 2\ns_add_u32 s{sU}, s{sU}, s{sW}\ns_add_u32 s{sU}, s{sU}, 376")
        repack_setup(a, 'gld')
    start_loads(a, 'gld', rest_gld)
    tmp = Asm(); tmp.set_state(stg); bt = B2Q('g'); n = len(SLOW); mainloop(tmp, 'glu', bt); del SLOW[n:]
    b2 = B2Q('g')
    mainloop(a, 'gld', b2)
    left = lambda q: 5*len(q.todo) + len(q.cur)
    assert left(b2) >= left(bt)
    b2.emit(a, left(b2) - left(bt), 'a')
    assert b2.todo == bt.todo and b2.cur == bt.cur
    a("s_nop 7\ns_branch L_gluepi")
    a.set_state(sts)
    a("L_ssm:")
    b2 = B2Q('s')
    mainloop(a, 'ssm', b2)
    stamp(a, 2)
    epilogue_ssm(a, b2)
    a.set_state(([], [], False))
    phase2(a, 's')
    a.set_state(stg)
    a("L_g12:")
    b2 = B2Q('g')
    mainloop(a, 'g12', b2)
    stamp(a, 2)
    epilogue_glu(a, b2, 4)
    b2.emit(a, 999, KF)
    a("s_branch L_p2_g")
    a.set_state(stg)
    a("L_glu:")
    b2 = B2Q('g')
    mainloop(a, 'glu', b2)
    a("L_gluepi:")
    stamp(a, 2)
    epilogue_glu(a, b2)
    b2.emit(a, 999, KF)
    a.set_state(([], [], False))
    phase2(a, 'g')
    for t in SLOW: a(t)
    a("L_end:")
    return a

def wrap(name, a):
    body = a.text()
    if ALIGN:
        from align import align
        body, npro, nnop = align(body)
        print("align: promoted", npro, "nops", nnop)
    return f"""
.text
.globl {name}
.p2align 8
.type {name},@function
{name}:
{body}    s_endpgm
.section .rodata,"a"
.p2align 6
.amdhsa_kernel {name}
  .amdhsa_next_free_vgpr 512
  .amdhsa_next_free_sgpr 102
  .amdhsa_accum_offset 256
  .amdhsa_group_segment_fixed_size 0
  .amdhsa_kernarg_size 128
  .amdhsa_user_sgpr_count 2
  .amdhsa_user_sgpr_kernarg_segment_ptr 1
  .amdhsa_system_sgpr_workgroup_id_x 1
.end_amdhsa_kernel
"""

if __name__ == "__main__":
    out = [x for x in sys.argv[1:] if not x.startswith('--')][0]
    hdr = open('cdna_kernels/' + NAME + '.s.ref').read().split('; Override launch')[0]
    s = hdr
    if '--list' in sys.argv:
        s += f"; @launch kernel={NAME}_kernel grid=(256,1,1) block=(256,1,1) lds={LDS}\n"
    else:
        s += f"; @launch grid=(256,1,1) block=(256,1,1) lds={LDS}\n"
    s += '.amdgcn_target "amdgcn-amd-amdhsa--gfx950"\n'
    k = kernel()
    s += wrap(NAME + "_kernel", k)
    open(out, 'w').write(s)
    print("pads", k.npad, "instrs", len(k.ins))
```

```python
import sys, math, struct
from emit import Asm

NAME = "parallel_sum__ssm_conv_s5__glu_gated_glu__prompt"
def opt(name, default):
    for x in sys.argv:
        if x.startswith(f'--{name}='):
            return type(default)(x.split('=', 1)[1])
    return default
STAMP = '--stamp' in sys.argv
N0 = opt('n0', 9)
N1 = opt('n1', 8)
DX = opt('dx', 0.4)
FB = opt('fb', 9)
FL = opt('fl', 14)
FC = opt('fc', 16)
FS = opt('fs', 2)
MQ = opt('mq', 4.4)
MQS = opt('mqs', 3.8)
RK = opt('rk', 4)
RS = opt('rs', 2.0)
SCK = opt('sck', 9)
B2S = opt('b2s', 14)
B2C = opt('b2c', 10)
B2P = opt('b2p', 0)
B2E = opt('b2e', 2)
B2W = opt('b2w', 4)
PBS = opt('pbs', 19)
PBG = opt('pbg', 22)
PBT = opt('pbt', 22)
EPO = opt('epo', 20)
GA = opt('ga', 12)
CLB = opt('clb', 1)
MAP2 = opt('map2', 1)
NPL = opt('npl', 3)
EPL = opt('epl', 36)
NS = opt('ns', 2)
QL = opt('ql', 14)
SMG = opt('smg', 1)
NOBASE = opt('nobase', 0)
NRING = opt('nr', 5)
PG = opt('pg', '10-21/2-9/0-1/21/12/2')
PS = opt('ps', '0-11/12-16//17/6/2.5')
NA0 = opt('na0', 4)
PBAR = opt('pbar', 1)
BG = opt('bg', 1)
RPOS = opt('rpos', 1)
CPF = opt('cpf', '13,29')
HALF0 = opt('half0', 1)
DEND = opt('dend', 0)
BS0 = opt('bs0', 1)
BSD = opt('bsd', 3)
EARLY = opt('early', 0)
PROBE = opt('probe', -2)
PWG = opt('pwg', -1)
PCYC = opt('pcyc', 0)
OST = opt('ost', 'nt')
PFL = opt('pfl', 22)
ALIGN = opt('align', 1)
SLP = opt('slp', 2)
LSC = 'sc1'
LOG2E = 1.4426950408889634
def f2u(x): return "0x%08x" % struct.unpack('<I', struct.pack('<f', x))[0]

H_SIZE = 32*94*4096
MISC = 0x1000000
STATS = 0x400000
FLAG1 = 0x410000
FLAG2 = 0x420000
SUMS = 0x440000
PART = 0x3b0000
EOFF = 0x460000
STAMPS = 0x490000
MISC_SIZE = 0x500000
OOB = 0x8000000
SPINMAX = 100000
WB, WBD, SPARE, LDS = 61440, 122880, 159744, 163840
N8S = 94*5120

sX, sLre, sLim, sBre, sBim, sCre, sCim, sLdt, sD, sWg, sWu, sWd, sOut, sDbg, sWs = 8,10,12,14,16,18,20,22,24,28,30,32,34,36,38
rX, rA, rB, rH, rM, rF, rP, rR = 40, 44, 48, 52, 56, 60, 84, 88
(sW, sRB, sG, sFo, sDo, sAo, sBo, sXm, sWm, sT0, sT1, sT2, sT3, sKind, sPair, sSpin) = range(64, 80)
sNon = 83
sRT, sN8, sReg, sLast = 4, 5, 6, 7
sU, sJ0, sJ1 = 27, 100, 101
sRx, sRw = 3, 26
sRs, sRd = 92, 93
def srd(a, r, base, size):
    a(f"s_mov_b32 s{r}, s{base}\ns_mov_b32 s{r+1}, s{base+1}\ns_mov_b32 s{r+2}, {size}\ns_mov_b32 s{r+3}, 0x20000")
def S(r, n=4): return f"s[{r}:{r+n-1}]"
def V(r, n=4): return f"v[{r}:{r+n-1}]"
def A(r, n=4): return f"a[{r}:{r+n-1}]"
def P(r): return f"v[{r}:{r+1}]"

def stamp(a, idx):
    if PROBE == idx and not PCYC: a("s_memrealtime s[80:81]\ns_waitcnt lgkmcnt(0)\ns_mov_b32 s1, s80")
    if PROBE == idx and PCYC: a("s_memtime s[80:81]\ns_waitcnt lgkmcnt(0)\ns_sub_u32 s1, s80, s82\ns_lshr_b32 s1, s1, 4\ns_add_u32 s1, s1, s0")
    if not STAMP: return
    a(f"s_memtime s[80:81]\ns_memrealtime s[0:1]\ns_waitcnt lgkmcnt(0)\nv_accvgpr_write_b32 a252, s80\nv_accvgpr_write_b32 a253, s0")
    a(f"buffer_store_dwordx2 a[252:253], off, {S(rM)}, s82 offset:{idx*8}", tag='stamp')

def bf16_round(a, d, s):
    a(f"v_cvt_pk_bf16_f32 v{d}, v{s}, v{s}\nv_lshlrev_b32 v{d}, 16, v{d}")

XF, WF, vXR, vWR, vXD, vWD, vL, vS, vA, vT, vLAM = 160, 200, 216, 220, 224, 229, 233, 234, 238, 239, 244
vSel, vSa, vQR, vQF, vQ = 128, 132, 140, 144, 152
vRp = 247
def accg(j): return 32*j
def accu(j): return 32*j + 16
aDUM = 255
def ntile(role): return 4 if role in ('g12', 'ssm') else 5

def grp(m0, off, loads):
    return [f"s_add_u32 m0, {m0}\n{off}\n" + loads[0]] + loads[1:]
def koff(role, c, unit, extra, sdyn, first):
    if role == 'ssm':
        if first and c > 0: return f"s_add_u32 s{sRx}, s{sRx}, 128\ns_cmp_eq_u32 s{sRx}, 1280\ns_cselect_b32 s{sRx}, 0, s{sRx}\ns_mov_b32 s{sDo}, s{sRx}"
        return f"s_mov_b32 s{sDo}, s{sRx}"
    if role == 'glu' and c < 2: return f"s_add_u32 s{sDo}, s{sdyn}, {c*unit + extra}"
    if role == 'g12': c = (c + NS) % 10
    return f"s_mov_b32 s{sDo}, {c*unit + extra}"
def dma_x(role, c, half=0):
    base = (c % 3)*20480 + half*61440
    off = koff(role, c, 128, half*160*1280, sRx, True)
    x = grp(f"s{sXm}, {base}", off, [f"buffer_load_dwordx4 v{vXD+j}, {S(rX)}, s{sDo} offen offset:{j*1024} lds" for j in range(4)])
    if ntile(role) == 5:
        x = grp(f"s{sXm}, {base+4096}", off, [f"buffer_load_dwordx4 v{vXD+4}, {S(rX)}, s{sDo} offen lds"]) + x
    return x
def dma_w(role, c):
    ld = lambda r: [f"buffer_load_dwordx4 v{vWD+j}, {S(r)}, s{sDo} offen offset:{j*1024} lds" for j in range(4)]
    o = lambda e: koff(role, c, 64*3456, e, sRw, False)
    if role == 'gld': return grp(f"s{sWm}, {(c & 1)*16384}", o(0), ld(rA))
    if role == 'ssm': return grp(f"s{sWm}, {(c % 3)*8192}", o(0), ld(rA)) + grp(f"s{sWm}, {(c % 3)*8192+4096}", o(0), ld(rB))
    return grp(f"s{sWm}, {(c % 3)*16384}", o(0), ld(rA)) + grp(f"s{sWm}, {(c % 3)*16384+4096}", o(32*3456), ld(rA))
def dma_queue(role):
    q = []
    for c in range(10):
        r = 'glu' if (role == 'g12' and c < 2) else role
        e2, e1 = max(4*(c-2)-1, 0), (4*(c-1)-1 if c >= 2 else 0)
        stg = RK + 1 if (c == 2 and ntile(role) == 5) else e2
        x0 = dma_x(r, c)
        x0 = [(t, e2) for t in x0[:-4]] + [(t, stg) for t in x0[-4:]]
        if role == 'gld': L = [(t, e2) for t in dma_x(r, c, 1)] + [(t, e1) for t in dma_w(r, c)] + x0
        elif c == 2 and ntile(role) == 5: L = [(t, e2) for t in dma_w(r, c)] + x0
        else: L = x0 + [(t, e2) for t in dma_w(r, c)]
        q += [(t, f'c{c}', c, e) for t, e in L]
    return q

def n1_of(role):
    q = dma_queue(role); n0 = sum(x[2] == 0 for x in q)
    k = N1
    while RPOS == 0 and not q[n0+k][0].startswith('s_add_u32 m0'): k -= 1
    return k

def reads(role, ks):
    c, s = ks // 4, ks % 4
    slot, b = c % 3, ks & 1
    L = []
    for m in range(2):
        d = WF + b*8 + m*4
        if role == 'ssm':
            L.append(f"ds_read_b128 {V(d)}, v{vWR+s} offset:{slot*8192 + m*4096}")
        else:
            off = (c & 1 if role == 'gld' else slot)*16384 + m*8192 + s*2048
            L.append(f"ds_read_b64_tr_b16 v[{d}:{d+1}], v{vWR} offset:{off}")
            L.append(f"ds_read_b64_tr_b16 v[{d+2}:{d+3}], v{vWR} offset:{off+256}")
    for j in range(ntile(role)):
        L.append(f"ds_read_b128 {V(XF + b*20 + j*4)}, v{vXR+s} offset:{slot*20480 + j*1024}")
    return L

vSt = 236
def s_ops(ks):
    b = ks & 1
    L = []
    for i in range(4):
        for m in range(2):
            w = WF + b*8 + m*4 + i
            if ks == 0 and i == 0:
                L += [f"v_lshlrev_b32 v{vS+m}, 16, v{w}", f"v_and_b32 v{vSt+1}, 0xffff0000, v{w}", f"v_add_f32 v{vS+m}, v{vS+m}, v{vSt+1}"]
            else:
                L += [f"v_lshlrev_b32 v{vSt}, 16, v{w}", f"v_and_b32 v{vSt+1}, 0xffff0000, v{w}",
                      f"v_add_f32 v{vS+m}, v{vS+m}, v{vSt}", f"v_add_f32 v{vS+m}, v{vS+m}, v{vSt+1}"]
    return L
def q_read(k): return f"ds_read_b128 {V(vQF + 4*(k & 1))}, v{vQR + k % 4} offset:{((k//4) % 3)*20480}"
def q_ops(k):
    L = []
    t = vQ + 2
    for i in range(4):
        w = vQF + 4*(k & 1) + i
        L += [f"v_lshlrev_b32 v{t}, 16, v{w}", f"v_and_b32 v{t+1}, 0xffff0000, v{w}", f"v_add_f32 v{vQ}, v{vQ}, v{t}", f"v_fmac_f32 v{vQ+1}, v{t}, v{t}",
              f"v_add_f32 v{vQ}, v{vQ}, v{t+1}", f"v_fmac_f32 v{vQ+1}, v{t+1}, v{t+1}"]
    return L
vRA, vQT, vQS = 158, 156, 157
def q_addr():
    t = vT
    L = [f"v_bfe_u32 v{t}, v{vL}, 3, 2", f"v_bfe_u32 v{t+1}, v{vL}, 1, 1", f"v_lshl_add_u32 v{t}, v{t}, 1, v{t+1}", f"s_lshl_b32 s{sT0}, s{sW}, 3\nv_add_u32 v{t}, s{sT0}, v{t}",
         f"v_bfe_u32 v{t+1}, v{vL}, 2, 1", f"v_and_b32 v{t+2}, 1, v{vL}",
         f"v_lshl_add_u32 v{vQT}, v{t+1}, 5, v{t}", f"v_lshlrev_b32 v{vQT}, 4, v{vQT}", f"v_lshl_add_u32 v{vQT}, v{t+2}, 2, v{vQT}", f"v_add_u32 v{vQT}, {SPARE}, v{vQT}",
         f"v_lshl_add_u32 v{vQS}, v{t+1}, 1, v{t+2}", f"v_lshl_add_u32 v{vQS}, v{vQS}, 5, v{t}", f"v_lshlrev_b32 v{vQS}, 3, v{vQS}",
         f"v_and_b32 v{vRA}, 32, v{vL}", f"v_lshlrev_b32 v{vRA}, 4, v{vRA}", f"v_add_u32 v{vRA}, {SPARE}, v{vRA}",
         f"s_mul_i32 s{sT0}, s{sRB}, 52\ns_lshr_b32 s{sT0}, s{sT0}, 8\ns_mul_i32 s{sT0}, s{sT0}, 5\ns_sub_u32 s{sT0}, s{sRB}, s{sT0}\ns_lshl_b32 s{sU}, s{sRB}, 10\ns_add_u32 s{sU}, s{sU}, {STATS}\n"
         f"s_cmp_eq_u32 s{sT0}, s{sG}\ns_cselect_b32 s{sU}, s{sU}, {OOB}"]
    return [(x, None) for x in L]
def q_final():
    m, q, o = vQ, vQ+1, vQ+2
    L = [f"v_add_f32 v{m}, v{vQR}, v{vQR+2}", f"v_add_f32 v{q}, v{vQR+4}, v{vQR+6}", f"v_add_f32 v{m}, v{m}, v{vQR+8}", f"v_add_f32 v{m}, v{m}, v{q}", f"v_mul_f32 v{m}, {f2u(1.0/640)}, v{m}", f"v_mov_b32 v{q}, v{m}", f"v_mov_b32 v{o+1}, s{sNon}",
         f"v_permlane32_swap_b32 v{m}, v{q}", f"v_fma_f32 v{q}, -v{m}, v{m}, v{q}", f"v_max_f32 v{q}, 0, v{q}",
         f"v_cvt_pk_bf16_f32 v{q}, v{q}, v{q}", f"v_lshlrev_b32 v{q}, 16, v{q}", f"v_add_f32 v{q}, {f2u(1e-5)}, v{q}",
         f"v_cvt_pk_bf16_f32 v{q}, v{q}, v{q}", f"v_lshlrev_b32 v{q}, 16, v{q}", f"v_sqrt_f32 v{q}, v{q}", f"v_cvt_pk_bf16_f32 v{o}, -v{m}, v{q}"]
    L = [(x, None) for x in L]
    L += [(f"s_mov_b32 exec_hi, 0\nbuffer_store_dwordx2 {P(o)}, v{vQS}, {S(rM)}, s{sU} offen sc1\ns_mov_b64 exec, -1", 'qpub')]
    L += [(x, None) for x in (f"v_and_b32 v{q}, 0xffff0000, v{o}", f"v_lshlrev_b32 v{m}, 16, v{o}", f"v_rcp_f32 v{q}, v{q}", f"v_mul_f32 v{m}, v{m}, v{q}")]
    L += [(f"ds_write2_b32 v{vQT}, v{q}, v{m} offset0:0 offset1:2", 'sw')]
    return L

def q_part():
    return [(f"v_lshrrev_b32 v159, 1, v{vA}", None), (f"v_permlane32_swap_b32 v{vQ}, v{vQ+1}", None),
            (f"s_lshl_b32 s{sJ1}, s{sRB}, 2\ns_add_u32 s{sJ1}, s{sJ1}, s{sW}\ns_mul_i32 s{sJ1}, s{sJ1}, 2560\ns_add_u32 s{sJ1}, s{sJ1}, {PART}", None),
            (f"v_add_f32 v{vQ}, v{vQ}, v{vQ+1}", None), (f"v_mov_b32 v{vQ+1}, s{sNon}", None),
            (f"s_lshl_b32 s{sT0}, s{sG}, 9\ns_add_u32 s{sT0}, s{sT0}, s{sJ1}\nbuffer_store_dwordx2 {P(vQ)}, v159, {S(rM)}, s{sT0} offen sc1", 'qp')]
Q_LOAD = "\n".join(f"buffer_load_dwordx2 {P(vQR+2*g)}, v159, {S(rM)}, s{sJ1} offen offset:{512*g} sc1" for g in range(5))
def q_check(a):
    a.wait(vm='ql')
    spin(a, 'q', Q_LOAD, f"v_xor_b32 v{vQ}, s{sNon}, v{vQR+1}\n" + "".join(f"v_xor_b32 v{vQ+1}, s{sNon}, v{vQR+2*g+1}\nv_or_b32 v{vQ}, v{vQ}, v{vQ+1}\n" for g in range(1, 5)) + f"v_cmp_ne_u32 vcc, 0, v{vQ}")

def lam_setup():
    lr, li, dt, zr, zi, t = vLAM+10, vLAM+11, vT, vT+1, vT+2, vT+3
    u0 = dt
    L = [f"v_lshlrev_b32 v{lr}, 16, v{vLAM}", f"v_lshlrev_b32 v{li}, 16, v{vLAM+1}", f"v_lshlrev_b32 v{dt}, 16, v{vLAM+2}",
         f"v_mul_f32 v{dt}, {f2u(LOG2E)}, v{dt}", f"v_exp_f32 v{dt}, v{dt}", f"v_cvt_pk_bf16_f32 v{dt}, v{dt}, v{dt}", f"v_lshlrev_b32 v{dt}, 16, v{dt}",
         f"v_mul_f32 v{zr}, v{dt}, v{lr}", f"v_mul_f32 v{zi}, v{dt}, v{li}", f"v_mul_f32 v{zr}, {f2u(LOG2E)}, v{zr}", f"v_mul_f32 v{zi}, 0.15915494, v{zi}"]
    def pw(d, n):
        return [f"v_mul_f32 v{t}, {f2u(float(n))}, v{zr}", f"v_mul_f32 v{u0}, {f2u(float(n))}, v{zi}", f"v_exp_f32 v{t}, v{t}", f"v_fract_f32 v{u0}, v{u0}",
                f"v_cos_f32 v{d}, v{u0}", f"v_sin_f32 v{d+1}, v{u0}", f"v_mul_f32 v{d}, v{d}, v{t}", f"v_mul_f32 v{d+1}, v{d+1}, v{t}"]
    L += pw(vLAM, 1)
    c = vLAM + 2
    L += [f"v_mul_f32 v{t}, v{lr}, v{lr}", f"v_fmac_f32 v{t}, v{li}, v{li}", f"v_rcp_f32 v{t}, v{t}", f"v_add_f32 v{u0}, -1.0, v{vLAM}",
          f"v_mul_f32 v{c}, v{u0}, v{lr}", f"v_fmac_f32 v{c}, v{vLAM+1}, v{li}", f"v_mul_f32 v{c+1}, v{vLAM+1}, v{lr}", f"v_fma_f32 v{c+1}, -v{u0}, v{li}, v{c+1}",
          f"v_add_f32 v{t}, v{t}, v{t}", f"v_mul_f32 v{c}, v{c}, v{t}", f"v_mul_f32 v{c+1}, v{c+1}, v{t}"]
    for idx, n in ((4, 32), (6, 64), (8, 128), (10, 256)): L += pw(vLAM+idx, n)
    return [('WAITVM', 'lam')] + [(x, None) for x in L]

def cmul_add(a, d, x, l, add):
    a(f"v_pk_fma_f32 {P(d)}, {P(x)}, {P(l)}, {P(add)} op_sel:[0,0,0] op_sel_hi:[1,0,1]")
    a(f"v_pk_fma_f32 {P(d)}, {P(x)}, {P(l)}, {P(d)} op_sel:[1,1,0] op_sel_hi:[0,1,1] neg_lo:[1,0,0]")

def div10(d, r, src):
    return f"s_mul_i32 s{d}, s{src}, 6554\ns_lshr_b32 s{d}, s{d}, 16\ns_mul_i32 s{r}, s{d}, 10\ns_sub_u32 s{r}, s{src}, s{r}"

def stage_m0(role, i):
    if ntile(role) == 5: return f"s{sXm}, {2*20480 + i*1024}"
    return f"s{sXm}, {i*20480 + 4096}" if i < 3 else f"s{sReg}, 0"
def repack_setup(a, role):
    a(div10(sJ0, sJ1, sU))
    a(f"v_mul_u32_u24 v14, 1280, v2\ns_lshl_b32 s{sT3}, s{sJ1}, 7\ns_lshl_b32 s{sReg}, s{sW}, 10\ns_add_u32 s{sReg}, s{sReg}, {SPARE}")
    if role == 'glu':
        srd(a, rR, sWd, 1728*1280)
        rd, dst, t = vRp+1, vRp+2, 15
        a(f"v_lshl_add_u32 v{vRp}, v3, 4, v14\ns_mul_i32 s{sRs}, s{sJ0}, {32*1280}\ns_add_u32 s{sRs}, s{sRs}, s{sT3}")
        a(f"v_bfe_u32 v{rd}, v{vL}, 2, 2\nv_lshlrev_b32 v{rd}, 7, v{rd}\nv_lshrrev_b32 v{t}, 4, v{vL}\nv_lshl_add_u32 v{rd}, v{t}, 5, v{rd}")
        a(f"v_and_b32 v16, 3, v{vL}\nv_lshlrev_b32 v16, 3, v16\nv_add3_u32 v{rd}, v{rd}, v16, s{sXm}")
        a(f"s_lshl_b32 s{sT0}, s{sJ1}, 2\nv_add_u32 v{t}, s{sT0}, v{t}")
        a(f"v_mul_u32_u24 v{dst}, 13, v{t}\nv_lshrrev_b32 v{dst}, 6, v{dst}\nv_mul_u32_u24 v{dst}, {N8S-5120}, v{dst}\nv_lshl_add_u32 v{dst}, v{t}, 10, v{dst}")
        a(f"v_and_b32 v{t}, 0xf0, v{vA}\nv_add_u32 v{dst}, v{dst}, v{t}")
        a(f"s_mul_i32 s{sRd}, s{sJ0}, 5120\ns_cmp_ge_u32 s{sJ0}, 54\ns_cselect_b32 s{sRd}, {OOB}, s{sRd}")
    else:
        a(f"s_cmp_ge_u32 s{sJ0}, 20\ns_cselect_b32 s{rR}, s{sCim}, s{sCre}\ns_cselect_b32 s{rR+1}, s{sCim+1}, s{sCre+1}\ns_cselect_b32 s{sT2}, 20, 0\ns_cselect_b32 s{sT1}, 5120, 0")
        a(f"s_mov_b32 s{rR+2}, {640*1280}\ns_mov_b32 s{rR+3}, 0x20000\ns_sub_u32 s{sJ0}, s{sJ0}, s{sT2}\ns_mul_i32 s{sRs}, s{sJ0}, {32*1280}\ns_add_u32 s{sRs}, s{sRs}, s{sT3}")
        a(f"v_lshrrev_b32 v15, 1, v2\nv_xor_b32 v15, v15, v3\nv_lshl_add_u32 v{vRp}, v15, 4, v14\nv_xor_b32 v{vRp+1}, 64, v{vRp}")
        a(f"v_bfe_u32 v14, v{vL}, 1, 3\nv_lshrrev_b32 v15, 4, v{vL}\nv_xor_b32 v14, v14, v15\nv_lshlrev_b32 v14, 4, v14\nv_lshl_add_u32 v14, v3, 7, v14\nv_bfe_u32 v15, v{vL}, 3, 1")
        if ntile(role) == 5:
            a(f"v_lshl_add_u32 v14, v15, 10, v14\ns_add_u32 s{sT0}, s{sXm}, {2*20480}\nv_add_u32 v{vRp+2}, s{sT0}, v14\nv_add_u32 v{vRp+4}, 2048, v{vRp+2}")
        else:
            a(f"v_mul_u32_u24 v16, 20480, v15\ns_add_u32 s{sT0}, s{sXm}, 4096\nv_add3_u32 v{vRp+2}, v14, v16, s{sT0}")
            a(f"s_add_u32 s{sT0}, s{sT0}, 40960\ns_sub_u32 s{sT2}, s{sReg}, s{sT0}\nv_mul_u32_u24 v16, s{sT2}, v15\nv_add3_u32 v{vRp+4}, v14, v16, s{sT0}")
        a(f"v_xor_b32 v{vRp+3}, 64, v{vRp+2}\nv_xor_b32 v{vRp+5}, 64, v{vRp+4}")
        a(f"s_mul_i32 s{sT0}, s{sJ1}, {4*5120}\ns_add_u32 s{sT1}, s{sT1}, s{sT0}\ns_add_u32 s{sT1}, s{sT1}, {54*5120}")
        for u in range(2):
            a(f"s_lshl_b32 s{sT0}, s{sJ0}, 1\ns_add_u32 s{sT0}, s{sT0}, {u}\ns_mul_i32 s{sT2}, s{sT0}, 13\ns_lshr_b32 s{sT2}, s{sT2}, 6\ns_mul_i32 s{sT2}, s{sT2}, {N8S-5120}")
            a(f"s_lshl_b32 s{sT0}, s{sT0}, 10\ns_add_u32 s{sT2}, s{sT2}, s{sT0}\ns_add_u32 s{sRd+2*u}, s{sT2}, s{sT1}\ns_add_u32 s{sRd+2*u+1}, s{sRd+2*u}, 10240")
def repack_dma(role):
    return [f"s_add_u32 m0, {stage_m0(role, i)}\ns_add_u32 s{sDo}, s{sRs}, {i*8*1280}\nbuffer_load_dwordx4 v{vRp + (0 if role == 'glu' else i & 1)}, {S(rR)}, s{sDo} offen lds" for i in range(4)]
def repack_fin(role):
    if role == 'glu':
        rd = [f"ds_read_b64_tr_b16 {A(2*i,2)}, v{vRp+1} offset:{2*20480+512*i}" for i in range(8)]
        st = [f"buffer_store_dwordx4 {A(4*i)}, v{vRp+2}, {S(rM)}, s{sRd} offen offset:{256*i} sc1" for i in range(4)]
    else:
        rd = [f"ds_read_b128 {A(4*i)}, v{vRp+2+i}" for i in range(4)]
        st = [f"buffer_store_dwordx4 {A(4*i)}, v{vA}, {S(rM)}, s{sRd+i} offen sc1" for i in range(4)]
    return [('WAITVM', 'rpk')] + [(x, 'rp') for x in rd], [(x, 'early') for x in st]

NR, RING = 5, 80
vBase, vEA, vLA, vLW, vFl, vPo, vBR = 200, 220, 225, 230, 231, 232, 234
rO, rD = rA, rB
sFl = 28
POLL = f"buffer_load_dword v{vPo}, v{vFl}, {S(rM)}, s{sFl} offen sc1"
VB2 = 160
def rng(t):
    out = []
    for x in t.split(','):
        if not x: continue
        a, _, b = x.partition('-')
        out += list(range(int(a), int(b or a) + 1))
    return out
class Plan:
    def __init__(self, text):
        f = text.split('/')
        self.ag, self.ll, self.vv, self.sh = map(rng, f[:4])
        self.lp0, self.lr = int(f[4]), float(f[5])
        assert len(self.ag) <= 12 and len(self.ll) <= 8 and len(self.vv) <= 2
        self.dest = {}
        for i, p in enumerate(self.ag): self.dest[p] = ('a', 20*i)
        for i, p in enumerate(self.ll): self.dest[p] = ('l', i)
        for i, p in enumerate(self.vv): self.dest[p] = ('v', VB2 + 20*i)
        self.free = [('a', 20*i) for i in range(len(self.ag), 12)] + [('v', VB2 + 20*i) for i in range(len(self.vv), 2)]
        self.late = [p for p in range(24) if p not in self.dest and p not in self.sh]
PLAN = {'g': Plan(PG), 's': Plan(PS)}
def b2_items(p, dest):
    k, d = dest
    pre = f"s_add_u32 s{sJ0}, s{sBo}, {p*4*5120}"
    if p == 23: pre += f"\ns_add_u32 s{sJ0}, s{sJ0}, s{sLast}"
    L = []
    for q in range(5):
        t = ""
        if q == 0: t = pre + "\n"
        if q == 4: t = f"s_add_u32 s{sJ0}, s{sJ0}, 4096\n"
        off = f" offset:{q*1024}" if 0 < q < 4 else ""
        if k == 'l':
            if q in (0, 4): t = f"s_add_u32 m0, s{sReg}, {d*5120 + q*1024}\n" + t
            t += f"buffer_load_dwordx4 v{vA}, {S(rM)}, s{sJ0} offen{off} {LSC} lds"
        else:
            r = A(d+4*q) if k == 'a' else V(d+4*q)
            t += f"buffer_load_dwordx4 {r}, v{vA}, {S(rM)}, s{sJ0} offen{off} {LSC}"
        L.append((t, f'b{p}'))
    return L
class B2Q:
    def __init__(self, var):
        self.pl = PLAN[var]
        self.todo = [p for p in self.pl.ag + self.pl.ll + self.pl.vv if p not in self.pl.sh]; self.cur = []
    def take(self, n, kinds):
        out = []
        while n > 0:
            if not self.cur:
                ok = lambda d: d[0] in kinds or (d[0] == 'l' and 'L' in kinds and d[1] < 7)
                c = [p for p in self.todo if ok(self.pl.dest[p])]
                if kinds != 'a': c.sort()
                if not c: break
                self.todo.remove(c[0]); self.cur = b2_items(c[0], self.pl.dest[c[0]])
            out.append(self.cur.pop(0)); n -= 1
        return out
    def emit(self, a, n, kinds):
        for t, tag in self.take(n, kinds): a(t, tag=tag)
KE, KF = 'al', 'alv'

def p2_scalars():
    if MAP2 == 0:
        t = f"s_and_b32 s{sT0}, s2, 7\ns_lshl_b32 s{sT0}, s{sT0}, 2\ns_lshr_b32 s{sT1}, s2, 6\ns_add_u32 s{sRT}, s{sT0}, s{sT1}\ns_bfe_u32 s{sN8}, s2, 0x30003"
    else:
        t = f"s_and_b32 s{sT0}, s2, 6\ns_lshl_b32 s{sT0}, s{sT0}, 2\ns_lshr_b32 s{sT1}, s2, 5\ns_add_u32 s{sRT}, s{sT0}, s{sT1}\ns_and_b32 s{sT0}, s2, 1\ns_lshl_b32 s{sT0}, s{sT0}, 2\ns_bfe_u32 s{sN8}, s2, 0x20003\ns_add_u32 s{sN8}, s{sN8}, s{sT0}"
    return [(t, None),
            (f"s_mul_i32 s{sReg}, s{sW}, 40960\ns_mul_i32 s{sAo}, s{sRT}, 94\ns_add_u32 s{sAo}, s{sAo}, s{sW}\ns_lshl_b32 s{sAo}, s{sAo}, 12", None),
            (f"s_mul_i32 s{sBo}, s{sN8}, 94\ns_add_u32 s{sBo}, s{sBo}, s{sW}\ns_mul_i32 s{sBo}, s{sBo}, 5120\ns_cmp_ge_u32 s{sW}, 2\ns_cselect_b32 s{sLast}, {OOB}, 0", None)]

SLOW = []
def spin(a, name, load, check):
    a(f"L_chk_{name}:\n{check}\ns_cbranch_vccnz L_slow_{name}\nL_go_{name}:")
    SLOW.append(f"L_slow_{name}:\ns_add_u32 s{sSpin}, s{sSpin}, 1\ns_cmp_gt_u32 s{sSpin}, {SPINMAX}\ns_cbranch_scc1 L_go_{name}\ns_sleep {SLP}\n{load}\ns_waitcnt vmcnt(0)\ns_branch L_chk_{name}")

NONCE_LOAD = f"buffer_load_dword v{vT+4}, off, {S(rF)}, 0 sc1"
def nonce_check(a, role):
    a.wait(vm='non')
    spin(a, 'non_' + role, NONCE_LOAD, f"v_cmp_eq_u32 vcc, 0, v{vT+4}")
    a(f"v_readfirstlane_b32 s{sNon}, v{vT+4}")
def flag1_store():
    return [(f"s_lshl_b32 s{sT0}, s2, 4\ns_add_u32 s{sT0}, s{sT0}, {FLAG1}\ns_cmp_eq_u32 s{sW}, 0\ns_cselect_b32 s{sT0}, s{sT0}, {OOB}\nv_mov_b32 v{vT+2}, s{sNon}\ns_mov_b64 exec, 1\n"
             f"buffer_store_dword v{vT+2}, off, {S(rM)}, s{sT0} sc1\ns_mov_b64 exec, -1", 'flag')]
F1_LOAD = f"s_lshl_b32 s{sT0}, s{sW}, 10\ns_add_u32 s{sT0}, s{sT0}, {FLAG1}\nbuffer_load_dword v{vT+4}, v{vA}, {S(rM)}, s{sT0} offen sc1"
def flag1_check(a, role):
    a.wait(vm='f1')
    spin(a, 'f1_' + role, F1_LOAD, f"v_cmp_ne_u32 vcc, s{sNon}, v{vT+4}")

vGS, vSS = 244, 254
SGB = [160, 164, 168, 172, 176, 200, 204, 224]
vSP = [228, 228, 230, 230, 234]
def epi_load_text(role):
    t = "\n".join(f"buffer_load_dwordx2 {P(vGS+2*j)}, v{vT}, {S(rM)}, s{sU} offen offset:{j*256} sc1" for j in range(ntile(role)))
    if role != 'g12': t += f"\nbuffer_load_dwordx2 {P(vSS)}, v{vT+1}, {S(rM)}, s{sJ1} offen sc1"
    return t
def epi_addr():
    return [(f"s_mul_i32 s{sU}, s{sRB}, {160*8}\ns_add_u32 s{sU}, s{sU}, {STATS}", None),
            (f"v_lshrrev_b32 v{vT+1}, 1, v{vA}", None), (f"v_and_b32 v{vT}, 0xf8, v{vT+1}", None), (f"s_lshl_b32 s{sJ1}, s{sPair}, 9\ns_add_u32 s{sJ1}, s{sJ1}, {SUMS}", None)]
def epi_check(a, role):
    a.wait(vm='epi')
    n = 4 if role == 'g12' else 6
    chk = f"v_xor_b32 v{vT+2}, s{sNon}, v{vGS+1}\n" + "".join(f"v_xor_b32 v{vT+3}, s{sNon}, v{vGS+2*j+1}\nv_or_b32 v{vT+2}, v{vT+2}, v{vT+3}\n" for j in range(1, n)) + f"v_cmp_ne_u32 vcc, 0, v{vT+2}"
    spin(a, 'epi_' + role, epi_load_text(role), chk)
vAd = 232
def glu_prep():
    L = [(f"s_lshl_b32 s{sT0}, s{sW}, 10\ns_add_u32 s{sT0}, s{sT0}, {SPARE}\nv_lshrrev_b32 v{vT}, 2, v{vA}\nv_add_u32 v{vT}, s{sT0}, v{vT}\nv_lshrrev_b32 v{vT+1}, 5, v{vL}\nv_lshl_add_u32 v{vT+2}, v{vT+1}, 4, s{sT0}", None),
         (f"ds_write_b32 v{vT}, v{vSS}", 'sw')]
    for j in range(5):
        g, sp = vGS + 2*j, vSP[j] + (j & 1)
        L += [(f"v_and_b32 v{sp}, 0xffff0000, v{g}", None), (f"v_lshlrev_b32 v{g}, 16, v{g}", None), (f"v_rcp_f32 v{g+1}, v{sp}", None)]
    L += [(f"v_and_b32 v{vT+3}, 0xf0, v{vA}", None), (f"v_lshl_add_u32 v{vT+3}, v{vT+1}, 9, v{vT+3}", None), (f"v_bfe_u32 v{vT+4}, v{vL}, 4, 1", None), (f"v_lshl_add_u32 v{vAd}, v{vT+4}, 10, v{vT+3}", None)]
    L += [(f"v_mul_f32 v{vGS+2*j+1}, {f2u(-LOG2E)}, v{vGS+2*j+1}", None) for j in range(5)]
    L += [(f"s_lshl_b32 s{sT2}, s{sPair}, 12\ns_cmp_ge_u32 s{sPair}, 54\ns_cselect_b32 s21, {OOB}, s{sT2}", None)]
    for j in range(5):
        L += [(f"s_mul_i32 s{sT0}, s{sRB}, 5\ns_add_u32 s{sT0}, s{sT0}, {j}\ns_lshr_b32 s{sT1}, s{sT0}, 1\ns_mul_i32 s{sT1}, s{sT1}, {94*4096-4096}\ns_lshl_b32 s{sT0}, s{sT0}, 11\ns_add_u32 s{sT1}, s{sT1}, s{sT0}\ns_add_u32 s{16+j}, s{sT1}, s21", None)]
    R = [('WAITLG', 'sw')] + [(f"ds_read_b128 {V(SGB[4*m+q])}, v{vT+2} offset:{m*128+q*32}", 'sr') for m in range(2) for q in range(4)]
    return L, R
def emit_item(a, x, tag, role):
    if x == 'WAITVM': a.wait(vm=tag)
    elif x == 'WAITLG': a.wait(lg=tag)
    elif x == 'NONCE': nonce_check(a, role)
    elif x == 'F1': flag1_check(a, role)
    elif x == 'EPI': epi_check(a, role)
    elif x == 'QCHK': q_check(a)
    else: a(x, tag=tag)

def code_pf():
    return [(f"s_lshr_b32 s{sT0}, s2, 3\ns_mul_i32 s{sT0}, s{sT0}, {PFL*128}\ns_cmp_eq_u32 s{sW}, 0\ns_cselect_b32 s{sT0}, s{sT0}, {OOB}\nv_lshl_add_u32 v{vT+3}, v{vL}, 7, s{sT0}\n"
             f"s_mov_b32 exec_lo, {(1 << PFL) - 1}\ns_mov_b32 exec_hi, 0\nbuffer_load_dword a{aDUM}, v{vT+3}, {S(rP)}, 0 offen\ns_mov_b64 exec, -1", 'pf')]

def mainloop(a, role, b2):
    NT = ntile(role)
    NG = 2*NT
    dq = dma_queue(role)
    nper = sum(x[2] == 5 for x in dq)
    n0 = sum(x[2] == 0 for x in dq)
    DQ = nper/4 + DX
    dq = dq[n0+n1_of(role):]
    for r in reads(role, 0): a(r, tag='r0')
    side = {k: [] for k in range(40)}
    i1 = sum(x[2] == 1 for x in dq) if RPOS else 0
    dq = dq[:i1] + [(t, 'rpk', 1 + RPOS, 0) for t in repack_dma(role)] + dq[i1:]
    f1, f2 = repack_fin(role)
    side[RK] += f1
    for i, x in enumerate(f2): side[RK+1+int(i/RS)] += [x]
    side[max(min(FB, 9)-4, 0)] += [(NONCE_LOAD, 'non')]
    side[min(FB, 9)-1] += [('NONCE', None)]
    side[FB] += [('WAITVM', 'early'), ('s_barrier', None)] + flag1_store()
    for i, x in enumerate(p2_scalars()): side[FB+1+i] += [x]
    fs = FS if role == 'ssm' else 0
    for k in rng(CPF):
        side[34 if (role == 'ssm' and k >= 19) else k] += code_pf()
    if role != 'g12':
        side[FL+fs] += [(F1_LOAD, 'f1')]
        side[FC+fs] += [('F1', None), ('s_barrier', None)]
    else:
        side[FL+4] += [(F1_LOAD, 'f1')]
        side[FC+4] += [('F1', None), ('s_barrier', None)]
        side[38-4*NS] += epi_addr()
        side[EPL] += [(x, 'epi') for x in epi_load_text(role).split("\n")]
    if role in ('glu', 'gld'):
        side[EPL] += epi_addr() + [(x, 'epi') for x in epi_load_text(role).split("\n")]
        side[4*NS] += [(f"v_permlane32_swap_b32 v{vS}, v{vS+1}", None), (f"v_add_f32 v{vSt}, v{vS}, v{vS+1}", None)]
        p1, p2 = glu_prep()
        side[37] += p1[-6:]; side[38] += [('EPI', None), (f"v_add_f32 v{vSS}, v{vSS}, v{vSt}", None)] + p1[:11]; side[39] += p2 + p1[11:-6]
    if role == 'ssm':
        for i, x in enumerate(lam_setup()): side[max(FC+fs+2, 20)+i//5] += [x]
        side[8] += q_part()
        qa = q_addr()
        k = max(FB, 8) + 1; side[k] += qa[:9]; side[k+1] += qa[9:]; assert k + 1 < QL + 4
        side[QL] += [(x, 'ql') for x in Q_LOAD.split("\n")]
        side[QL+3] += [('QCHK', None)]
        side[QL+4] += q_final()
        a(q_read(0), tag='r0'); a(q_read(1), tag='r0')
        a(f"v_mov_b32 v{vQ}, 0\nv_mov_b32 v{vQ+1}, 0")
    if NT == 4:
        a(f"v_lshrrev_b32 v{vSel}, 2, v{vL}\nv_lshrrev_b32 v{vSel+1}, 4, v{vL}\nv_xor_b32 v{vSel}, v{vSel}, v{vSel+1}\nv_and_b32 v{vSel}, 1, v{vSel}\nv_add_u32 v{vSel}, -1, v{vSel}\nv_and_b32 v{vSel}, 0x3f803f80, v{vSel}")
        a(f"v_mov_b32 v{vSel+1}, v{vSel}\nv_mov_b32 v{vSel+2}, v{vSel}\nv_mov_b32 v{vSel+3}, v{vSel}")
    dcred = 1.5; mcred = 0.0
    for ks in range(40):
        c, s = ks // 4, ks % 4
        b = ks & 1
        dm = []
        dcred = min(dcred + DQ, DQ + 1.5)
        while dq and dq[0][3] <= ks and (dcred >= 1 or (s == 2 and dq[0][2] <= c + 1)):
            dm.append(dq.pop(0)); dcred -= 1
        if s == 2: assert not dq or dq[0][2] > c + 1, ("chunk not issued in time", ks)
        if ks == RK - 1: assert not any(x[1] == 'rpk' for x in dq)
        extra = list(side[ks])
        bl = []
        if ks > (FC + fs if role != 'g12' else 40 - 4*NS):
            mcred += (MQS if NT == 4 else MQ) - len(dm)
            bl = b2.take(int(mcred), 'a'); mcred -= len(bl)
        so = []; qrd = []
        if role == 'ssm' and ks < 8:
            so = q_ops(ks)
            if 1 <= ks < 7: qrd = [q_read(ks+1)]
        if role in ('glu', 'gld') and ks < 4*NS: so = s_ops(ks)
        so = [(x, None) for x in so]
        a.wait(lg=[f'r{ks}', 'rp'])
        if role == 'g12' and ks == 40 - 4*NS:
            a(f"v_cmp_gt_u32 vcc, 32, v{vL}\nv_mov_b32 v{vSS+1}, s{sNon}\nv_cndmask_b32 v{vSS}, v{vSa+4}, v{vSa}, vcc")
            a(f"buffer_store_dwordx2 {P(vSS)}, v{vT+1}, {S(rM)}, s{sJ1} offen sc1", tag='spub')
            stamp(a, 3)
        if ks == 4: stamp(a, 19)
        if ks == 13: stamp(a, 14)
        if ks == 26: stamp(a, 15)
        gaps = [[] for _ in range(NG)]
        rd = [(x, f'r{ks+1}') for x in (reads(role, ks+1) if ks < 39 else []) + qrd]
        if s == 3 and ks < 39: gaps[0].append(('BAR', f'c{c+1}'))
        for i, x in enumerate(rd): gaps[(i*(NG-4))//len(rd)].append(x)
        mem = [(x[0], x[1]) for x in dm] + bl
        for lst in (mem, extra):
            for i, x in enumerate(lst): gaps[1 + (i*(NG-1))//len(lst)].append(x)
        load = [sum(x.count('\n') + 1 for x, _ in g) for g in gaps]
        tot = sum(load) + len(so)
        k = 0
        for i in range(NG):
            want = max(0, round(tot*(i+1)/NG) - sum(load[:i+1]) - k) if i < NG-1 else len(so) - k
            gaps[i] += so[k:k+want]; k += min(want, len(so) - k)
        for i in range(NG):
            j, m = i // 2, i % 2
            acc = V(accg(j) + 16*m, 16)
            xf = V(XF + b*20 + j*4); wf = V(WF + b*8 + m*4)
            o = f"{wf}, {xf}" if role != 'ssm' else f"{xf}, {wf}"
            a(f"v_mfma_f32_32x32x16_bf16 {acc}, {o}, {'0' if ks == 0 else acc}")
            if NT == 4 and i in ((2, 5) if SMG == 0 else (6, 7)):
                g = gaps[i]
                g.insert(max(len(g)-2, 0) if SMG == 0 else len(g), (f"v_mfma_f32_16x16x32_bf16 {V(vSa+4*m)}, {V(vSel)}, {wf}, {'0' if ks == 0 else V(vSa+4*m)}", None))
            for (x, tag) in gaps[i]:
                if x == 'BAR':
                    a.wait(vm=tag)
                    a("s_barrier")
                else:
                    emit_item(a, x, tag, role)
        if ks == 35: assert not dq, "DMA address registers are reused"
    if role == 'g12':
        epi_check(a, role)
        a(f"v_cmp_gt_u32 vcc, 32, v{vL}\ns_nop 1\nv_cndmask_b32 v{vSS}, v{vSa+4}, v{vSa}, vcc")
        p1, p2 = glu_prep()
        for x, tag in p1 + p2: emit_item(a, x, tag, role)
    a("s_waitcnt lgkmcnt(0)\ns_barrier")

def flag2_store(a):
    a(f"v_mov_b32 v{vT}, s{sNon}\ns_mov_b64 exec, 1")
    a.wait(vm='hst')
    a(f"buffer_store_dword v{vT}, off, {S(rM)}, s{sFo} sc1\ns_mov_b64 exec, -1", tag='flag')

def epilogue_glu(a, b2, NT=5):
    vO = [180, 184, 188, 192]
    for j in range(NT):
        rc = P(vGS + 2*j); sp = P(vSP[j]); e = j & 1
        for half in range(2):
            ps = range(half*4, half*4+4)
            o = vO[(2*j+half) % 4]
            g = lambda p: P(accg(j)+2*p)
            u = lambda p: P(accu(j)+2*p)
            sg = lambda m, p: P(SGB[4*m + p//2] + 2*(p & 1))
            ex = b2.take(B2E, KE)
            n3 = (len(ex) + 1)//2
            for p in ps: a(f"v_pk_fma_f32 {g(p)}, {sg(0,p)}, {rc}, {g(p)} op_sel_hi:[1,0,1]")
            for p in ps: a(f"v_pk_mul_f32 {g(p)}, {g(p)}, {rc} op_sel:[0,1] op_sel_hi:[1,1]")
            for p in ps: a(f"v_exp_f32 v{accg(j)+2*p}, v{accg(j)+2*p}\nv_exp_f32 v{accg(j)+2*p+1}, v{accg(j)+2*p+1}")
            for t, tag in ex[:n3]: a(t, tag=tag)
            for p in ps: a(f"v_pk_fma_f32 {u(p)}, {sg(1,p)}, {rc}, {u(p)} op_sel_hi:[1,0,1]")
            for p in ps: a(f"v_pk_fma_f32 {g(p)}, {g(p)}, {sp}, {sp} op_sel:[0,{e},{e}] op_sel_hi:[1,{e},{e}]")
            for p in ps: a(f"v_rcp_f32 v{accg(j)+2*p}, v{accg(j)+2*p}\nv_rcp_f32 v{accg(j)+2*p+1}, v{accg(j)+2*p+1}")
            for t, tag in ex[n3:]: a(t, tag=tag)
            for p in ps: a(f"v_pk_mul_f32 {u(p)}, {u(p)}, {g(p)}")
            for p in ps: a(f"v_cvt_pk_bf16_f32 v{o+p-4*half}, v{accu(j)+2*p}, v{accu(j)+2*p+1}")
            a(f"buffer_store_dwordx4 {V(o)}, v{vAd}, {S(rH)}, s{16+j} offen offset:{half*256} sc1", tag='hst')
    stamp(a, 5)
    p2_flagaddr(a)
    if BG == 1: base_gap_loads(a)
    b2.emit(a, B2W, KF)
    flag2_store(a)
    if BG == 2: base_gap_loads(a)
    stamp(a, 6)

def epilogue_ssm(a, b2):
    lam, cc, l32, l64, l128, l256 = [vLAM + 2*i for i in range(6)]
    vG, vRT, vE, vX = XF+2, XF+12, 128, 212
    TB = 7*5120
    re = lambda i: accg(i // 8) + 2*(i % 8)
    im = lambda i: accu(i // 8) + 2*(i % 8)
    NRT = 8
    for i in range(6): a(f"ds_read_b128 {V(vRT+4*i)}, v{vRA} offset:{16*i}", tag=f't{i}')
    a(f"v_mov_b32 v{vS}, v{vSa}\nv_mov_b32 v{vS+1}, v{vSa+4}")
    a(f"s_lshl_b32 s{sU}, s{sPair}, 13\ns_add_u32 s{sU}, s{sU}, {EOFF}\ns_lshl_b32 s{sT1}, s{sRB}, 9\ns_add_u32 s{sJ1}, s{sT1}, s{sU}")
    gr, gi, ar, ai = vG, vG+2, vG+4, vG+6
    def ufix(i):
        rt = vRT + 4*(i % NRT)
        if i % 2 == 0: a.wait(lg=f't{i+1}')
        a(f"v_pk_mul_f32 {P(re(i))}, {P(re(i))}, {P(rt)}\nv_pk_mul_f32 {P(im(i))}, {P(im(i))}, {P(rt)}")
        a(f"v_pk_fma_f32 {P(re(i))}, {P(rt+2)}, {P(vS)}, {P(re(i))} op_sel_hi:[1,0,1]")
        a(f"v_pk_fma_f32 {P(im(i))}, {P(rt+2)}, {P(vS)}, {P(im(i))} op_sel:[0,1,0] op_sel_hi:[1,1,1]")
        if i + 6 < 32: a(f"ds_read_b128 {V(vRT+4*((i+6)%NRT))}, v{vRA} offset:{16*(i+6)}", tag=f't{i+6}')
    def step(pr, pi, ur, ui, dr, di):
        a(f"v_pk_fma_f32 {P(dr)}, {P(pr)}, {P(lam)}, {P(ur)} op_sel_hi:[1,0,1]")
        a(f"v_pk_fma_f32 {P(di)}, {P(pi)}, {P(lam)}, {P(ui)} op_sel_hi:[1,0,1]")
        a(f"v_pk_fma_f32 {P(dr)}, {P(pi)}, {P(lam)}, {P(dr)} op_sel:[0,1,0] op_sel_hi:[1,1,1] neg_lo:[0,1,0] neg_hi:[0,1,0]")
        a(f"v_pk_fma_f32 {P(di)}, {P(pr)}, {P(lam)}, {P(di)} op_sel:[0,1,0] op_sel_hi:[1,1,1]")
    ufix(0)
    cur = (re(0), im(0))
    done = 0
    for i in range(1, 32):
        ufix(i)
        nxt = (gr, gi) if cur != (gr, gi) else (ar, ai)
        step(cur[0], cur[1], re(i), im(i), nxt[0], nxt[1])
        cur = nxt
        want = min(B2S, (B2S*i)//26)
        b2.emit(a, want - done, 'aL'); done = want
    e0, e1, eh, eo, ef = vX, vX+2, vX+6, vX+8, vX+12
    a(f"v_mov_b32 v{e0}, v{cur[0]}\nv_mov_b32 v{e0+1}, v{cur[1]}\nv_mov_b32 v{e1}, v{cur[0]+1}\nv_mov_b32 v{e1+1}, v{cur[1]+1}")
    cmul_add(a, eh, e0, l32, e1)
    a(f"v_mov_b32 v{eo}, v{eh}\nv_mov_b32 v{eo+1}, v{eh+1}\nv_mov_b32 v{ef+2}, s{sNon}\nv_mov_b32 v{ef+3}, 0")
    a(f"v_permlane32_swap_b32 v{eh}, v{eo}\nv_permlane32_swap_b32 v{eh+1}, v{eo+1}")
    cmul_add(a, ef, eh, l64, eo)
    a(f"s_mov_b32 exec_hi, 0\nbuffer_store_dwordx4 {V(ef)}, v{vA}, {S(rM)}, s{sJ1} offen sc1\ns_mov_b64 exec, -1", tag='epub')
    stamp(a, 3)
    vA6, vK6, vPA = vRT, vRT+8, vX+10
    a(f"v_lshrrev_b32 v{vPA}, 5, v{vL}\nv_sub_u32 v{vPA}, s{sRB}, v{vPA}\nv_mov_b32 v{vPA+1}, {OOB}\nv_and_b32 v{vT}, 0x1f0, v{vA}\nv_mov_b32 v{vT+2}, s{sNon}")
    for m in range(8):
        a(f"v_add_u32 v{vT+1}, {-(1+2*m)}, v{vPA}\nv_cmp_le_i32 vcc, 0, v{vT+1}\nv_lshl_add_u32 v{vT+1}, v{vT+1}, 9, v{vT}")
        a(f"v_cndmask_b32 v{vA6+m}, v{vPA+1}, v{vT+1}, vcc\nv_cndmask_b32 v{vK6+m}, 0, v{vT+2}, vcc")
    polls = "\n".join(f"buffer_load_dwordx4 {V(vE+4*m)}, v{vA6+m}, {S(rM)}, s{sU} offen sc1" for m in range(8))
    for i in range(32):
        t = gr if i & 1 else gi
        if i < B2C: b2.emit(a, 1, 'aL')
        if i == EPO: a(polls, tag='ep')
        a(f"v_pk_mul_f32 {P(t)}, {P(im(i))}, {P(cc)} op_sel:[0,1] op_sel_hi:[1,1]")
        a(f"v_pk_mul_f32 {P(im(i))}, {P(im(i))}, {P(cc)} op_sel_hi:[1,0]")
        a(f"v_pk_fma_f32 {P(im(i))}, {P(re(i))}, {P(cc)}, {P(im(i))} op_sel:[0,1,0] op_sel_hi:[1,1,1]")
        a(f"v_pk_fma_f32 {P(re(i))}, {P(re(i))}, {P(cc)}, {P(t)} op_sel_hi:[1,0,1] neg_lo:[0,0,1] neg_hi:[0,0,1]")
    a("s_barrier")
    vTW, vTR = vX+16, vX+17
    vHA = 216
    a(f"s_add_u32 s{sT0}, s{sReg}, {TB}")
    a(f"v_and_b32 v{vTW}, 31, v{vL}\nv_mul_u32_u24 v{vTW}, 80, v{vTW}\nv_and_b32 v{vTR}, 32, v{vL}\nv_add3_u32 v{vTW}, v{vTW}, v{vTR}, s{sT0}")
    a(f"v_lshrrev_b32 v{vTR}, 4, v{vL}\nv_lshlrev_b32 v{vTR}, 3, v{vTR}\nv_bfe_u32 v{vT}, v{vL}, 2, 2\nv_add_u32 v{vTR}, v{vTR}, v{vT}\nv_mul_u32_u24 v{vTR}, 80, v{vTR}")
    a(f"v_and_b32 v{vT}, 3, v{vL}\nv_lshlrev_b32 v{vT}, 3, v{vT}\nv_add3_u32 v{vTR}, v{vTR}, v{vT}, s{sT0}")
    a(f"v_bfe_u32 v{vT}, v{vL}, 3, 1\nv_and_b32 v{vHA}, 0x370, v{vA}\nv_lshl_add_u32 v{vHA}, v{vT}, 11, v{vHA}")
    a(f"s_mul_i32 s16, s{sRB}, 188\ns_lshl_b32 s{sT0}, s{sPair}, 1\ns_add_u32 s16, s16, s{sT0}\ns_add_u32 s16, s16, 54\ns_lshl_b32 s16, s16, 12")
    a(f"s_add_u32 s17, s16, 4096\ns_add_u32 s18, s16, {94*4096}\ns_add_u32 s19, s16, {95*4096}")
    p2_flagaddr(a)
    a.wait(vm='ep')
    chk = f"v_xor_b32 v{vT}, v{vE+2}, v{vK6}\n" + "".join(f"v_xor_b32 v{vT+1}, v{vE+4*m+2}, v{vK6+m}\nv_or_b32 v{vT}, v{vT}, v{vT+1}\n" for m in range(1, 8)) + f"v_cmp_ne_u32 vcc, 0, v{vT}"
    spin(a, 'e', polls, chk)
    stamp(a, 4)
    cur = vE + 28
    for m in range(6, -1, -1):
        cmul_add(a, vE+4*m, cur, l256, vE+4*m); cur = vE + 4*m
    g0, g1 = ar, ai
    a(f"v_mov_b32 v{g1}, v{cur}\nv_mov_b32 v{g1+1}, v{cur+1}\nv_mov_b32 v{eo}, 0\nv_mov_b32 v{eo+1}, 0\nv_cmp_gt_u32 vcc, 32, v{vL}")
    a(f"v_permlane32_swap_b32 v{cur}, v{g1}\nv_permlane32_swap_b32 v{cur+1}, v{g1+1}")
    cmul_add(a, g0, g1, l128, cur)
    cmul_add(a, eh, g0, l64, eh)
    a(f"v_cndmask_b32 v{g0}, v{eh}, v{g0}, vcc\nv_cndmask_b32 v{g0+1}, v{eh+1}, v{g0+1}, vcc")
    cmul_add(a, e0, g0, l32, e0)
    cmul_add(a, e1, g0, cc, eo)
    cmul_add(a, eh, e0, cc, eo)
    a(f"v_mov_b32 v{gr}, v{e1}\nv_mov_b32 v{gr+1}, v{eh}\nv_mov_b32 v{gi}, v{e1+1}\nv_mov_b32 v{gi+1}, v{eh+1}")
    vPK = 188
    cur = (gr, gi)
    pend = []
    nb = 0
    for i in range(32):
        step(cur[0], cur[1], re(i), im(i), re(i), im(i))
        cur = (re(i), im(i))
        blk = i // 8
        if pend and i % 8 in (2, 3, 4, 5):
            x, tg = pend.pop(0)
            a.wait(lg=tg); a(x, tag='hst')
        if (i*B2P)//32 > nb: b2.emit(a, 1, 'aL'); nb += 1
        if i & 1:
            pk = vPK + (i % 8)//2
            for e in range(2):
                a(f"v_cvt_pk_bf16_f32 v{pk+4*e}, v{re(i-1)+e}, v{re(i)+e}")
                a(f"v_cvt_pk_bf16_f32 v{pk+8+4*e}, -v{im(i-1)+e}, -v{im(i)+e}")
            if i % 8 == 7:
                for comp in range(2):
                    for e in range(2):
                        a(f"ds_write_b128 v{vTW}, {V(vPK+comp*8+e*4)} offset:{comp*32*80 + e*16}", tag='tw')
                for comp in range(2):
                    for hh in range(2):
                        d = 32*blk + 16*comp + 4*hh
                        off = comp*32*80 + hh*32
                        a(f"ds_read_b64_tr_b16 v[{d}:{d+1}], v{vTR} offset:{off}\nds_read_b64_tr_b16 v[{d+2}:{d+3}], v{vTR} offset:{off+4*80}", tag=f'f{blk}{comp}{hh}')
                        pend.append((f"buffer_store_dwordx4 {V(d)}, v{vHA}, {S(rH)}, s{16+2*hh+comp} offen offset:{(blk>>1)*1024+(blk&1)*128} sc1", f'f{blk}{comp}{hh}'))
    for x, tg in pend:
        a.wait(lg=tg); a(x, tag='hst')
    stamp(a, 5)
    if BG == 1: base_gap_loads(a)
    b2.emit(a, B2W, KF)
    flag2_store(a)
    if BG == 2: base_gap_loads(a)
    stamp(a, 6)
    b2.emit(a, 999, KF)

def after_kernarg(a):
    a("s_waitcnt lgkmcnt(0)")
    if PROBE != -2: a("s_mov_b32 s0, s80\ns_mov_b32 s1, s80")
    srd(a, rX, sX, 2048*1280)

def common_srds(a):
    srd(a, rF, sDbg, 256)
    srd(a, rH, sWs, H_SIZE)
    a(f"s_add_u32 s{rM}, s{sWs}, {MISC}\ns_addc_u32 s{rM+1}, s{sWs+1}, 0\ns_mov_b32 s{rM+2}, {MISC_SIZE}\ns_mov_b32 s{rM+3}, 0x20000")
    if STAMP:
        a(f"s_lshl_b32 s82, s2, 2\ns_add_u32 s82, s82, s{sW}\ns_lshl_b32 s82, s82, 8\ns_add_u32 s82, s82, {STAMPS}")
        a(f"v_accvgpr_write_b32 a250, s98\nv_accvgpr_write_b32 a251, s96")
        a(f"buffer_store_dwordx2 a[250:251], off, {S(rM)}, s82 offset:{18*8}", tag='stamp')
        a(f"s_getreg_b32 s80, hwreg(HW_REG_XCC_ID)\ns_getreg_b32 s81, hwreg(HW_REG_HW_ID)\nv_accvgpr_write_b32 a248, s80\nv_accvgpr_write_b32 a249, s81")
        a(f"buffer_store_dwordx2 a[248:249], off, {S(rM)}, s82 offset:{20*8}", tag='stamp')

def start_loads(a, role, rest):
    q = dma_queue(role)
    n0 = sum(x[2] == 0 for x in q)
    k0 = N0
    while not q[k0][0].startswith('s_add_u32 m0'): k0 -= 1
    for x in q[:k0]: a(x[0], tag=x[1])
    common_srds(a)
    stamp(a, 0)
    a(f"v_bfe_u32 v5, v{vL}, 3, 2\nv_mul_u32_u24 v5, 5120, v5\nv_lshl_add_u32 v5, v3, 7, v5")
    if role == 'gld': a(f"s_lshr_b32 s{sT0}, s{sW}, 1\ns_mul_i32 s{sT0}, s{sT0}, 61440\nv_add_u32 v5, s{sT0}, v5")
    a(f"v_bfe_u32 v6, v{vL}, 1, 3\nv_xor_b32 v6, v6, v7")
    for s in range(4):
        a(f"v_xor_b32 v8, {2*s}, v6\nv_lshl_add_u32 v{vXR+s}, v8, 4, v5")
    for x in q[k0:n0]: a(x[0], tag=x[1])
    stamp(a, 1)
    rest()
    for x in q[n0:n0+n1_of(role)]: a(x[0], tag=x[1])
    stamp(a, 12)
    a.wait(vm='c0')
    a("s_barrier")
    stamp(a, 7)

def p2_flagaddr(a):
    j, rb, t = vT, vT+1, vT+2
    a(f"s_lshl_b32 s{sT0}, s{sRT}, 1\nv_lshrrev_b32 v{rb}, 5, v{vL}\nv_add_u32 v{rb}, s{sT0}, v{rb}\nv_mul_u32_u24 v{rb}, 205, v{rb}\nv_lshrrev_b32 v{rb}, 10, v{rb}")
    a(f"v_and_b32 v{j}, 15, v{vL}\ns_lshl_b32 s{sT2}, s{sW}, 4\nv_lshl_add_u32 v{rb}, v{rb}, 6, v{j}\nv_add_u32 v{rb}, s{sT2}, v{rb}")
    a(f"s_lshr_b32 s{sT1}, s{sW}, 1\ns_xor_b32 s{sT1}, s{sT1}, 1\ns_lshr_b32 s{sT0}, s{sRT}, 1\ns_lshl_b32 s{sT0}, s{sT0}, 5\ns_add_u32 s{sT1}, s{sT1}, s{sT0}\ns_add_u32 s{sT1}, s{sT1}, 1024")
    a(f"v_lshl_add_u32 v{t}, v{j}, 1, s{sT1}\nv_and_b32 v{j}, 16, v{vL}\nv_cmp_eq_u32 vcc, 0, v{j}\ns_mov_b32 s{sFl}, {FLAG2}\ns_cmp_ge_u32 s{sW}, 2")
    a(f"v_cndmask_b32 v{vFl}, v{t}, v{rb}, vcc\nv_lshlrev_b32 v{vFl}, 5, v{vFl}")
    a(f"s_cselect_b32 s{sT0}, 1, 0\ns_lshr_b32 s10, 0x3fff, s{sT0}\ns_mov_b32 s11, s10\ns_mov_b32 s22, 0x3ff0000\ns_mov_b32 s23, 0")

def base_items():
    tid = 235
    side = {p: [] for p in range(24)}
    I = lambda t: [(x, None) for x in t.split("\n")]
    side[0] += I(f"s_mov_b32 s{rD}, s{sD}\ns_mov_b32 s{rD+1}, s{sD+1}\ns_mov_b32 s{rD+2}, 1280\ns_mov_b32 s{rD+3}, 0x20000\ns_mov_b32 s{rO}, s{sOut}\ns_mov_b32 s{rO+1}, s{sOut+1}\ns_mov_b32 s{rO+2}, {2048*2560}\ns_mov_b32 s{rO+3}, 0x20000")
    side[0] += I(f"s_lshl_b32 s{sT0}, s{sW}, 6\nv_add_u32 v{tid}, s{sT0}, v{vL}\ns_mul_i32 s{sT2}, s{sW}, 21504\ns_lshl_b32 s{sT0}, s{sRT}, 6\ns_mul_i32 s{sT1}, s{sN8}, 20\ns_mov_b32 s{sT3}, {STATS}")
    side[0] += I(f"v_and_b32 v{vLW}, 15, v{vL}\nv_mul_u32_u24 v{vLW}, 336, v{vLW}\nv_and_b32 v{vT}, 48, v{vL}\nv_add3_u32 v{vLW}, v{vLW}, v{vT}, s{sT2}")
    for i in range(5):
        f, r, c = vT, vT+1, vT+2
        g = 244 + 6*(i & 1)
        L = I(f"v_add_u32 v{f}, {256*i}, v{tid}\nv_mul_u32_u24 v{r}, 3277, v{f}\nv_lshrrev_b32 v{r}, 16, v{r}\nv_mul_u32_u24 v{c}, 20, v{r}\nv_sub_u32 v{c}, v{f}, v{c}\n"
              f"v_mul_u32_u24 v{f}, 336, v{r}\nv_lshl_add_u32 v{vLA+i}, v{c}, 4, v{f}\n"
              f"v_add_u32 v{r}, s{sT0}, v{r}\nv_add_u32 v{c}, s{sT1}, v{c}\nv_mul_u32_u24 v{f}, 160, v{r}\nv_add_u32 v{f}, v{f}, v{c}\nv_lshlrev_b32 v{vEA+i}, 4, v{f}\n"
              f"v_lshlrev_b32 v{f}, 3, v{f}\nv_lshlrev_b32 v{c}, 3, v{c}\nv_lshlrev_b32 v{r}, 3, v{r}")
        L += [(f"buffer_load_dwordx2 {P(g)}, v{f}, {S(rX)}, 0 offen", f'e{i}'), (f"buffer_load_dwordx2 {P(g+2)}, v{c}, {S(rD)}, 0 offen", f'e{i}'), (f"buffer_load_dword v{g+4}, v{r}, {S(rM)}, s{sT3} offen sc1", f'e{i}')]
        side[BS0+BSD*i] += L
        o, d, t = vBase + 4*i, vT, vT+4
        C = [('WAITVM', f'e{i}')] + I(f"v_and_b32 v{g+5}, 0xffff0000, v{g+4}\nv_lshlrev_b32 v{g+4}, 16, v{g+4}\nv_rcp_f32 v{g+5}, v{g+5}")
        for k in range(2):
            C += I(f"v_lshlrev_b32 v{o+2*k}, 16, v{g+k}\nv_and_b32 v{o+2*k+1}, 0xffff0000, v{g+k}\nv_lshlrev_b32 v{d+2*k}, 16, v{g+2+k}\nv_and_b32 v{d+2*k+1}, 0xffff0000, v{g+2+k}")
        for k in range(4):
            C += I(f"v_mul_f32 v{d+k}, v{d+k}, v{g+5}\nv_add_f32 v{t}, v{o+k}, v{g+4}\nv_fmac_f32 v{o+k}, v{t}, v{d+k}")

        if BSD == 3: side[BS0+3*i+4] += C[:12]; side[BS0+3*i+5] += C[12:]
        else: side[BS0+2*i+3] += C
    return side

def base_gap_loads(a):
    side = base_items()
    for x, tag in side[0]: a(x)
    a(f"s_mov_b32 s21, {STATS}")
    for i in range(5):
        L = side[BS0+BSD*i][-18:]
        for x, tag in L[:14]: a(x)
        a(f"v_lshlrev_b32 v{40+i}, 3, v{vT+1}")
        a(f"buffer_load_dwordx2 {P(8*i)}, v{vT}, {S(rX)}, 0 offen\nbuffer_load_dwordx2 {P(8*i+2)}, v{vT+2}, {S(rD)}, 0 offen\nbuffer_load_dwordx2 {P(8*i+4)}, v{40+i}, {S(rM)}, s21 offen sc1", tag='ep')
def base_gap_compute(a, var):
    spin(a, 'st' + var, "\n".join(f"buffer_load_dwordx2 {P(8*i+4)}, v{40+i}, {S(rM)}, s21 offen sc1" for i in range(5)),
         f"v_xor_b32 v46, s{sNon}, v5\n" + "".join(f"v_xor_b32 v47, s{sNon}, v{8*i+5}\nv_or_b32 v46, v46, v47\n" for i in range(1, 5)) + "v_cmp_ne_u32 vcc, 0, v46")
    for i in range(5):
        x, d, s = 48, 52, 8*i+4
        a(f"v_and_b32 v{s+1}, 0xffff0000, v{s}\nv_lshlrev_b32 v{s}, 16, v{s}\nv_rcp_f32 v{s+1}, v{s+1}")
        for r, src in ((x, 8*i), (x+2, 8*i+1), (d, 8*i+2), (d+2, 8*i+3)):
            a(f"v_lshlrev_b32 v{r}, 16, v{src}\nv_and_b32 v{r+1}, 0xffff0000, v{src}")
        for h in range(2):
            o = vBase + 4*i + 2*h
            a(f"v_pk_add_f32 {P(o)}, {P(x+2*h)}, {P(s)} op_sel_hi:[1,0]")
            a(f"v_pk_mul_f32 {P(d+2*h)}, {P(d+2*h)}, {P(s)} op_sel:[0,1] op_sel_hi:[1,1]")
            a(f"v_pk_fma_f32 {P(o)}, {P(o)}, {P(d+2*h)}, {P(x+2*h)}")

def phase2(a, var):
    a(f"L_p2_{var}:")
    pl = PLAN[var]
    free = list(pl.free)
    reg = {p: d for p, d in pl.dest.items() if d[0] != 'l'}
    poll = POLL
    a(poll, tag='po')
    for p in pl.sh:
        if p not in pl.dest: reg[p] = free.pop(0)
        for x, tag in b2_items(p, pl.dest.get(p) or reg[p]): a(x, tag=tag)
    a(f"v_add_u32 v{vBR}, s{sReg}, v{vA}")
    a.wait(vm='po')
    stamp(a, 16)
    def chk(m): return f"v_cmp_ne_u32 vcc, s{sNon}, v{vPo}\ns_and_b64 vcc, vcc, s[{m}:{m+1}]"
    spin(a, 'g' + var, poll, chk(10))
    stamp(a, 8)
    def aloads(p):
        st = p % NR
        t = f"s_add_u32 s{sJ1}, s{sAo}, {p*4*4096}\n"
        if p == 23: t += f"s_add_u32 s{sJ1}, s{sJ1}, s{sLast}\n"
        L = [f"buffer_load_dwordx4 {V(RING+16*st+4*q)}, v{vA}, {S(rH)}, s{sJ1} offen offset:{q*1024} {LSC}" for q in range(4)]
        L[0] = t + L[0]
        return [(x, f'a{p}') for x in L]
    for p in range(NA0):
        for x, tag in aloads(p): a(x, tag=tag)
    if BG:
        base_gap_compute(a, var)
        bside = {p: [] for p in range(24)}
    else:
        bside = base_items()
        for x, tag in bside[0]: a(x)
        bside[0] = []
    GL = 13
    anext = NA0
    def bfr(p, nt):
        k, d = reg[p]
        return A(d+4*nt) if k == 'a' else V(d+4*nt)
    def stage(p):
        reg[p] = free.pop(0)
        return [('WAITVM', f'b{p}')] + [(f"ds_read_b128 {bfr(p, q)}, v{vBR} offset:{pl.dest[p][1]*5120+q*1024}", f'l{p}') for q in range(5)]
    if 0 not in reg:
        for x, tag in stage(0)[1:]: a(x, tag=tag)
    def mf(p, mt, nt):
        acc = V((mt*5+nt)*4)
        a(f"v_mfma_f32_16x16x32_bf16 {acc}, {bfr(p, nt)}, {V(RING+16*(p%NR)+4*mt)}, {'0' if p == 0 else acc}")
    late = list(pl.late); lcur = []; lcred = 0.0; issued_at = {}
    pbar = max(pl.ll) if pl.ll else 1
    assert pbar < 24 - NPL
    for p in range(24 - NPL):
        fill = []
        if p > 0: free.append(reg[p-1])
        if p + 1 not in reg and p + 1 in pl.dest: fill += stage(p+1)
        if p == SCK - 2: fill += [(poll, 'po')]
        if p == SCK: fill += [('SSMCHK', None)]
        na = 0
        while anext <= min(p + NR - 1, 23) and (anext < GL or p >= SCK) and na < 2:
            fill += aloads(anext); anext += 1; na += 1
        if p >= pl.lp0:
            lcred += pl.lr
            while lcred >= 1 and (lcur or (late and free)):
                if not lcur:
                    q = late.pop(0); reg[q] = free.pop(0); lcur = b2_items(q, reg[q])
                x = lcur.pop(0); fill.append(x); lcred -= 1
                assert int(x[1][1:]) >= p + 2, ("late B2 step issued too late", var, x[1], p)
            lcred = min(lcred, pl.lr)
        if p == max(pbar, PBAR): fill += [('s_barrier', None)]
        a.wait(vm=[f'a{p}', f'b{p}'], lg=f'l{p}')
        if p in (0, 4, 8, 16): stamp(a, {0: 21, 4: 22, 8: 23, 16: 24}[p])
        slots = [[] for _ in range(20)]
        for lst in (fill, bside[p]):
            for i, x in enumerate(lst): slots[(i*20)//len(lst)].append(x)
        for n in range(20):
            mf(p, n // 5, n % 5)
            for x, tag in slots[n]:
                if x == 'SSMCHK':
                    a.wait(vm='po'); spin(a, 's' + var, poll, chk(22))
                    stamp(a, 17)
                elif x == 'WAITVM': a.wait(vm=tag)
                else: a(x, tag=tag)
    assert not late and not lcur
    assert NPL <= NR - 1 and anext == 24 and not any(bside[p] for p in range(24-NPL, 24))
    wr = lambda mt, nt: a(f"ds_write_b128 v{vLW}, {V((mt*5+nt)*4)} offset:{mt*16*336 + nt*64}", tag='w')
    for mt in range(4):
        n = 0
        for p in range(24 - NPL, 24):
            if mt == 0: a.wait(vm=[f'a{p}', f'b{p}'])
            for nt in range(5):
                mf(p, mt, nt)
                if mt > 0 and n % NPL == NPL - 1: wr(mt-1, n // NPL)
                n += 1
    stamp(a, 9)
    for nt in range(5): wr(3, nt)
    a("s_waitcnt lgkmcnt(0)\ns_barrier")
    for i in range(5):
        for w in range(4):
            a(f"ds_read_b128 {V(RING+16*i+4*w)}, v{vLA+i} offset:{w*21504}", tag=f'q{i}')
    for i in range(5):
        a.wait(lg=f'q{i}')
        for w in range(4):
            for h in range(2):
                o = vBase + 4*i + 2*h
                a(f"v_pk_add_f32 {P(o)}, {P(o)}, {P(RING+16*i+4*w+2*h)}")
        a(f"buffer_store_dwordx4 {V(vBase+4*i)}, v{vEA+i}, {S(rO)}, 0 offen {OST}")
    stamp(a, 10)
    if PROBE != -2:
        a("s_sub_u32 s1, s1, s0\ns_lshl_b32 s1, s1, 2")
        if PWG >= 0: a(f"s_cmp_eq_u32 s2, {PWG}\ns_cselect_b32 s1, s1, 0")
        a(f"s_add_u32 s1, s1, 6000\nL_probe{var}:\ns_sleep 1\ns_memrealtime s[80:81]\ns_waitcnt lgkmcnt(0)\ns_sub_u32 s80, s80, s0\ns_cmp_lt_u32 s80, s1\ns_cbranch_scc1 L_probe{var}")
    if STAMP:
        a("s_waitcnt vmcnt(0)"); stamp(a, 11)
    a("s_endpgm")

def kernel():
    a = Asm()
    a(f"s_cmp_ge_u32 s2, 256\ns_cbranch_scc1 L_end")
    if PROBE != -2: a("s_memrealtime s[80:81]\ns_memtime s[82:83]")
    if STAMP: a("s_memtime s[98:99]\ns_memrealtime s[96:97]")
    a(f"s_load_dwordx16 s[8:23], s[0:1], 0\ns_load_dwordx16 s[24:39], s[0:1], 64")
    a(f"s_getpc_b64 s[{rP}:{rP+1}]\nL_pf:\ns_mov_b32 s{rP+2}, L_end-L_pf\ns_mov_b32 s{rP+3}, 0x20000")
    a(f"s_lshr_b32 s{sT1}, s2, 3\ns_mul_i32 s{sT0}, s{sT1}, {PFL*128}\nv_lshlrev_b32 v1, 7, v0\nv_cmp_gt_u32 vcc, {PFL}, v0\nv_mov_b32 v2, {OOB}\nv_add_u32 v1, s{sT0}, v1\nv_cndmask_b32 v1, v2, v1, vcc")
    a(f"buffer_load_dword a{aDUM}, v1, {S(rP)}, 0 offen", tag='pf')
    a(f"v_and_b32 v{vL}, 63, v0\nv_lshrrev_b32 v1, 6, v0\nv_lshlrev_b32 v{vA}, 4, v{vL}\nv_readfirstlane_b32 s{sW}, v1")
    a(f"v_lshrrev_b32 v7, 5, v{vL}\nv_lshrrev_b32 v2, 3, v{vL}\nv_and_b32 v3, 7, v{vL}\ns_mov_b32 s{sSpin}, 0\ns_mul_i32 s{sXm}, s{sW}, 5120")
    a(f"s_lshl_b32 s{sT0}, s{sW}, 2\nv_lshrrev_b32 v4, 1, v2\nv_add_u32 v4, s{sT0}, v4\nv_and_b32 v4, 7, v4\nv_xor_b32 v4, v4, v3\nv_lshlrev_b32 v4, 4, v4")
    a(f"s_and_b32 s{sT0}, s2, 3\ns_bfe_u32 s{sT2}, s2, 0x10002")
    st0 = a.state()
    a(f"s_cmp_ge_u32 s{sT1}, 10\ns_cbranch_scc1 L_glup")
    a("s_memrealtime s[98:99]" if not STAMP else "s_mov_b32 s97, 0")
    a(f"s_mul_i32 s{sT0}, s{sT0}, 10\ns_add_u32 s{sT0}, s{sT0}, s{sT1}\ns_lshr_b32 s{sG}, s{sT0}, 3\ns_and_b32 s{sRB}, s{sT0}, 7\ns_lshl_b32 s{sT2}, s{sT2}, 3\ns_add_u32 s{sRB}, s{sRB}, s{sT2}")
    a(f"s_lshl_b32 s{sPair}, s{sG}, 2\ns_add_u32 s{sPair}, s{sPair}, s{sW}\ns_lshl_b32 s{sT1}, s{sRB}, 7\ns_lshl_b32 s{sT0}, s{sW}, 1\ns_add_u32 s{sT1}, s{sT1}, s{sT0}")
    a(f"v_and_b32 v9, 1, v2\nv_lshl_add_u32 v8, v7, 1, v9\nv_bfe_u32 v10, v2, 1, 1\nv_lshl_add_u32 v8, v8, 5, v10\nv_add_u32 v8, s{sT1}, v8\nv_mul_u32_u24 v8, 1280, v8\nv_add_u32 v{vXD}, v8, v4")
    for j in range(1, 4):
        a(f"v_add_u32 v{vXD+j}, {j*(8*1280-1024)}, v{vXD}")
    a(f"s_lshl_b32 s{sKind}, s{sPair}, 5\nv_add_u32 v8, s{sKind}, v2\nv_mul_u32_u24 v8, 1280, v8\nv_lshrrev_b32 v9, 1, v2\nv_xor_b32 v9, v9, v3")
    a(f"v_lshl_add_u32 v{vWD}, v9, 4, v8\nv_xor_b32 v{vWD+1}, 64, v{vWD}\nv_add_u32 v{vWD+1}, {8*1280-1024}, v{vWD+1}")
    a(f"v_add_u32 v{vWD+2}, {2*(8*1280-1024)}, v{vWD}\nv_add_u32 v{vWD+3}, {2*(8*1280-1024)}, v{vWD+1}")
    a(f"s_mul_i32 s{sWm}, s{sW}, 24576\ns_add_u32 s{sWm}, s{sWm}, {WB}\ns_lshl_b32 s{sRx}, s{sG}, 8")
    after_kernarg(a)
    srd(a, rA, sBre, 640*1280)
    srd(a, rB, sBim, 640*1280)
    def rest_ssm():
        a(f"s_or_b32 s{sT0}, s2, s{sW}\ns_cselect_b32 s{sT0}, 0x1000, 0\ns_or_b32 s{sT2}, s{96 if STAMP else 98}, 1\nv_mov_b32 v12, s{sT2}\nv_mov_b32 v13, s{sT0}\ns_mov_b64 exec, 1")
        a(f"buffer_store_dword v12, v13, {S(rF)}, 0 offen sc1\ns_mov_b64 exec, -1")
        a(f"v_and_b32 v12, 31, v{vL}\nv_add_u32 v13, s{sKind}, v12\nv_lshlrev_b32 v13, 1, v13")
        for i, p in enumerate((sLre, sLim, sLdt)):
            a(f"global_load_ushort v{vLAM+i}, v13, s[{p}:{p+1}]", tag='lam')
        a(f"v_lshl_add_u32 v9, v12, 7, s{sWm}\ns_lshl_b32 s{sT0}, s{sW}, 10")
        for s in range(4):
            a(f"v_xor_b32 v10, {2*s}, v6\nv_lshl_add_u32 v{vWR+s}, v10, 4, v9\nv_add_u32 v{vQR+s}, s{sT0}, v{vXR+s}")
        a(f"s_lshl_b32 s{sFo}, s{sRB}, 5\ns_add_u32 s{sFo}, s{sFo}, s{sPair}\ns_lshl_b32 s{sFo}, s{sFo}, 5\ns_add_u32 s{sFo}, s{sFo}, {FLAG2+0x8000}")
        a(f"s_mul_i32 s{sU}, s{sRB}, 20\ns_add_u32 s{sU}, s{sU}, s{sPair}")
        repack_setup(a, 'ssm')
    start_loads(a, 'ssm', rest_ssm)
    sts = a.state()
    a("s_branch L_ssm")
    a.set_state(st0)
    a("L_glup:")
    t, b, t7, t6 = sT0, sT2, sT1, sT3
    a(f"""s_mul_i32 s{t}, s{t}, 22
s_add_u32 s{t}, s{t}, s{sT1}
s_sub_u32 s{t}, s{t}, 10
s_mul_i32 s{t7}, s{b}, 42
s_sub_u32 s{t7}, s{t}, s{t7}
s_mul_i32 s{t6}, s{b}, 49
s_add_u32 s{t6}, s{t6}, s{t}
s_sub_u32 s{t6}, s{t6}, 49
s_mul_i32 s{sG}, s{t7}, 9363
s_lshr_b32 s{sG}, s{sG}, 16
s_mul_i32 s{sRB}, s{sG}, 7
s_sub_u32 s{sRB}, s{t7}, s{sRB}
s_sub_u32 s{sRB}, s{sRB}, s{b}
s_mul_i32 s{sKind}, s{b}, 7
s_add_u32 s{sG}, s{sG}, s{sKind}
s_mul_i32 s{sPair}, s{t6}, 10923
s_lshr_b32 s{sPair}, s{sPair}, 16
s_mul_i32 s{sDo}, s{sPair}, 6
s_sub_u32 s{sDo}, s{t6}, s{sDo}
s_add_u32 s{sPair}, s{sPair}, 7
s_sub_u32 s{sPair}, s{sPair}, s{sKind}
s_cmp_lt_u32 s{t7}, 49
s_cselect_b32 s{sG}, s{sG}, s{sPair}
s_cselect_b32 s{sRB}, s{sRB}, s{sDo}
s_add_u32 s{sRB}, s{sRB}, s{sKind}
s_lshl_b32 s{sKind}, s{b}, 2
s_add_u32 s{sKind}, s{sKind}, s{t}
s_sub_u32 s{sKind}, s{sKind}, 85
s_lshl_b32 s{sDo}, s{sKind}, 1
s_cmp_eq_u32 s{sG}, 13
s_cselect_b32 s{sRB}, s{sDo}, s{sRB}
s_cselect_b32 s{sKind}, s{sKind}, 6""")
    a(f"s_mul_i32 s{sT1}, s{sRB}, 160\ns_lshl_b32 s{sT0}, s{sW}, 3\ns_add_u32 s{sT1}, s{sT1}, s{sT0}\nv_add_u32 v8, s{sT1}, v2\nv_mul_u32_u24 v8, 1280, v8\nv_add_u32 v{vXD}, v8, v4")
    for j in range(1, 5):
        a(f"v_add_u32 v{vXD+j}, {j*32*1280 - (j*1024 if j < 4 else 0)}, v{vXD}")
    a(f"v_bfe_u32 v8, v{vL}, 2, 3\nv_mul_u32_u24 v8, 3456, v8\nv_lshl_add_u32 v8, v7, 6, v8\nv_and_b32 v10, 0x30, v{vA}")
    a(f"s_lshr_b32 s{sT0}, s{sW}, 1\ns_and_b32 s{sT2}, s{sW}, 1\ns_lshl_b32 s{sT3}, s{sT2}, 13")
    def wsrd():
        for j in range(1, 4):
            a(f"v_add_u32 v{vWD+j}, {j*(8*3456-1024)}, v{vWD}")
        after_kernarg(a)
        a(f"s_bitcmp1_b32 s{sW}, 0\ns_cselect_b32 s{rA}, s{sWu}, s{sWg}\ns_cselect_b32 s{rA+1}, s{sWu+1}, s{sWg+1}\ns_mov_b32 s{rA+2}, {640*3456}\ns_mov_b32 s{rA+3}, 0x20000")
    def wread(sb):
        a(f"s_and_b32 s{sT2}, s{sW}, 1\ns_lshl_b32 s{sT2}, s{sT2}, 9\ns_add_u32 s{sT2}, s{sT2}, {sb}")
        a(f"v_bfe_u32 v8, v{vL}, 2, 2\nv_lshlrev_b32 v8, 6, v8\nv_lshl_add_u32 v8, v7, 10, v8\nv_and_b32 v10, 1, v{vL}\nv_lshl_add_u32 v8, v10, 5, v8")
        a(f"v_bfe_u32 v10, v{vL}, 4, 1\nv_lshl_add_u32 v8, v10, 4, v8\nv_bfe_u32 v10, v{vL}, 1, 1\nv_lshl_add_u32 v8, v10, 3, v8\nv_add_u32 v{vWR}, s{sT2}, v8")
    def flagoff(sw):
        a(f"s_lshl_b32 s{sFo}, s{sRB}, 2\ns_add_u32 s{sFo}, s{sFo}, s{sw}\ns_lshl_b32 s{sFo}, s{sFo}, 4\ns_add_u32 s{sFo}, s{sFo}, s{sG}\ns_lshl_b32 s{sFo}, s{sFo}, 5\ns_add_u32 s{sFo}, s{sFo}, {FLAG2}")
    st1 = a.state()
    a(f"s_cmp_lt_u32 s{sKind}, 6\ns_cbranch_scc1 L_gldp")
    a(f"s_lshl_b32 s{sT1}, s{sG}, 1\ns_add_u32 s{sT1}, s{sT1}, s{sT0}\ns_lshl_b32 s{sKind}, s{sT1}, 7\ns_cmp_ge_u32 s{sT1}, 27\ns_cselect_b32 s{sKind}, {OOB}, s{sKind}\nv_add3_u32 v{vWD}, v8, v10, s{sKind}")
    a(f"s_mul_i32 s{sKind}, s{sT0}, 49152\ns_add_u32 s{sKind}, s{sKind}, {WB}\ns_add_u32 s{sWm}, s{sT3}, s{sKind}")
    wsrd()
    a(f"s_cmp_eq_u32 s{sRB}, 12\ns_cselect_b32 s{sRx}, {NS*128}, 0\ns_cselect_b32 s{sRw}, {NS*64*3456}, 0")
    def rest_glu():
        a(f"s_lshl_b32 s{sPair}, s{sG}, 2\ns_add_u32 s{sPair}, s{sPair}, s{sW}")
        wread(f"s{sKind}")
        flagoff(sW)
        a(f"s_cmp_eq_u32 s{sRB}, 12\ns_cbranch_scc1 L_rp12")
        a(f"s_mul_i32 s{sU}, s{sRB}, 52\ns_add_u32 s{sU}, s{sU}, s{sPair}")
        repack_setup(a, 'glu')
        a("L_rpdone:")
    start_loads(a, 'glu', rest_glu)
    stg = a.state()
    a(f"s_cmp_eq_u32 s{sRB}, 12\ns_cbranch_scc1 L_g12\ns_branch L_glu")
    a("L_rp12:")
    a(f"s_add_u32 s{sU}, s{sPair}, 320")
    repack_setup(a, 'g12')
    a("s_branch L_rpdone")
    a.set_state(st1)
    a("L_gldp:")
    a(f"s_mul_i32 s{sT1}, s{sT0}, {32*3456}\ns_add_u32 s{sT1}, s{sT1}, {26*128}\nv_add3_u32 v{vWD}, v8, v10, s{sT1}")
    a(f"s_lshl_b32 s{sT1}, s{sT0}, 12\ns_add_u32 s{sWm}, s{sT3}, s{sT1}\ns_add_u32 s{sWm}, s{sWm}, {WBD}\ns_add_u32 s{sRB}, s{sRB}, s{sT0}\ns_add_u32 s{sPair}, s{sT2}, 52")
    wsrd()
    def rest_gld():
        wread(f"{WBD}")
        a(f"s_and_b32 s{sT0}, s{sW}, 1")
        flagoff(sT0)
        a(f"s_lshl_b32 s{sU}, s{sKind}, 2\ns_add_u32 s{sU}, s{sU}, s{sW}\ns_add_u32 s{sU}, s{sU}, 376")
        repack_setup(a, 'gld')
    start_loads(a, 'gld', rest_gld)
    tmp = Asm(); tmp.set_state(stg); bt = B2Q('g'); n = len(SLOW); mainloop(tmp, 'glu', bt); del SLOW[n:]
    b2 = B2Q('g')
    mainloop(a, 'gld', b2)
    left = lambda q: 5*len(q.todo) + len(q.cur)
    assert left(b2) >= left(bt)
    b2.emit(a, left(b2) - left(bt), 'a')
    assert b2.todo == bt.todo and b2.cur == bt.cur
    a("s_nop 7\ns_branch L_gluepi")
    a.set_state(sts)
    a("L_ssm:")
    b2 = B2Q('s')
    mainloop(a, 'ssm', b2)
    stamp(a, 2)
    epilogue_ssm(a, b2)
    a.set_state(([], [], False))
    phase2(a, 's')
    a.set_state(stg)
    a("L_g12:")
    b2 = B2Q('g')
    mainloop(a, 'g12', b2)
    stamp(a, 2)
    epilogue_glu(a, b2, 4)
    b2.emit(a, 999, KF)
    a("s_branch L_p2_g")
    a.set_state(stg)
    a("L_glu:")
    b2 = B2Q('g')
    mainloop(a, 'glu', b2)
    a("L_gluepi:")
    stamp(a, 2)
    epilogue_glu(a, b2)
    b2.emit(a, 999, KF)
    a.set_state(([], [], False))
    phase2(a, 'g')
    for t in SLOW: a(t)
    a("L_end:")
    return a

def wrap(name, a):
    body = a.text()
    if ALIGN:
        from align import align
        body, npro, nnop = align(body)
        print("align: promoted", npro, "nops", nnop)
    return f"""
.text
.globl {name}
.p2align 8
.type {name},@function
{name}:
{body}    s_endpgm
.section .rodata,"a"
.p2align 6
.amdhsa_kernel {name}
  .amdhsa_next_free_vgpr 512
  .amdhsa_next_free_sgpr 102
  .amdhsa_accum_offset 256
  .amdhsa_group_segment_fixed_size 0
  .amdhsa_kernarg_size 128
  .amdhsa_user_sgpr_count 2
  .amdhsa_user_sgpr_kernarg_segment_ptr 1
  .amdhsa_system_sgpr_workgroup_id_x 1
.end_amdhsa_kernel
"""

if __name__ == "__main__":
    out = [x for x in sys.argv[1:] if not x.startswith('--')][0]
    hdr = open('cdna_kernels/' + NAME + '.s.ref').read().split('; Override launch')[0]
    s = hdr
    if '--list' in sys.argv:
        s += f"; @launch kernel={NAME}_kernel grid=(256,1,1) block=(256,1,1) lds={LDS}\n"
    else:
        s += f"; @launch grid=(256,1,1) block=(256,1,1) lds={LDS}\n"
    s += '.amdgcn_target "amdgcn-amd-amdhsa--gfx950"\n'
    k = kernel()
    s += wrap(NAME + "_kernel", k)
    open(out, 'w').write(s)
    print("pads", k.npad, "instrs", len(k.ins))
```
